```python
import torch

def _softmax(x, axis=-1):
    return torch.softmax(x, dim=axis)
def _gelu(x):
    return torch.nn.functional.gelu(x, approximate="tanh")
def _silu(x):
    return torch.nn.functional.silu(x)
def _sigmoid(x):
    return torch.sigmoid(x)
def _layernorm(x, axis=-1, eps=1e-5):
    m = x.mean(dim=axis, keepdim=True)
    v = x.var(dim=axis, keepdim=True, unbiased=False)
    return (x - m) / torch.sqrt(v + eps)
def _scatter_add(tgt, idx, src, axis=0):
    return tgt.clone().index_add_(axis, idx, src)
def _segment_sum(src, seg, n):
    out = torch.zeros((n,) + src.shape[1:], dtype=src.dtype)
    return out.index_add_(0, seg, src)
def _pad(x, pw):
    flat = tuple(v for pair in reversed(pw) for v in pair)
    return torch.nn.functional.pad(x, flat)

kernel_name = 'standalone__mixer_channel_mlp__prompt'

def setup_inputs():

    _w = (lambda a: (lambda t: t.to(torch.bfloat16) if t.is_floating_point() else t)(torch.as_tensor(a)))
    B, S, D, F = 1, 2048, 512, 1792
    return {
        "x": _w((lambda *s: torch.randn(*s, dtype=torch.bfloat16) * 0.05)(B, S, D)),
        "w1": _w((lambda *s: torch.randn(*s, dtype=torch.bfloat16) * 0.8)(D, F) * (D ** -0.5)),
        "b1": _w((lambda *s: torch.randn(*s, dtype=torch.bfloat16) * 0.4)(F)),
        "w2": _w((lambda *s: torch.randn(*s, dtype=torch.bfloat16) * 0.05)(F, D) * (F ** -0.5)),
        "b2": _w((lambda *s: torch.randn(*s, dtype=torch.bfloat16) * 0.05)(D)),
    }

def reference(x, w1, b1, w2, b2):
    y = _layernorm(x, axis=-1)
    h = _gelu(torch.einsum("bsd,df->bsf", y, w1) + b1)
    return torch.einsum("bsf,fd->bsd", h, w2) + b2
```

```python
HEADER = open('standalone__mixer_channel_mlp__prompt.s.ref').read().split('; Override launch')[0]
KNAME = 'standalone__mixer_channel_mlp__prompt_kernel'

class Asm:
    def __init__(self):
        self.lines = []
        self.nlab = 0
    def __call__(self, s):
        for l in s.strip('\n').split('\n'):
            self.lines.append('    ' + l.strip() if not l.strip().endswith(':') else l.strip())
    def label(self, base='L'):
        self.nlab += 1
        return f'{base}_{self.nlab}'
    def text(self):
        return '\n'.join(self.lines) + '\n'

def kernel_text(name, body, vgpr, sgpr=102, accum=None):
    if accum is None:
        accum = min(256, (vgpr + 3) // 4 * 4)
    t = f'.globl {name}\n.p2align 8\n.type {name},@function\n{name}:\n{body}    s_endpgm\n'
    d = (f'.p2align 6\n.amdhsa_kernel {name}\n  .amdhsa_next_free_vgpr {vgpr}\n  .amdhsa_next_free_sgpr {sgpr}\n'
         f'  .amdhsa_accum_offset {accum}\n  .amdhsa_group_segment_fixed_size 0\n  .amdhsa_kernarg_size 64\n'
         f'  .amdhsa_user_sgpr_count 2\n  .amdhsa_user_sgpr_kernarg_segment_ptr 1\n  .amdhsa_system_sgpr_workgroup_id_x 1\n'
         f'.end_amdhsa_kernel\n')
    return t, d

def make_file(kernels, launches):
    s = HEADER
    if len(launches) == 1 and launches[0][0] == KNAME:
        _, g, b, l = launches[0]
        s += f'; @launch grid=({g},1,1) block=({b},1,1) lds={l}\n'
    else:
        for n, g, b, l in launches:
            s += f'; @launch kernel={n} grid=({g},1,1) block=({b},1,1) lds={l}\n'
    s += '.amdgcn_target "amdgcn-amd-amdhsa--gfx950"\n.text\n'
    ds = ''
    for (n, body, v, sg, acc) in kernels:
        t, d = kernel_text(n, body, v, sg, acc)
        s += t
        ds += d
    s += '.section .rodata,"a"\n' + ds
    return s

def stamp_setup(a, nst, wg='s2'):
    a(f'''
    s_mul_i32 s92, {wg}, {nst*8}
    s_add_u32 s90, s90, s92
    s_addc_u32 s91, s91, 0
    s_add_u32 s90, s90, 0x8000000
    s_addc_u32 s91, s91, 0
    ''')
def stamp(a, i, vt0='v250', vt1='v251', vz='v252'):
    n0 = int(vt0[1:])
    a(f'''
    s_memrealtime s[94:95]
    s_waitcnt lgkmcnt(0)
    v_mov_b32 {vt0}, s94
    v_mov_b32 {vt1}, s95
    v_mov_b32 {vz}, 0
    global_store_dwordx2 {vz}, v[{n0}:{n0+1}], s[90:91] offset:{i*8}
    ''')

def stamp_s(a, i, base=60):
    a(f's_memrealtime s[{base+2*i}:{base+2*i+1}]')
def stamp_flush(a, nst, base=60, vt='v250', vz='v252'):
    n0 = int(vt[1:])
    a('s_waitcnt lgkmcnt(0)')
    a(f'v_mov_b32 {vz}, 0')
    for i in range(nst):
        a(f'''
        v_mov_b32 v{n0}, s{base+2*i}
        v_mov_b32 v{n0+1}, s{base+2*i+1}
        global_store_dwordx2 {vz}, v[{n0}:{n0+1}], s[90:91] offset:{i*8}
        s_nop 1
        ''')
```

```python
import sys, struct
from asmlib import *

def f32(x): return '0x%08x' % struct.unpack('<I', struct.pack('<f', x))[0]
LOG2E = 1.4426950408889634
C0 = 0.7978845608028654
K1C = -2.0 * C0 * LOG2E
K3C = K1C * 0.044715

H_G, H_WM, H_MB, H_KH, H_ST, H_J = 458752, 229376, 114688, 57344, 28672, 2048
FLAG_BASE = 8 << 20
WS_SIZE = 16 << 20
SLOT = 32768
def unit_addr(u): return (98304 + 16384 * u) % 163840

def vr(b, n): return f'v[{b}:{b+n-1}]'

def gen(stamps=False, D=7, rot='xj', force_slow=False):
    a = Asm()
    NST = 12
    sWAVE, sG, sJ, sR, sC = 's3', 's4', 's5', 's6', 's7'
    X, W1, W2, WS, OUT, DBG, B1, B2 = 's[8:11]', 's[12:15]', 's[16:19]', 's[20:23]', 's[24:27]', 's[28:31]', 's[32:35]', 's[36:39]'
    sK0, sXCC, sHW = 's40', 's41', 's42'
    sT0, sT1, sT2, sT3 = 's43', 's44', 's45', 's46'
    sXOFF, sW1OFF, sW2OFF, sFLG, sHB, sFAST, sM0B, sKAP = 's47', 's48', 's49', 's50', 's51', 's52', 's53', 's54'
    sMASK, sONES, sSPIN = 's55', 's56', 's57'
    sWM, sWN = 's58', 's59'
    def st(i):
        if stamps: a(f's_memrealtime s[{64+2*i}:{65+2*i}]')
    def st_flush(idx):
        if not stamps: return
        a('s_waitcnt lgkmcnt(0)')
        a('v_mov_b32 v250, 0')
        for i in idx:
            a(f'v_mov_b32 v252, s{64+2*i}')
            a(f'v_mov_b32 v253, s{65+2*i}')
            a(f'global_store_dwordx2 v250, v[252:253], s[90:91] offset:{i*8}')
            a('s_nop 1')

    a(f'''
    s_cmp_ge_u32 s2, 256
    s_cbranch_scc1 L_end
    s_load_dwordx16 s[64:79], s[0:1], 0
    v_lshrrev_b32 v1, 6, v0
    v_and_b32 v0, 63, v0
    s_and_b32 {sT0}, s2, 7
    v_readfirstlane_b32 {sWAVE}, v1
    s_lshr_b32 {sT1}, s2, 3
    s_lshr_b32 {sT2}, {sT1}, 4
    s_lshl_b32 {sG}, {sT0}, 1
    s_add_u32 {sG}, {sG}, {sT2}
    s_and_b32 {sJ}, {sT1}, 15
    s_mov_b32 {sT3}, {sJ}
    s_cmp_eq_u32 {sJ}, 14
    s_cselect_b32 {sT3}, 11, {sT3}
    s_cmp_eq_u32 {sJ}, 11
    s_cselect_b32 {sT3}, 14, {sT3}
    s_lshr_b32 {sR}, {sT3}, 3
    s_and_b32 {sC}, {sT3}, 7
    s_getreg_b32 {sXCC}, hwreg(HW_REG_XCC_ID, 0, 4)
    s_mov_b32 {sMASK}, 0xffff0000
    s_lshl_b32 {sFLG}, {sG}, 10
    s_add_u32 {sFLG}, {sFLG}, {FLAG_BASE}
    ''')
    if rot == 'none': a(f's_mov_b32 {sK0}, 0')
    elif rot == 'x': a(f's_mov_b32 {sK0}, {sT0}')
    elif rot == 'xj':
        a(f's_add_u32 {sK0}, {sT0}, {sJ}')
    elif rot == 'xjg':
        a(f's_add_u32 {sK0}, {sT0}, {sJ}')
        a(f's_lshl_b32 {sT2}, {sT2}, 2')
        a(f's_add_u32 {sK0}, {sK0}, {sT2}')
    a(f's_and_b32 {sK0}, {sK0}, 7')
    a(f'''
    s_mov_b32 s10, 2097152
    s_mov_b32 s11, 0x20000
    s_mov_b32 s14, 1835008
    s_mov_b32 s15, 0x20000
    s_mov_b32 s18, 1835008
    s_mov_b32 s19, 0x20000
    s_mov_b32 s22, {WS_SIZE}
    s_mov_b32 s23, 0x20000
    s_mov_b32 s26, 2097152
    s_mov_b32 s27, 0x20000
    s_mov_b32 s30, 256
    s_mov_b32 s31, 0x20000
    s_mov_b32 s34, 3584
    s_mov_b32 s35, 0x20000
    s_mov_b32 s38, 1024
    s_mov_b32 s39, 0x20000
    s_cmp_lt_u32 {sWAVE}, 4
    s_cbranch_scc1 L_comp
    ''')
    def srd_fill():
        a('''
        s_waitcnt lgkmcnt(0)
        s_mov_b64 s[8:9], s[64:65]
        s_mov_b64 s[12:13], s[66:67]
        s_mov_b64 s[32:33], s[68:69]
        s_mov_b64 s[16:17], s[70:71]
        s_mov_b64 s[36:37], s[72:73]
        s_mov_b64 s[24:25], s[74:75]
        s_mov_b64 s[28:29], s[76:77]
        s_mov_b64 s[20:21], s[78:79]
        ''')
        if stamps:
            a('s_mov_b64 s[90:91], s[78:79]')
            stamp_setup(a, NST)

    vB2raw, vB2f, vFA0, vFA1, vOUTO = 232, 236, 244, 245, 246
    def b2_load():
        a(f'''
        v_and_b32 v{vFA0}, 7, v0
        v_lshlrev_b32 v{vOUTO}, 4, v{vFA0}
        s_lshl_b32 {sT0}, {sC}, 7
        buffer_load_dwordx4 {vr(vB2raw,4)}, v{vOUTO}, {B2}, {sT0} offen
        ''')
    def final_setup():
        for i in range(4):
            a(f'v_lshlrev_b32 v{vB2f+2*i}, 16, v{vB2raw+i}')
            a(f'v_and_b32 v{vB2f+2*i+1}, {sMASK}, v{vB2raw+i}')
        a(f'''
        v_lshrrev_b32 v{vFA1}, 3, v0
        s_lshl_b32 {sT0}, {sWAVE}, 3
        v_add_u32 v{vFA1}, {sT0}, v{vFA1}              ; row
        v_lshl_add_u32 v{vOUTO}, v{vFA1}, 10, v{vOUTO}
        v_and_b32 v{vFA0}, 7, v0
        v_lshlrev_b32 v{vFA0}, 1, v{vFA0}               ; chunk
        v_and_b32 v{vB2raw}, 15, v{vFA1}
        v_xor_b32 v{vFA0}, v{vFA0}, v{vB2raw}
        v_lshlrev_b32 v{vFA0}, 4, v{vFA0}
        v_lshl_add_u32 v{vFA0}, v{vFA1}, 8, v{vFA0}
        v_xor_b32 v{vFA1}, 16, v{vFA0}
        ''')

    vX, vW1, vW2 = 2, 6, 10
    vCA, vCA2 = 14, 18
    vAUG = 22
    vCS = 26
    vBIAS = 30
    vRD = 32
    vU = 48
    vLIN = 64
    vSTG = 128
    a(f'''
    s_sub_u32 {sHW}, {sWAVE}, 4
    v_lshrrev_b32 v48, 3, v0          ; l>>3
    v_lshrrev_b32 v49, 4, v0          ; l>>4
    v_and_b32 v50, 7, v0
    v_and_b32 v51, 15, v0
    ''')
    for i in range(4):
        a(f'''
        v_add_u32 v52, {(4*i)&7}, v49
        v_xor_b32 v52, v52, v50
        v_lshlrev_b32 v52, 4, v52
        v_lshl_add_u32 v52, v48, 10, v52
        v_add_u32 v{vX+i}, {7*1024*i}, v52
        ''')
    a(f'v_mul_u32_u24 v53, 3584, v49')
    for i in range(4):
        a(f'''
        v_or_b32 v52, {(i>>1)<<2}, v49
        v_lshlrev_b32 v52, 1, v52
        v_xor_b32 v52, v52, v51
        v_lshl_add_u32 v52, v52, 4, v53
        v_add_u32 v{vW1+i}, {(4*3584-1024)*i}, v52
        ''')
    a(f'''
    s_lshl_b32 {sXOFF}, {sG}, 17
    s_lshl_b32 {sT0}, {sHW}, 15
    s_add_u32 {sXOFF}, {sXOFF}, {sT0}
    s_mul_i32 {sW1OFF}, {sHW}, {16*3584}
    s_lshl_b32 {sT0}, {sJ}, 8
    s_add_u32 {sW1OFF}, {sW1OFF}, {sT0}
    s_lshl_b32 {sM0B}, {sHW}, 12
    s_mov_b32 {sKAP}, {sK0}
    ''')
    srd_fill()
    def dma_stage_ops(s):
        slot = (s % 3) * SLOT
        g = []
        pre = f'''s_lshl_b32 {sT0}, {sKAP}, 7
        s_add_u32 {sT0}, {sT0}, {sXOFF}
        s_add_u32 m0, {sM0B}, {slot}
        s_mul_i32 {sT1}, {sKAP}, {64*3584}
        '''
        for i in range(4):
            g.append((pre if i == 0 else '') + f'buffer_load_dwordx4 v{vX+i}, {X}, {sT0} offen offset:{1024*i} lds')
        pre = f'''s_add_u32 m0, {sM0B}, {slot+16384}
        s_add_u32 {sT1}, {sT1}, {sW1OFF}
        '''
        for i in range(4):
            post = f'''
            s_add_u32 {sKAP}, {sKAP}, 1
            s_and_b32 {sKAP}, {sKAP}, 7''' if i == 3 else ''
            g.append((pre if i == 0 else '') + f'buffer_load_dwordx4 v{vW1+i}, {W1}, {sT1} offen offset:{1024*i} lds' + post)
        return g
    def w2_unit_ops(u):
        stage, uu = divmod(u, 7)
        goff = (256 * uu + 32 * stage) * 1024
        g = []
        if u <= 8:
            pre = f'''s_add_u32 m0, {sM0B}, {unit_addr(u)}
            s_add_u32 {sT2}, {sW2OFF}, {goff}
            '''
            for i in range(4):
                g.append((pre if i == 0 else '') + f'buffer_load_dwordx4 v{vW2+i}, {W2}, {sT2} offen offset:{1024*i} lds')
        else:
            pre = f's_add_u32 {sT2}, {sW2OFF}, {goff}\n'
            for i in range(4):
                r = vSTG + 16 * (u - 9) + 4 * i
                g.append((pre if i == 0 else '') + f'buffer_load_dwordx4 {vr(r,4)}, v{vW2+i}, {W2}, {sT2} offen offset:{1024*i}')
        return g
    a(f'''
    s_cmp_ge_u32 {sJ}, 14
    s_cbranch_scc1 L_hsetup
    ''')
    for s in (0, 1):
        for o in dma_stage_ops(s): a(o)
    a('L_hsetup:')
    for i in range(4):
        if i == 0:
            a(f'''
            v_lshlrev_b32 v52, 1, v49
            v_xor_b32 v52, v52, v50
            v_lshlrev_b32 v52, 4, v52
            v_lshl_add_u32 v{vW2}, v48, 10, v52
            ''')
        else:
            a(f'v_add_u32 v{vW2+i}, {7*1024*i}, v{vW2}')
    a(f'''
    s_lshl_b32 {sW2OFF}, {sHW}, 16
    s_lshl_b32 {sT0}, {sC}, 7
    s_add_u32 {sW2OFF}, {sW2OFF}, {sT0}
    v_lshlrev_b32 v{vLIN}, 4, v0
    v_add_u32 v{vLIN}, {sM0B}, v{vLIN}
    ''')
    b2_load()
    a(f'''
    s_cmp_ge_u32 {sJ}, 14
    s_cbranch_scc1 L_hspare
    ''')
    a(f'''
    v_lshrrev_b32 v54, 5, v0              ; hh
    v_and_b32 v55, 31, v0                 ; cg
    v_lshrrev_b32 v56, 1, v55             ; chunk
    v_and_b32 v57, 1, v55
    v_lshlrev_b32 v57, 3, v57             ; (cg&1)*8
    v_lshl_add_u32 v58, v54, 11, v57
    s_add_u32 {sT0}, {sM0B}, 16384
    v_add_u32 v58, {sT0}, v58
    v_lshlrev_b32 v59, 3, v54             ; (hh<<2)<<1
    ''')
    for i in range(4):
        a(f'''
        v_or_b32 v52, {i<<1}, v59
        v_xor_b32 v52, v52, v56
        v_lshl_add_u32 v{vCA+i}, v52, 4, v58
        v_add_u32 v{vCA2+i}, 65536, v{vCA+i}
        ''')
    a(f'''
    v_lshl_add_u32 v58, v54, 10, v57
    s_lshl_b32 {sT0}, {sHW}, 11
    s_add_u32 {sT0}, {sT0}, {65536+16384}
    v_add_u32 v58, {sT0}, v58
    s_and_b32 {sT1}, {sHW}, 1
    s_lshl_b32 {sT1}, {sT1}, 3
    ''')
    for p in range(4):
        a(f'''
        s_or_b32 {sT2}, {sT1}, {p<<1}
        v_xor_b32 v52, {sT2}, v56
        v_lshl_add_u32 v52, v52, 4, v58
        v_add_u32 v{vAUG+p}, {256*p}, v52
        ''')
    a(f'''
    v_lshlrev_b32 v52, 3, v0
    v_lshl_add_u32 v52, v54, 16, v52
    s_lshl_b32 {sT0}, {sHW}, 16
    s_lshl_b32 {sT1}, {sJ}, 8
    s_add_u32 {sT0}, {sT0}, {sT1}
    v_add_u32 v52, {sT0}, v52
    buffer_load_dwordx2 {vr(vBIAS,2)}, v52, {B1}, 0 offen
    v_mov_b32 v{vCS}, 0
    v_mov_b32 v{vCS+1}, 0
    v_mov_b32 v{vCS+2}, 0
    v_mov_b32 v{vCS+3}, 0
    s_waitcnt vmcnt(10)
    s_barrier
    ''')
    for s in range(8):
        if s + 2 <= 7: ops = dma_stage_ops(s + 2)
        else: ops = w2_unit_ops(2 * (s - 6)) + w2_unit_ops(2 * (s - 6) + 1)
        slot = s % 3
        base = vCA2 if slot == 2 else vCA
        so = 0 if slot == 2 else slot * SLOT
        for i in range(8):
            a(f'ds_read_b64 {vr(vRD+2*i,2)}, v{base+(i&3)} offset:{so+256*i}')
        for i in range(8):
            a(ops[i])
            a(f's_waitcnt lgkmcnt({7-i})')
            u = vU + 4 * (i & 3)
            a(f'''
            v_lshlrev_b32 v{u}, 16, v{vRD+2*i}
            v_and_b32 v{u+1}, {sMASK}, v{vRD+2*i}
            v_lshlrev_b32 v{u+2}, 16, v{vRD+2*i+1}
            v_and_b32 v{u+3}, {sMASK}, v{vRD+2*i+1}
            v_pk_add_f32 {vr(vCS,2)}, {vr(vCS,2)}, {vr(u,2)}
            v_pk_add_f32 {vr(vCS+2,2)}, {vr(vCS+2,2)}, {vr(u+2,2)}
            ''')
        if s < 7:
            a('s_waitcnt vmcnt(8)')
            a('s_barrier')
    pH, pM, pL = 48, 50, 52
    t0 = 54
    def split(dst):
        a(f'''
        v_cvt_pk_bf16_f32 v{dst}, v{vCS}, v{vCS+1}
        v_cvt_pk_bf16_f32 v{dst+1}, v{vCS+2}, v{vCS+3}
        ''')
    def resid(src):
        a(f'''
        v_lshlrev_b32 v{t0}, 16, v{src}
        v_and_b32 v{t0+1}, {sMASK}, v{src}
        v_lshlrev_b32 v{t0+2}, 16, v{src+1}
        v_and_b32 v{t0+3}, {sMASK}, v{src+1}
        v_pk_add_f32 {vr(vCS,2)}, {vr(vCS,2)}, {vr(t0,2)} neg_lo:[0,1] neg_hi:[0,1]
        v_pk_add_f32 {vr(vCS+2,2)}, {vr(vCS+2,2)}, {vr(t0+2,2)} neg_lo:[0,1] neg_hi:[0,1]
        ''')
    a(f'ds_write_b64 v{vAUG+3}, {vr(vBIAS,2)}')
    split(pH); a(f'ds_write_b64 v{vAUG}, {vr(pH,2)}'); resid(pH)
    split(pM); a(f'ds_write_b64 v{vAUG+1}, {vr(pM,2)}'); resid(pM)
    split(pL); a(f'ds_write_b64 v{vAUG+2}, {vr(pL,2)}')
    a('s_waitcnt lgkmcnt(0)')
    a('s_barrier')
    a('s_branch L_hpost')
    a('L_hspare:')
    for u in range(4):
        for o in w2_unit_ops(u): a(o)
    a('L_hpost:')
    for u in range(4, 14):
        for o in w2_unit_ops(u): a(o)
    final_setup_done = False
    a('s_waitcnt vmcnt(28)')
    st(8)
    a('s_barrier')
    final_setup()
    def stg_write(u):
        for i in range(4):
            r = vSTG + 16 * (u - 9) + 4 * i
            ad = unit_addr(u) + 1024 * i
            a(f'ds_write_b128 v{vLIN+1}, {vr(r,4)} offset:{ad-81920}')
    a(f'v_add_u32 v{vLIN+1}, 81920, v{vLIN}')
    a('s_waitcnt vmcnt(16)')
    stg_write(9)
    a('s_waitcnt vmcnt(0) lgkmcnt(0)')
    st(9)
    a('s_barrier')
    for u in range(10, 13): stg_write(u)
    a(f'v_add_u32 v{vLIN+1}, 16384, v{vLIN+1}')
    for i in range(4):
        r = vSTG + 16 * 4 + 4 * i
        a(f'ds_write_b128 v{vLIN+1}, {vr(r,4)} offset:{unit_addr(13)+1024*i-81920-16384}')
    a('s_waitcnt lgkmcnt(0)')
    a('s_barrier')
    a('s_branch L_final')

    a('L_comp:')
    aB, aB2 = 2, 4
    aA, aA2 = 6, 10
    vHO = 14
    vPOLL = 15
    vREC = 16
    vKC = 20
    vS = 28
    vBAUG = 36
    vTMP = 52
    ACC = 64
    FR = 128
    GT = 192
    a(f'''
    s_lshr_b32 {sWM}, {sWAVE}, 1
    s_and_b32 {sWN}, {sWAVE}, 1
    v_lshlrev_b32 v{vHO}, 4, v0
    s_cmp_lg_u32 {sWAVE}, 0
    s_cbranch_scc1 L_c_nostat0
    v_lshrrev_b32 v52, 3, v0
    v_and_b32 v53, 7, v0
    v_lshlrev_b32 v53, 4, v53
    v_lshl_add_u32 v53, v52, 10, v53
    s_lshl_b32 {sT0}, {sG}, 17
    s_lshl_b32 {sT1}, {sJ}, 13
    s_add_u32 {sT3}, {sT0}, {sT1}
    s_waitcnt lgkmcnt(0)
    s_mov_b64 s[8:9], s[64:65]
    ''')
    for i in range(8):
        a(f'buffer_load_dwordx4 {vr(FR+4*i,4)}, v53, {X}, {sT3} offen offset:{128*i}')
    a('L_c_nostat0:')
    srd_fill()
    st(0)
    b2_load()
    a(f'''
    v_and_b32 v54, 15, v0                 ; m / i
    v_lshrrev_b32 v55, 4, v0              ; q
    v_lshrrev_b32 v56, 1, v54             ; (m>>1)&7
    v_xor_b32 v56, v56, v55
    v_lshlrev_b32 v56, 4, v56
    v_lshl_add_u32 v56, v54, 7, v56       ; m*128 + ((q^z)*16)
    s_lshl_b32 {sT0}, {sWM}, 13
    v_add_u32 v{aB}, {sT0}, v56
    v_xor_b32 v{aB+1}, 64, v{aB}
    v_add_u32 v{aB2}, 65536, v{aB}
    v_add_u32 v{aB2+1}, 65536, v{aB+1}
    v_lshrrev_b32 v57, 2, v54             ; r'
    v_and_b32 v58, 3, v54                 ; c'
    v_and_b32 v59, 1, v55
    v_lshl_or_b32 v59, v59, 2, v57        ; swz = r' | (q&1)<<2
    v_lshl_add_u32 v60, v55, 3, v57       ; row = 8q + r'
    v_lshlrev_b32 v60, 8, v60
    v_lshl_add_u32 v60, v58, 3, v60       ; row*256 + c'*8
    v_add_u32 v60, 16384, v60
    s_lshl_b32 {sT0}, {sWN}, 2
    ''')
    for t in range(4):
        a(f'''
        s_or_b32 {sT1}, {sT0}, {t}
        v_xor_b32 v61, {sT1}, v59
        v_lshl_add_u32 v{aA+t}, v61, 5, v60
        v_add_u32 v{aA2+t}, 65536, v{aA+t}
        ''')
    a(f'''
    s_cmp_lg_u32 {sWAVE}, 0
    s_cbranch_scc1 L_c_nostat1
    s_mov_b32 {sONES}, 0x3f803f80
    ''')
    for i in range(8): a(f'v_mov_b32 v{GT+i}, 0')
    for i in range(8):
        a(f's_waitcnt vmcnt({8-i})')
        for d in range(4):
            r = FR + 4 * i + d
            a(f'v_dot2_f32_bf16 v{GT+d}, v{r}, {sONES}, v{GT+d}')
            a(f'v_dot2_f32_bf16 v{GT+4+d}, v{r}, v{r}, v{GT+4+d}')
    a(f'''
    s_nop 2
    v_add_f32 v{GT}, v{GT}, v{GT+1}
    v_add_f32 v{GT+2}, v{GT+2}, v{GT+3}
    v_add_f32 v{GT+4}, v{GT+4}, v{GT+5}
    v_add_f32 v{GT+6}, v{GT+6}, v{GT+7}
    v_add_f32 v{GT}, v{GT}, v{GT+2}
    v_add_f32 v{GT+4}, v{GT+4}, v{GT+6}
    s_nop 1
    ''')
    for mode in ('quad_perm:[1,0,3,2]', 'quad_perm:[2,3,0,1]', 'row_half_mirror'):
        a(f'''
        v_add_f32_dpp v{GT}, v{GT}, v{GT} {mode} row_mask:0xf bank_mask:0xf
        v_add_f32_dpp v{GT+4}, v{GT+4}, v{GT+4} {mode} row_mask:0xf bank_mask:0xf
        s_nop 1
        ''')
    a(f'''
    v_mul_f32 v{GT}, {f32(1.0/512)}, v{GT}            ; mean
    v_mul_f32 v{GT+4}, {f32(1.0/512)}, v{GT+4}        ; E[x^2]
    v_fma_f32 v{GT+4}, -v{GT}, v{GT}, v{GT+4}
    v_max_f32 v{GT+4}, 0, v{GT+4}                     ; var
    v_cvt_pk_bf16_f32 v{GT+4}, v{GT+4}, v{GT+4}
    v_and_b32 v{GT+4}, {sMASK}, v{GT+4}
    v_add_f32 v{GT+4}, {f32(1e-5)}, v{GT+4}
    v_cvt_pk_bf16_f32 v{GT+4}, v{GT+4}, v{GT+4}
    v_and_b32 v{GT+4}, {sMASK}, v{GT+4}
    v_sqrt_f32 v{GT+4}, v{GT+4}
    v_lshrrev_b32 v52, 3, v0
    v_cvt_pk_bf16_f32 v{GT}, -v{GT}, v{GT+4}
    s_lshl_b32 {sT0}, {sJ}, 5
    s_add_u32 {sT0}, {sT0}, 512
    v_lshlrev_b32 v53, 2, v52
    v_add_u32 v53, {sT0}, v53
    s_lshl_b32 {sT1}, {sJ}, 2
    v_lshlrev_b32 v54, 6, v52
    v_add_u32 v54, {sT1}, v54
    v_and_b32 v55, 1, v0
    v_cmp_eq_u32 vcc, 1, v55
    s_nop 1
    v_cndmask_b32 v53, v53, v54, vcc
    v_cndmask_b32 v{GT}, v{GT}, 0, vcc
    s_mov_b32 exec_lo, 0x03030303
    s_mov_b32 exec_hi, 0x03030303
    buffer_store_dword v{GT}, v53, {WS}, {sFLG} offen sc1
    s_mov_b64 exec, -1
    L_c_nostat1:
    s_or_b32 {sT0}, {sXCC}, 0x80
    v_mov_b32 v{GT+1}, {sT0}
    s_lshl_b32 {sT0}, {sG}, 4
    s_add_u32 {sT0}, {sT0}, {sJ}
    v_mov_b32 v{GT+2}, {sT0}
    s_mov_b32 {sSPIN}, 0x40000
    ''')
    def flag_debug():
        lab = a.label('L_nf')
        a(f'''
        s_cmp_lg_u32 {sWAVE}, 0
        s_cbranch_scc1 {lab}
        s_waitcnt vmcnt(0)
        s_mov_b64 exec, 1
        buffer_store_byte v{GT+1}, v{GT+2}, {DBG}, 0 offen sc1
        s_mov_b64 exec, -1
        {lab}:
        ''')
    a(f'''
    v_and_b32 v{vTMP}, 3, v0
    v_lshlrev_b32 v{vTMP}, 2, v{vTMP}
    s_lshl_b32 {sT0}, {sG}, 4
    v_add_u32 v{vTMP}, {sT0}, v{vTMP}
    s_mul_i32 {sT1}, {sXCC}, 0x01010101
    s_or_b32 {sONES}, {sT1}, 0x80808080
    ''')
    def poll_debug_issue():
        a(f'buffer_load_dword v{vPOLL}, v{vTMP}, {DBG}, 0 offen sc1')
    def poll_debug_check():
        l1, l2 = a.label('L_pd'), a.label('L_pd')
        a(f'''
        {l1}:
        s_waitcnt vmcnt(0)
        v_and_b32 v{vTMP+1}, 0x80808080, v{vPOLL}
        v_cmp_ne_u32 vcc, 0x80808080, v{vTMP+1}
        s_cbranch_vccz {l2}
        s_cmp_eq_u32 {sSPIN}, 0
        s_cbranch_scc1 {l2}
        s_sub_u32 {sSPIN}, {sSPIN}, 1
        s_sleep 4
        buffer_load_dword v{vPOLL}, v{vTMP}, {DBG}, 0 offen sc1
        s_branch {l1}
        {l2}:
        v_cmp_ne_u32 vcc, {sONES}, v{vPOLL}
        s_cmp_eq_u64 vcc, 0
        s_cselect_b32 {sFAST}, {0 if force_slow else 1}, 0
        ''')
    a(f'''
    s_cmp_lt_u32 {sJ}, 14
    s_cbranch_scc1 L_c_reg
    ''')
    flag_debug()
    a('s_sleep 40')
    poll_debug_issue()
    poll_debug_check()
    a('s_branch L_c_p2')
    a('L_c_reg:')

    def reads(s, ks, fs, aug=False):
        slot = s % 3
        so = 0 if slot == 2 else slot * SLOT
        bB = aB2 if slot == 2 else aB
        bA = aA2 if slot == 2 else aA
        fb = FR + 32 * fs
        rb = [f'ds_read_b128 {vr(fb+4*mt,4)}, v{bB+ks} offset:{so+2048*mt}' for mt in range(4)]
        ra = [[f'ds_read_b64_tr_b16 {vr(fb+16+4*t+2*h,2)}, v{bA+t} offset:{so+8192*ks+1024*h}' for h in range(2)] for t in range(4)]
        if aug: return ra[0] + ra[1] + ra[2] + ra[3]
        return ra[0] + [rb[0], rb[1], rb[2], rb[3]] + ra[1] + ra[2] + ra[3]
    def mfmas(fs, first=False, aug=False):
        fb = FR + 32 * fs
        out = []
        for t in range(4):
            for mt in range(4):
                d = ACC + 4 * (4 * mt + t)
                b = vr(vBAUG + 4 * mt, 4) if aug else vr(fb + 4 * mt, 4)
                c = '0' if first else vr(d, 4)
                out.append(f'v_mfma_f32_16x16x32_bf16 {vr(d,4)}, {vr(fb+16+4*t,4)}, {b}, {c}')
        return out
    a('s_barrier')
    st(1)
    for o in reads(0, 0, 0): a(o)
    for s in range(8):
        if s == 1: flag_debug()
        if s == 4: poll_debug_issue()
        if s == 6:
            poll_debug_check()
            a(f'''
            v_and_b32 v{vTMP+1}, 15, v0
            v_lshlrev_b32 v{vTMP+1}, 2, v{vTMP+1}
            s_lshl_b32 {sT0}, {sWM}, 8
            s_add_u32 {sT0}, {sT0}, {sFLG}
            ''')
            for mt in range(4):
                a(f'buffer_load_dword v{vREC+mt}, v{vTMP+1}, {WS}, {sT0} offen offset:{512+64*mt} sc1')
        a('s_waitcnt lgkmcnt(0)')
        rd = reads(s, 1, 1)
        for i, m in enumerate(mfmas(0, first=(s == 0))):
            a(m)
            if i < len(rd): a(rd[i])
        a('s_waitcnt lgkmcnt(0)')
        ms = mfmas(1)
        extra = []
        if s == 7:
            extra.append('s_waitcnt vmcnt(0)')
            extra.append(f's_mov_b32 {sT0}, 0x01000100')
            for mt in range(4):
                extra += [f'v_and_b32 v{vS+2*mt}, {sMASK}, v{vREC+mt}',
                          f'v_rcp_f32 v{vS+2*mt+1}, v{vS+2*mt}',
                          f'v_perm_b32 v{vBAUG+4*mt}, v{vREC+mt}, v{vREC+mt}, {sT0}',
                          f'v_mov_b32 v{vBAUG+4*mt+1}, v{vREC+mt}']
        for i in range(8):
            a(ms[i])
            for e in extra[2*i+ (0 if i==0 else 2):2*i+4]: a(e)
        a('s_barrier')
        rd = reads(s + 1, 0, 0, aug=(s == 7))
        extra = []
        if s == 7:
            for mt in range(4):
                extra += [f'v_mov_b32 v{vBAUG+4*mt+2}, v{vBAUG+4*mt}',
                          f'v_mov_b32 v{vBAUG+4*mt+3}, v{vREC+mt}']
        k = 0
        for i in range(8, 16):
            a(ms[i])
            n = 2 if (i - 8) < len(rd) - 8 else 1
            for o in rd[k:k+n]: a(o)
            k += n
            if extra: a(extra[i-8])
        assert k >= len(rd)
    st(2)
    a('s_waitcnt lgkmcnt(0)')
    extra = []
    for mt in range(4):
        rs = vS + 2 * mt + 1
        extra += [f'v_mul_f32 v{vKC+2*mt}, {f32(K1C)}, v{rs}',
                  f'v_mul_f32 v{vKC+2*mt+1}, v{rs}, v{rs}',
                  f'v_mul_f32 v{rs}, {f32(K3C)}, v{rs}',
                  f'v_mul_f32 v{vKC+2*mt+1}, v{vKC+2*mt+1}, v{rs}']
    for i, m in enumerate(mfmas(0, aug=True)):
        a(m); a(extra[i])
    a(f'''
    s_mul_i32 {sHB}, {sG}, {H_G}
    s_mul_i32 {sT0}, {sWM}, {H_WM}
    s_add_u32 {sHB}, {sHB}, {sT0}
    s_mul_i32 {sT0}, {sWN}, {H_KH}
    s_add_u32 {sHB}, {sHB}, {sT0}
    s_lshl_b32 {sT0}, {sJ}, 11
    s_add_u32 {sHB}, {sHB}, {sT0}
    s_lshl_b32 {sT0}, {sWAVE}, 7
    s_lshl_b32 {sT1}, {sJ}, 2
    s_add_u32 {sT0}, {sT0}, {sT1}
    v_mov_b32 v{vTMP+2}, {sT0}
    v_mov_b32 v{vTMP+3}, 1
    ''')
    def store2(ins):
        l1, l2 = a.label('L_s'), a.label('L_s')
        a(f'''
        s_cmp_eq_u32 {sFAST}, 0
        s_cbranch_scc1 {l1}
        {ins}
        s_branch {l2}
        {l1}:
        {ins} sc1
        {l2}:
        ''')
    def flag_h(stage, n):
        a(f's_waitcnt vmcnt({n})')
        a('s_mov_b64 exec, 1')
        store2(f'buffer_store_dword v{vTMP+3}, v{vTMP+2}, {WS}, {sFLG} offen offset:{64*stage}')
        a('s_mov_b64 exec, -1')
    idx = 0
    for stg in range(2):
        for mt in range(4):
            A = ACC + 16 * mt + 8 * stg
            T = GT + 8 * (idx & 1)
            O = GT + 16 + 4 * (idx & 3)
            P = lambda r: vr(r, 2)
            kc, s_ = vr(vKC + 2 * mt, 2), vr(vS + 2 * mt, 2)
            for i in range(0, 8, 2): a(f'v_pk_mul_f32 {P(T+i)}, {P(A+i)}, {P(A+i)}')
            for i in range(0, 8, 2): a(f'v_pk_fma_f32 {P(T+i)}, {P(T+i)}, {kc}, {kc} op_sel:[0,1,0] op_sel_hi:[1,1,0]')
            for i in range(0, 8, 2): a(f'v_pk_mul_f32 {P(T+i)}, {P(A+i)}, {P(T+i)}')
            for i in range(8): a(f'v_exp_f32 v{T+i}, v{T+i}')
            for i in range(0, 8, 2): a(f'v_pk_fma_f32 {P(T+i)}, {P(T+i)}, {s_}, {s_} op_sel_hi:[1,0,0]')
            for i in range(8): a(f'v_rcp_f32 v{T+i}, v{T+i}')
            for i in range(0, 8, 2): a(f'v_pk_mul_f32 {P(T+i)}, {P(A+i)}, {P(T+i)}')
            for i in range(4): a(f'v_cvt_pk_bf16_f32 v{O+i}, v{T+2*i}, v{T+2*i+1}')
            a(f's_add_u32 {sT0}, {sHB}, {(mt>>1)*H_MB + stg*H_ST}')
            store2(f'buffer_store_dwordx4 {vr(O,4)}, v{vHO}, {WS}, {sT0} offen offset:{1024*(mt&1)}')
            idx += 1
            if stg == 1 and mt == 1:
                flag_h(0, 2)
                st(3)
    flag_h(1, 0)
    st(4)
    a('L_c_p2:')
    aW = 2
    ACC2 = 64
    WF = 96
    HR = 128
    vRW = 6
    a(f'''
    v_and_b32 v54, 15, v0
    v_lshrrev_b32 v55, 4, v0              ; q
    v_lshrrev_b32 v57, 2, v54             ; r'
    v_and_b32 v58, 3, v54                 ; c'
    v_lshl_add_u32 v60, v55, 2, v57       ; row = 4q + r'
    v_lshrrev_b32 v59, 1, v60
    v_and_b32 v59, 3, v59                 ; swz2
    v_lshlrev_b32 v60, 7, v60
    v_lshl_add_u32 v60, v58, 3, v60       ; row*128 + c'*8
    s_lshl_b32 {sT0}, {sWN}, 12
    s_add_u32 {sT0}, {sT0}, 98304
    v_add_u32 v60, {sT0}, v60
    ''')
    for dt in range(4):
        a(f'''
        v_xor_b32 v61, {dt}, v59
        v_lshl_add_u32 v{aW+dt}, v61, 5, v60
        ''')
    a(f'''
    v_min_u32 v{vTMP}, 13, v0
    v_lshlrev_b32 v{vTMP}, 2, v{vTMP}
    s_lshl_b32 {sT0}, {sR}, 1
    s_add_u32 {sT0}, {sT0}, {sWN}
    s_lshl_b32 {sT0}, {sT0}, 7
    v_add_u32 v{vTMP}, {sT0}, v{vTMP}
    s_mul_i32 {sHB}, {sG}, {H_G}
    s_mul_i32 {sT0}, {sR}, {H_WM}
    s_add_u32 {sHB}, {sHB}, {sT0}
    s_mul_i32 {sT0}, {sWM}, {H_MB}
    s_add_u32 {sHB}, {sHB}, {sT0}
    s_mul_i32 {sT0}, {sWN}, {H_KH}
    s_add_u32 {sHB}, {sHB}, {sT0}
    ''')
    def poll_h_issue(stage):
        a(f'buffer_load_dword v{vPOLL}, v{vTMP}, {WS}, {sFLG} offen offset:{64*stage} sc1')
    def poll_h_check(stage, n):
        l1, l2 = a.label('L_ph'), a.label('L_ph')
        a(f'''
        s_waitcnt vmcnt({n})
        {l1}:
        v_cmp_eq_u32 vcc, 0, v{vPOLL}
        s_cbranch_vccz {l2}
        s_cmp_eq_u32 {sSPIN}, 0
        s_cbranch_scc1 {l2}
        s_sub_u32 {sSPIN}, {sSPIN}, 1
        s_sleep 1
        buffer_load_dword v{vPOLL}, v{vTMP}, {WS}, {sFLG} offen offset:{64*stage} sc1
        s_waitcnt vmcnt(0)
        s_branch {l1}
        {l2}:
        ''')
    poll_h_issue(0)
    final_setup()
    a(f'''
    s_lshl_b32 {sT0}, {sWN}, 14
    s_lshl_b32 {sT1}, {sWM}, 13
    s_add_u32 {sT0}, {sT0}, {sT1}
    v_lshlrev_b32 v60, 8, v54
    v_add_u32 v60, {sT0}, v60
    v_xor_b32 v59, v55, v54
    ''')
    for dt in range(4):
        a(f'''
        v_xor_b32 v61, {4*dt}, v59
        v_lshl_add_u32 v{vRW+dt}, v61, 4, v60
        ''')
    poll_h_check(0, 0)
    st(5)
    def hload(n):
        r = HR + 8 * (n % D)
        pre = f's_add_u32 {sT3}, {sHB}, {2048*n}\n' if n % 2 == 0 else ''
        o = 2048 * (n % 2)
        return [pre + f'buffer_load_dwordx4 {vr(r,4)}, v{vHO}, {WS}, {sT3} offen offset:{o} sc1',
                f'buffer_load_dwordx4 {vr(r+4,4)}, v{vHO}, {WS}, {sT3} offen offset:{o+1024} sc1']
    cur_base = [98304]
    def wreads(n):
        ad = (98304 + 8192 * n) % 163840
        pre = []
        if not (0 <= ad - cur_base[0] <= 65535 - 8192):
            delta = ad - cur_base[0]
            for dt in range(4):
                pre.append(f'v_add_u32 v{aW+dt}, {delta & 0xffffffff:#x}, v{aW+dt}')
            cur_base[0] = ad
        fb = WF + 16 * (n % 2)
        return pre, [f'ds_read_b64_tr_b16 {vr(fb+4*dt+2*h,2)}, v{aW+dt} offset:{ad-cur_base[0]+2048*h}' for dt in range(4) for h in range(2)]
    q = []
    for n in range(D):
        for o in hload(n): a(o); q.append(n)
        if n == 1: poll_h_issue(1); q.append('p')
    a('s_barrier')
    pre, rd = wreads(0)
    for o in pre + rd: a(o)
    for n in range(28):
        last = max(i for i, x in enumerate(q) if x == n)
        cnt = len(q) - 1 - last
        a(f's_waitcnt vmcnt({cnt}) lgkmcnt(0)')
        q = q[last+1:]
        if n == 0: st(6)
        if n == 8: a('s_barrier')
        if n == 19: a('s_barrier')
        pre, rd = wreads(n + 1) if n + 1 < 28 else ([], [])
        for o in pre: a(o)
        fb = WF + 16 * (n % 2)
        hr = HR + 8 * (n % D)
        i = 0
        for mtp in range(2):
            for dt in range(4):
                d = ACC2 + 4 * (4 * mtp + dt)
                c = '0' if n == 0 else vr(d, 4)
                a(f'v_mfma_f32_16x16x32_bf16 {vr(d,4)}, {vr(fb+4*dt,4)}, {vr(hr+4*mtp,4)}, {c}')
                if i < len(rd): a(rd[i])
                i += 1
        if n + D < 28:
            if n + D == 14:
                assert 'p' not in q
                poll_h_check(1, 63)
            for o in hload(n + D): a(o); q.append(n + D)
    st(7)
    a('s_nop 7')
    for mtp in range(2):
        for dt in range(4):
            d = ACC2 + 4 * (4 * mtp + dt)
            a(f'ds_write_b128 v{vRW+dt}, {vr(d,4)} offset:{4096*mtp}')
    a('s_waitcnt lgkmcnt(0)')
    a('L_final:')
    a('s_barrier')
    R = 208
    a(f'''
    ds_read_b128 {vr(R,4)}, v{vFA0}
    ds_read_b128 {vr(R+8,4)}, v{vFA0} offset:16384
    ds_read_b128 {vr(R+4,4)}, v{vFA1}
    ds_read_b128 {vr(R+12,4)}, v{vFA1} offset:16384
    s_lshl_b32 {sT0}, {sG}, 17
    s_lshl_b32 {sT1}, {sR}, 16
    s_add_u32 {sT0}, {sT0}, {sT1}
    s_lshl_b32 {sT1}, {sC}, 7
    s_add_u32 {sT0}, {sT0}, {sT1}
    s_waitcnt lgkmcnt(0)
    ''')
    for i in range(4): a(f'v_pk_add_f32 {vr(R+2*i,2)}, {vr(R+2*i,2)}, {vr(R+8+2*i,2)}')
    for i in range(4): a(f'v_cvt_pk_bf16_f32 v{R+8+i}, v{R+2*i}, v{R+2*i+1}')
    for i in range(4):
        a(f'v_lshlrev_b32 v{R+2*i}, 16, v{R+8+i}')
        a(f'v_and_b32 v{R+2*i+1}, {sMASK}, v{R+8+i}')
    for i in range(4): a(f'v_pk_add_f32 {vr(R+2*i,2)}, {vr(R+2*i,2)}, {vr(vB2f+2*i,2)}')
    for i in range(4): a(f'v_cvt_pk_bf16_f32 v{R+12+i}, v{R+2*i}, v{R+2*i+1}')
    a(f'buffer_store_dwordx4 {vr(R+12,4)}, v{vOUTO}, {OUT}, {sT0} offen')
    if stamps:
        a('s_waitcnt vmcnt(0)')
        st(10)
        a(f'''
        s_cmp_eq_u32 {sWAVE}, 4
        s_cbranch_scc1 L_sth
        s_cmp_lg_u32 {sWAVE}, 0
        s_cbranch_scc1 L_end
        ''')
        st_flush([0, 1, 2, 3, 4, 5, 6, 7, 10])
        a('s_branch L_end')
        a('L_sth:')
        st_flush([8, 9])
    a('L_end:')
    return make_file([(KNAME, a.text(), 256, 102, 256)], [(KNAME, 256, 512, 163840)])

if __name__ == '__main__':
    names = []
    def g(nm, **kw):
        open(nm + '.s', 'w').write(gen(**kw)); names.append(nm)
    g('k1', stamps=False)
    g('k1s', stamps=True)
    g('k1slow', stamps=True, force_slow=True)
    print(' '.join(names))
```

```python
import sys, struct, re
from asmlib import *

def f32(x): return '0x%08x' % struct.unpack('<I', struct.pack('<f', x))[0]
LOG2E = 1.4426950408889634
C0 = 0.7978845608028654
K1C = -2.0 * C0 * LOG2E
K3C = K1C * 0.044715

H_G, H_WM, H_MB, H_KH, H_ST, H_J = 458752, 229376, 114688, 57344, 28672, 2048
FLAG_BASE = 8 << 20
WS_SIZE = 16 << 20
SLOT = 32768
FL = 147456
ROW = 384
XCH = FL + 4096
RED = 65536
def unit_addr(u): return ((u + 8) % 9) * 16384
def vr(b, n): return f'v[{b}:{b+n-1}]'
def regs_of(tok):
    m = re.match(r'v\[(\d+):(\d+)\]', tok)
    if m: return set(range(int(m.group(1)), int(m.group(2)) + 1))
    m = re.match(r'v(\d+)$', tok)
    return {int(m.group(1))} if m else set()

class LQ:
    def __init__(self, a): self.a, self.q = a, []
    def op(self, ins):
        self.a(ins)
        t = ins.split()
        self.q.append(regs_of(t[1].rstrip(',')) if t[0].startswith('ds_read') else set())
    def count(self, regs):
        idx = [i for i, w in enumerate(self.q) if w & regs]
        if not idx: return None
        n = min(14, len(self.q) - 1 - max(idx))
        self.q = self.q[len(self.q) - n:] if n else []
        return n
    def need(self, regs):
        n = self.count(regs)
        if n is not None: self.a(f's_waitcnt lgkmcnt({n})')
    def drain(self):
        if self.q: self.a('s_waitcnt lgkmcnt(0)')
        self.q = []
    def mfma(self, ins):
        ops = [o.strip() for o in ins.split(None, 1)[1].split(',')]
        self.need(regs_of(ops[1]) | regs_of(ops[2]) | regs_of(ops[3]))
        self.a(ins)

class VQ:
    def __init__(self, a): self.a, self.q = a, []
    def op(self, tag): self.q.append(tag)
    def count(self, tag):
        idx = [i for i, t in enumerate(self.q) if t == tag]
        if not idx: return None
        n = len(self.q) - 1 - max(idx)
        self.q = self.q[len(self.q) - n:] if n else []
        return n
    def need(self, tag):
        n = self.count(tag)
        if n is not None: self.a(f's_waitcnt vmcnt({n})')

def gen(stamps=None, D=8, rot='xj', force_slow=False, hprio=0, cprio=0, hooks=(1, 4, 6), padend=0, outaux='sc1',
        chk=2, ramp=4, earlypoll=False, wb=False, hst=4, cst=0, pfat=5, flagat=6, nof=False, haux='sc1', p2nomfma=False, p2nord=False, p2priv=False, p2w=False):
    a = Asm()
    tail = Asm()
    NST = 12
    sWAVE, sG, sJ, sR, sC = 's3', 's4', 's5', 's6', 's7'
    X, W1, W2, WS, OUT, DBG, B1, B2 = 's[8:11]', 's[12:15]', 's[16:19]', 's[20:23]', 's[24:27]', 's[28:31]', 's[32:35]', 's[36:39]'
    sK0, sXCC, sHW = 's40', 's41', 's42'
    sT0, sT1, sT2, sT3 = 's43', 's44', 's45', 's46'
    sXOFF, sW1OFF, sW2A, sFLG, sHB, sW2B, sM0B, sKAP = 's47', 's48', 's49', 's50', 's51', 's52', 's53', 's54'
    sMASK, sONES, sSPIN = 's55', 's56', 's57'
    sWM, sWN, sEP, sHC = 's58', 's59', 's60', 's61'
    sSEL0, sSEL1, sSEL2, sROW = 's88', 's89', 's94', 's95'
    stamps = stamps or []
    def st(name):
        if name in stamps:
            i = stamps.index(name); a(f's_memrealtime s[{64+2*i}:{65+2*i}]')
        if name + '@' in stamps:
            i = stamps.index(name + '@'); a(f's_memtime s[{64+2*i}:{65+2*i}]')
    def st_flush(pref):
        a('s_waitcnt lgkmcnt(0)')
        a('v_mov_b32 v250, 0')
        for i, n in enumerate(stamps):
            if not n.startswith(pref): continue
            if n.endswith('@'):
                a(f's_sub_u32 s{64+2*i}, s{64+2*i}, s96')
                a(f's_add_u32 s{64+2*i}, s{64+2*i}, s62')
                a(f's_addc_u32 s{65+2*i}, s63, 0')
            a(f'v_mov_b32 v252, s{64+2*i}')
            a(f'v_mov_b32 v253, s{65+2*i}')
            a(f'global_store_dwordx2 v250, v[252:253], s[90:91] offset:{i*8}')
            a('s_nop 1')

    a(f'''
    s_cmp_ge_u32 s2, 256
    s_cbranch_scc1 L_end
    s_load_dwordx16 s[64:79], s[0:1], 0
    s_memrealtime s[62:63]
    ''')
    if stamps: a('s_memtime s[96:97]')
    a(f'''
    v_lshrrev_b32 v1, 6, v0
    v_and_b32 v0, 63, v0
    s_and_b32 {sT0}, s2, 7
    v_readfirstlane_b32 {sWAVE}, v1
    s_lshr_b32 {sT1}, s2, 3
    s_lshr_b32 {sT2}, {sT1}, 4
    s_lshl_b32 {sG}, {sT0}, 1
    s_add_u32 {sG}, {sG}, {sT2}
    s_and_b32 {sJ}, {sT1}, 15
    ''')
    if rot == 'none': a(f's_mov_b32 {sK0}, 0')
    elif rot == 'x': a(f's_mov_b32 {sK0}, {sT0}')
    elif rot == 'j': a(f's_mov_b32 {sK0}, {sJ}')
    elif rot == 'xj': a(f's_add_u32 {sK0}, {sT0}, {sJ}')
    elif rot == 'xjg':
        a(f's_add_u32 {sK0}, {sT0}, {sJ}')
        a(f's_lshl_b32 {sT2}, {sT2}, 2')
        a(f's_add_u32 {sK0}, {sK0}, {sT2}')
    elif rot == 'xg':
        a(f's_lshl_b32 {sT2}, {sT2}, 2')
        a(f's_add_u32 {sK0}, {sT0}, {sT2}')
    vB2raw, vB2f, vFA0, vFA1, vOUTO = 232, 236, 244, 245, 246
    vFLr, vOOB, vFG = 247, 248, 249
    a(f'''
    s_and_b32 {sK0}, {sK0}, 7
    s_mov_b32 s10, 2097152
    s_mov_b32 s11, 0x20000
    s_mul_i32 {sROW}, {sWAVE}, {ROW}
    s_add_u32 {sROW}, {sROW}, {FL}
    v_lshlrev_b32 v{vFG}, 2, v0
    v_add_u32 v{vFG}, {sROW}, v{vFG}
    v_mov_b32 v{vOOB}, 0x7ff00000
    ds_write_b32 v{vFG}, v{vOOB}
    s_cmp_lt_u32 {sWAVE}, 4
    s_cbranch_scc1 L_comp
    ''')
    def common_setup():
        a(f'''
        s_mov_b32 {sT3}, {sJ}
        s_cmp_eq_u32 {sJ}, 14
        s_cselect_b32 {sT3}, 11, {sT3}
        s_cmp_eq_u32 {sJ}, 11
        s_cselect_b32 {sT3}, 14, {sT3}
        s_lshr_b32 {sR}, {sT3}, 3
        s_and_b32 {sC}, {sT3}, 7
        s_mov_b32 {sMASK}, 0xffff0000
        s_mov_b32 {sSPIN}, 0x40000
        s_mov_b64 s[36:37], s[72:73]
        s_mov_b32 s38, 1024
        s_mov_b32 s39, 0x20000
        s_mov_b64 s[24:25], s[74:75]
        s_mov_b32 s26, 2097152
        s_mov_b32 s27, 0x20000
        v_and_b32 v{vFLr}, 3, v0
        v_mul_u32_u24 v{vFLr}, {ROW}, v{vFLr}
        v_add_u32 v{vFLr}, {FL}, v{vFLr}
        ''')
        if stamps:
            a('s_mov_b64 s[90:91], s[78:79]')
            stamp_setup(a, NST)
    def stamps_start():
        if 'c:start' in stamps:
            i = stamps.index('c:start'); a(f's_mov_b64 s[{64+2*i}:{65+2*i}], s[62:63]')
    def b2_load():
        a(f'''
        v_and_b32 v{vFA0}, 7, v0
        v_lshlrev_b32 v{vOUTO}, 4, v{vFA0}
        s_lshl_b32 {sT0}, {sC}, 7
        buffer_load_dwordx4 {vr(vB2raw,4)}, v{vOUTO}, {B2}, {sT0} offen
        ''')
    def final_setup():
        for i in range(4):
            a(f'v_lshlrev_b32 v{vB2f+2*i}, 16, v{vB2raw+i}')
            a(f'v_and_b32 v{vB2f+2*i+1}, {sMASK}, v{vB2raw+i}')
        a(f'''
        v_lshrrev_b32 v{vFA1}, 3, v0
        s_lshl_b32 {sT0}, {sWAVE}, 3
        v_add_u32 v{vFA1}, {sT0}, v{vFA1}
        v_lshl_add_u32 v{vOUTO}, v{vFA1}, 10, v{vOUTO}
        v_and_b32 v{vFA0}, 7, v0
        v_lshlrev_b32 v{vFA0}, 1, v{vFA0}
        v_and_b32 v{vB2raw}, 15, v{vFA1}
        v_xor_b32 v{vFA0}, v{vFA0}, v{vB2raw}
        v_lshlrev_b32 v{vFA0}, 4, v{vFA0}
        v_lshl_add_u32 v{vFA0}, v{vFA1}, 8, v{vFA0}
        v_add_u32 v{vFA0}, {RED}, v{vFA0}
        v_xor_b32 v{vFA1}, 16, v{vFA0}
        ''')
    def spin_guard(lab):
        return f'''s_cmp_eq_u32 {sSPIN}, 0
        s_cbranch_scc1 {lab}
        s_sub_u32 {sSPIN}, {sSPIN}, 1'''
    def sig_off(k): return 4 * (32 - k)
    def sig_ins(k): return f'buffer_load_dword v{vOOB}, {X}, 0 offen offset:{sig_off(k)} lds'
    def flag_read(who, k): return f'ds_read_b32 v{vFG}, v{vFLr} offset:{(4*ROW if who == "L" else 0) + sig_off(k)}'
    def flag_check(who, k, sleep=0):
        l2, l3 = a.label('L_fc'), a.label('L_fc')
        a(f'''
        v_cmp_ne_u32 vcc, 0, v{vFG}
        s_cbranch_vccnz {l3}
        {l2}:
        ''')
        tail(f'''
        {l3}:
        {spin_guard(l2)}
        {('s_sleep %d' % sleep) if sleep else ''}
        {flag_read(who, k)}
        s_waitcnt lgkmcnt(0)
        v_cmp_ne_u32 vcc, 0, v{vFG}
        s_cbranch_vccnz {l3}
        s_branch {l2}
        ''')

    vX, vW1, vW2 = 2, 6, 10
    if hprio: a(f's_setprio {hprio}')
    a(f'''
    s_sub_u32 {sHW}, {sWAVE}, 4
    v_lshrrev_b32 v48, 3, v0
    v_lshrrev_b32 v49, 4, v0
    v_and_b32 v50, 7, v0
    v_and_b32 v51, 15, v0
    v_mul_u32_u24 v53, 3584, v49
    v_lshlrev_b32 v52, 1, v49
    v_xor_b32 v52, v52, v51
    v_lshl_add_u32 v{vW1}, v52, 4, v53
    v_add_u32 v{vW1+1}, {4*3584-1024}, v{vW1}
    v_xor_b32 v52, 8, v52
    v_lshl_add_u32 v52, v52, 4, v53
    v_add_u32 v{vW1+2}, {(4*3584-1024)*2}, v52
    v_add_u32 v{vW1+3}, {(4*3584-1024)*3}, v52
    v_xor_b32 v52, v49, v50
    v_lshlrev_b32 v52, 4, v52
    v_lshl_add_u32 v{vX}, v48, 10, v52
    v_xor_b32 v{vX+1}, 64, v{vX}
    v_add_u32 v{vX+1}, {7*1024}, v{vX+1}
    v_add_u32 v{vX+2}, {14*1024}, v{vX}
    v_add_u32 v{vX+3}, {14*1024}, v{vX+1}
    s_lshl_b32 {sXOFF}, {sG}, 17
    s_lshl_b32 {sT0}, {sHW}, 15
    s_add_u32 {sXOFF}, {sXOFF}, {sT0}
    s_mul_i32 {sW1OFF}, {sHW}, {16*3584}
    s_lshl_b32 {sT0}, {sJ}, 8
    s_add_u32 {sW1OFF}, {sW1OFF}, {sT0}
    s_lshl_b32 {sM0B}, {sHW}, 12
    s_mov_b32 {sKAP}, {sK0}
    s_mov_b32 s14, 1835008
    s_mov_b32 s15, 0x20000
    s_mov_b32 s18, 1835008
    s_mov_b32 s19, 0x20000
    s_waitcnt lgkmcnt(0)
    s_mov_b64 s[8:9], s[64:65]
    s_mov_b64 s[12:13], s[66:67]
    s_mov_b64 s[16:17], s[70:71]
    ''')
    def hsig(k): return f's_mov_b32 m0, {sROW}\ns_nop 0\n{sig_ins(k)}'
    def dma_stage_ops(s):
        slot = (s % 4) * SLOT
        g = []
        pre = f'''s_mul_i32 {sT1}, {sKAP}, {64*3584}
        s_add_u32 m0, {sM0B}, {slot+16384}
        s_add_u32 {sT1}, {sT1}, {sW1OFF}
        '''
        for i in range(4):
            g.append((pre if i == 0 else '') + f'buffer_load_dwordx4 v{vW1+i}, {W1}, {sT1} offen offset:{1024*i} lds')
        pre = f'''s_lshl_b32 {sT0}, {sKAP}, 7
        s_add_u32 m0, {sM0B}, {slot}
        s_add_u32 {sT0}, {sT0}, {sXOFF}
        '''
        post = f'''
        s_add_u32 {sKAP}, {sKAP}, 1
        s_and_b32 {sKAP}, {sKAP}, 7'''
        for i in range(4):
            g.append((pre if i == 0 else '') + f'buffer_load_dwordx4 v{vX+i}, {X}, {sT0} offen offset:{1024*i} lds' + (post if i == 0 else ''))
        return g
    def w2_unit_ops(u):
        stage, uu = divmod(u, 7)
        goff = 256 * uu * 1024
        base = sW2B if stage else sW2A
        pre = f'''s_add_u32 m0, {sM0B}, {unit_addr(u)}
        s_add_u32 {sT2}, {base}, {goff}
        '''
        return [(pre if i == 0 else '') + f'buffer_load_dwordx4 v{vW2+i}, {W2}, {sT2} offen offset:{1024*i} lds' for i in range(4)]
    a(f'''
    s_cmp_ge_u32 {sJ}, 14
    s_cbranch_scc1 L_hsetup
    ''')
    for o in dma_stage_ops(0): a(o)
    a(hsig(1))
    a('L_hsetup:')
    common_setup()
    a(f'''
    v_and_b32 v52, 1, v49
    v_lshlrev_b32 v52, 2, v52
    v_xor_b32 v52, v52, v50
    v_lshlrev_b32 v52, 4, v52
    v_lshl_add_u32 v{vW2}, v48, 10, v52
    v_add_u32 v{vW2+1}, {7*1024}, v{vW2}
    v_add_u32 v{vW2+2}, {14*1024}, v{vW2}
    v_add_u32 v{vW2+3}, {21*1024}, v{vW2}
    s_lshl_b32 {sW2A}, {sHW}, 16
    s_lshl_b32 {sT0}, {sC}, 7
    s_add_u32 {sW2A}, {sW2A}, {sT0}
    s_lshl_b32 {sT0}, {sR}, 15
    s_add_u32 {sW2A}, {sW2A}, {sT0}
    s_xor_b32 {sW2B}, {sW2A}, 32768
    s_barrier
    ''')
    def emit_stream(items):
        for k, (ins, need, after) in enumerate(items):
            if k + 4 < len(items) and items[k + 4][1] is not None: a(flag_read('F', items[k + 4][1]))
            if need is not None and not (nof and need <= 8):
                if k < 4: a(flag_read('F', need))
                a('s_waitcnt lgkmcnt(0)')
                st(f'h:fa{need}')
                flag_check('F', need, sleep=(1 if need >= 10 else 0))
                st(f'h:fb{need}')
            a(ins)
            if after is not None:
                a(hsig(after)); st(f'h:sig{after}')
    def w2_items(us, needs):
        it = []
        AFT = {1: 9, 8: 10, 10: 11, 13: 12}
        for u in us:
            for i, o in enumerate(w2_unit_ops(u)):
                it.append((o, needs.get(u) if i == 0 else None, AFT.get(u) if i == 3 else None))
        return it
    a(f'''
    s_cmp_ge_u32 {sJ}, 14
    s_cbranch_scc1 L_hspare
    ''')
    items = []
    for s in range(1, 8):
        for i, o in enumerate(dma_stage_ops(s)):
            items.append((o, (s - 3) if (i == 0 and s >= 4) else None, (s + 1) if i == 7 else None))
    items += w2_items(range(9), {1: 5, 3: 6, 5: 7, 7: 8})
    emit_stream(items)
    a('s_branch L_hpost')
    a('L_hspare:')
    emit_stream(w2_items(range(9), {}))
    a('L_hpost:')
    st('h:w9')
    b2_load()
    emit_stream(w2_items(range(9, 14), {9: 10, 11: 11}))
    st('h:w2issued')
    if wb:
        a(f'''
        s_cmp_lg_u32 {sWAVE}, 7
        s_cbranch_scc1 L_nowb
        s_cmp_lg_u32 {sJ}, 15
        s_cbranch_scc1 L_nowb
        buffer_wbl2 sc1
        L_nowb:
        ''')
    a('s_waitcnt vmcnt(22)')
    final_setup()
    a('s_branch L_final')

    a('L_comp:')
    aB, aA = 2, 4
    aW = 8
    vHS, vHL = 10, 11
    vPOLL, vPA = 12, 13
    vEPA, vGA0, vGA1, vTAGS = 14, 15, 16, 17
    vXA = 18
    vKC = 20
    vS = 28
    vBAUG = 36
    vAAUG = 44
    vTMP = 52
    vONE = 60
    ACC = 64
    FR = 128
    GT = 192
    vGR = 224
    CS = 216
    vBI = 250
    vRW = 252
    vFLAGA, vFLAGV = 253, 255
    if cprio: a(f's_setprio {cprio}')
    a(f'''
    s_lshr_b32 {sWM}, {sWAVE}, 1
    s_and_b32 {sWN}, {sWAVE}, 1
    s_lshl_b32 {sT1}, {sG}, 4
    v_mov_b32 v{vEPA}, {sT1}
    s_mov_b32 s30, 256
    s_mov_b32 s31, 0x20000
    v_lshrrev_b32 v52, 3, v0
    v_and_b32 v53, 7, v0
    v_lshlrev_b32 v53, 4, v53
    v_lshl_add_u32 v53, v52, 10, v53
    s_lshl_b32 {sT0}, {sG}, 17
    s_lshl_b32 {sT1}, {sJ}, 13
    s_add_u32 {sT3}, {sT0}, {sT1}
    s_mov_b32 m0, {sROW}
    s_waitcnt lgkmcnt(0)
    s_mov_b64 s[8:9], s[64:65]
    s_mov_b64 s[28:29], s[76:77]
    s_cmp_lg_u32 {sWAVE}, 0
    s_cbranch_scc1 L_c_nostat0
    s_cmp_lg_u32 {sJ}, 0
    s_cbranch_scc1 L_c_nolead
    s_lshl_b32 {sT1}, s62, 4
    s_or_b32 {sT1}, {sT1}, 8
    v_mov_b32 v54, {sT1}
    s_mov_b64 exec, 1
    buffer_store_dword v54, v{vEPA}, {DBG}, 0 offen sc1
    s_mov_b64 exec, -1
    L_c_nolead:
    ''')
    for i in range(8):
        a(f'buffer_load_dwordx4 {vr(FR+4*i,4)}, v53, {X}, {sT3} offen offset:{128*i}')
    a('L_c_nostat0:')
    a('s_barrier')
    common_setup()
    a(f'''
    s_mov_b64 s[20:21], s[78:79]
    s_mov_b32 s22, {WS_SIZE}
    s_mov_b32 s23, 0x20000
    s_mov_b64 s[32:33], s[68:69]
    s_mov_b32 s34, 3584
    s_mov_b32 s35, 0x20000
    s_getreg_b32 {sXCC}, hwreg(HW_REG_XCC_ID, 0, 3)
    s_lshl_b32 {sFLG}, {sG}, 11
    s_add_u32 {sFLG}, {sFLG}, {FLAG_BASE}
    ''')
    stamps_start()
    b2_load()
    a(f'''
    v_and_b32 v54, 15, v0
    v_lshrrev_b32 v55, 4, v0
    v_lshlrev_b32 v56, 1, v54
    s_lshl_b32 {sT0}, {sJ}, 8
    s_lshl_b32 {sT1}, {sWN}, 7
    s_add_u32 {sT0}, {sT0}, {sT1}
    s_lshl_b32 {sT1}, {sWM}, 6
    s_add_u32 {sT0}, {sT0}, {sT1}
    buffer_load_ushort v{vBI}, v56, {B1}, {sT0} offen
    buffer_load_ushort v{vBI+1}, v56, {B1}, {sT0} offen offset:32
    v_lshrrev_b32 v56, 1, v54
    v_xor_b32 v56, v56, v55
    v_lshlrev_b32 v56, 4, v56
    v_lshl_add_u32 v56, v54, 7, v56
    s_lshl_b32 {sT0}, {sWM}, 13
    v_add_u32 v{aB}, {sT0}, v56
    v_xor_b32 v{aB+1}, 64, v{aB}
    v_lshrrev_b32 v57, 2, v54
    v_and_b32 v58, 3, v54
    v_and_b32 v59, 1, v55
    v_lshl_or_b32 v59, v59, 2, v57
    v_lshl_add_u32 v60, v55, 3, v57
    v_lshlrev_b32 v60, 8, v60
    v_lshl_add_u32 v60, v58, 3, v60
    v_add_u32 v60, 16384, v60
    s_lshl_b32 {sT0}, {sWN}, 2
    s_lshl_b32 {sT1}, {sWM}, 1
    s_or_b32 {sT0}, {sT0}, {sT1}
    v_xor_b32 v61, {sT0}, v59
    v_lshl_add_u32 v{aA}, v61, 5, v60
    v_xor_b32 v{aA+1}, 32, v{aA}
    v_xor_b32 v{aA+2}, 64, v{aA}
    v_xor_b32 v{aA+3}, 96, v{aA}
    v_lshlrev_b32 v{vGA1}, 6, v54
    v_lshlrev_b32 v{vGA0}, 3, v54
    s_lshl_b32 {sT0}, {sWM}, 9
    v_add_u32 v{vGA0}, {sT0}, v{vGA0}
    v_lshrrev_b32 v52, 3, v0
    s_lshl_b32 {sT0}, {sJ}, 6
    s_add_u32 {sT0}, {sT0}, 1024
    v_lshlrev_b32 v{GT+8}, 3, v52
    v_add_u32 v{GT+8}, {sT0}, v{GT+8}
    v_lshlrev_b32 v{vHS}, 4, v54
    v_lshl_add_u32 v{vHS}, v55, 9, v{vHS}
    v_lshlrev_b32 v{vHL}, 4, v0
    s_lshl_b32 {sT0}, {sWAVE}, 10
    s_add_u32 {sT0}, {sT0}, {XCH}
    v_add_u32 v{vXA}, {sT0}, v{vHL}
    v_xor_b32 v{vXA+1}, 2048, v{vXA}
    v_lshrrev_b32 v56, 5, v0
    v_lshl_add_u32 v60, v56, 2, v57
    v_lshlrev_b32 v60, 7, v60
    v_lshl_add_u32 v60, v58, 3, v60
    v_and_b32 v59, 1, v55
    v_lshl_add_u32 v60, v59, 5, v60
    v_lshrrev_b32 v59, 1, v57
    v_lshl_add_u32 v60, v59, 6, v60
    s_lshl_b32 {sT0}, {sWN}, 12
    s_add_u32 {sT0}, {sT0}, {unit_addr(0)}
    v_add_u32 v{aW}, {sT0}, v60
    v_xor_b32 v{aW+1}, 64, v{aW}
    v_min_u32 v{vPA}, 13, v0
    v_lshlrev_b32 v{vPA}, 2, v{vPA}
    s_lshl_b32 {sT0}, {sR}, 1
    s_add_u32 {sT0}, {sT0}, {sWN}
    s_lshl_b32 {sT0}, {sT0}, 7
    v_add_u32 v{vPA}, {sT0}, v{vPA}
    v_and_b32 v60, 31, v0
    v_lshlrev_b32 v60, 8, v60
    v_xor_b32 v59, v56, v54
    v_lshl_add_u32 v60, v59, 4, v60
    s_lshl_b32 {sT0}, {sWN}, 14
    s_lshl_b32 {sT1}, {sWM}, 13
    s_add_u32 {sT0}, {sT0}, {sT1}
    s_add_u32 {sT0}, {sT0}, {RED}
    v_add_u32 v{vRW}, {sT0}, v60
    s_mul_i32 {sHB}, {sG}, {H_G}
    s_mul_i32 {sT0}, {sWN}, {H_KH}
    s_add_u32 {sHB}, {sHB}, {sT0}
    s_mul_i32 {sT0}, {sR}, {H_WM}
    s_add_u32 {sHC}, {sHB}, {sT0}
    s_mul_i32 {sT0}, {sWM}, {H_MB}
    s_add_u32 {sHC}, {sHC}, {sT0}
    s_mul_i32 {sT0}, {sWM}, {H_WM}
    s_add_u32 {sHB}, {sHB}, {sT0}
    s_lshl_b32 {sT0}, {sJ}, 11
    s_add_u32 {sHB}, {sHB}, {sT0}
    s_lshl_b32 {sT0}, {sWAVE}, 7
    s_lshl_b32 {sT1}, {sJ}, 2
    s_add_u32 {sT0}, {sT0}, {sT1}
    v_mov_b32 v{vFLAGA}, {sT0}
    s_mov_b32 {sONES}, 0x3f803f80
    v_mov_b32 v{vONE}, {sONES}
    v_mov_b32 v{vONE+1}, {sONES}
    v_mov_b32 v{vONE+2}, {sONES}
    v_mov_b32 v{vONE+3}, {sONES}
    s_mov_b32 {sSEL0}, 0x01000100
    s_mov_b32 {sSEL1}, 0x07060302
    s_mov_b32 {sSEL2}, 0x05040302
    s_mov_b64 s[100:101], 0xffff
    s_cmp_lg_u32 {sWAVE}, 0
    s_cbranch_scc1 L_c_nostat1
    ''')
    for i in range(8): a(f'v_mov_b32 v{GT+i}, 0')
    for i in range(8):
        a(f's_waitcnt vmcnt({10-i})')
        for d in range(4):
            r = FR + 4 * i + d
            a(f'v_dot2_f32_bf16 v{GT+d}, v{r}, {sONES}, v{GT+d}')
            a(f'v_dot2_f32_bf16 v{GT+4+d}, v{r}, v{r}, v{GT+4+d}')
    a(f'''
    s_nop 2
    v_add_f32 v{GT}, v{GT}, v{GT+1}
    v_add_f32 v{GT+2}, v{GT+2}, v{GT+3}
    v_add_f32 v{GT+4}, v{GT+4}, v{GT+5}
    v_add_f32 v{GT+6}, v{GT+6}, v{GT+7}
    v_add_f32 v{GT}, v{GT}, v{GT+2}
    v_add_f32 v{GT+4}, v{GT+4}, v{GT+6}
    s_nop 1
    ''')
    for mode in ('quad_perm:[1,0,3,2]', 'quad_perm:[2,3,0,1]', 'row_half_mirror'):
        a(f'''
        v_add_f32_dpp v{GT}, v{GT}, v{GT} {mode} row_mask:0xf bank_mask:0xf
        v_add_f32_dpp v{GT+4}, v{GT+4}, v{GT+4} {mode} row_mask:0xf bank_mask:0xf
        s_nop 1
        ''')
    a(f'''
    v_mul_f32 v{GT}, {f32(1.0/512)}, v{GT}
    v_mul_f32 v{GT+4}, {f32(1.0/512)}, v{GT+4}
    v_fma_f32 v{GT+4}, -v{GT}, v{GT}, v{GT+4}
    v_max_f32 v{GT+4}, 0, v{GT+4}
    v_cvt_pk_bf16_f32 v{GT+4}, v{GT+4}, v{GT+4}
    v_and_b32 v{GT+4}, {sMASK}, v{GT+4}
    v_add_f32 v{GT+4}, {f32(1e-5)}, v{GT+4}
    v_cvt_pk_bf16_f32 v{GT+4}, v{GT+4}, v{GT+4}
    v_and_b32 v{GT+4}, {sMASK}, v{GT+4}
    v_sqrt_f32 v{GT+4}, v{GT+4}
    s_nop 0
    v_cvt_pk_bf16_f32 v{GT}, -v{GT}, v{GT+4}
    L_c_nostat1:
    ''')
    V = VQ(a)
    def csig(k):
        a(sig_ins(k)); V.op('sig')
    def ep_issue():
        a(f'buffer_load_dword v{vPOLL}, v{vEPA}, {DBG}, 0 offen sc1'); V.op('ep')
    def publish_stats(sleep=2):
        l1, l2, l3, l4 = a.label('L_ep'), a.label('L_ep'), a.label('L_ep'), a.label('L_ep')
        V.need('ep')
        a(f'''
        {l1}:
        v_readfirstlane_b32 {sEP}, v{vPOLL}
        s_cmp_eq_u32 {sEP}, 0
        s_cbranch_scc1 {l3}
        {l2}:
        s_cmp_eq_u32 {sWAVE}, 0
        s_cbranch_scc1 {l4}a
        {l4}:
        ''')
        tail(f'''
        {l3}:
        {spin_guard(l2)}
        s_sleep {sleep}
        buffer_load_dword v{vPOLL}, v{vEPA}, {DBG}, 0 offen sc1
        s_waitcnt vmcnt(0)
        s_branch {l1}
        {l4}a:
        s_or_b32 {sT0}, {sEP}, {sXCC}
        v_mov_b32 v{GT+1}, {sT0}
        s_mov_b32 exec_lo, 0x01010101
        s_mov_b32 exec_hi, 0x01010101
        buffer_store_dwordx2 {vr(GT,2)}, v{GT+8}, {WS}, {sFLG} offen sc1
        s_mov_b64 exec, -1
        s_branch {l4}
        ''')
    def gather_list():
        return [f'buffer_load_dwordx2 {vr(vGR+2*mt,2)}, v{vGA0}, {WS}, {sFLG} offen offset:{1024+128*mt} sc1' for mt in range(4)] + \
               [f'buffer_load_dword v{vTAGS}, v{vGA1}, {WS}, {sFLG} offen offset:{1024+4} sc1']
    def gather_check(sleep=2):
        l1, l2, l3 = a.label('L_g'), a.label('L_g'), a.label('L_g')
        V.need('g')
        a(f'{l1}:')
        a(f'v_xor_b32 v{vTMP+1}, {sEP}, v{vTAGS}')
        for mt in range(4):
            a(f'v_xor_b32 v{vTMP+2}, {sEP}, v{vGR+2*mt+1}')
            a(f'v_or_b32 v{vTMP+1}, v{vTMP+1}, v{vTMP+2}')
        a(f'''
        v_cmp_lt_u32 vcc, 7, v{vTMP+1}
        s_cbranch_vccnz {l3}
        {l2}:
        s_or_b32 {sT0}, {sEP}, {sXCC}
        v_cmp_ne_u32 s[98:99], {sT0}, v{vTAGS}
        ''')
        if force_slow: a('s_mov_b64 s[98:99], -1')
        tail(f'''
        {l3}:
        {spin_guard(l2)}
        s_sleep {sleep}
        ''')
        for o in gather_list(): tail(o)
        tail('s_waitcnt vmcnt(0)')
        tail(f's_branch {l1}')
    def poll_h_issue(stage):
        a(f'buffer_load_dword v{vPOLL}, v{vPA}, {WS}, {sFLG} offen offset:{64*stage} sc1'); V.op('p')
    def poll_h_check(stage, sleep=1):
        l1, l2, l3 = a.label('L_ph'), a.label('L_ph'), a.label('L_ph')
        V.need('p')
        a(f'''
        {l1}:
        v_cmp_ne_u32 vcc, {sEP}, v{vPOLL}
        s_cbranch_vccnz {l3}
        {l2}:
        ''')
        tail(f'''
        {l3}:
        {spin_guard(l2)}
        s_sleep {sleep}
        buffer_load_dword v{vPOLL}, v{vPA}, {WS}, {sFLG} offen offset:{64*stage} sc1
        s_waitcnt vmcnt(0)
        s_branch {l1}
        ''')
    def wreads_at(n, base):
        ad = unit_addr(n // 2) + 8192 * (n % 2)
        fb = FR + 16 * (n % 4)
        return [f'ds_read_b64_tr_b16 {vr(fb+8*ph+4*dl+2*h,2)}, v{aW+dl} offset:{ad-base+1024*ph+2048*h}'
                for ph in range(2) for dl in range(2) for h in range(2)]
    def rebase(delta): return [f'v_add_u32 v{aW+dl}, {delta & 0xffffffff:#x}, v{aW+dl}' for dl in range(2)]
    def pf_list():
        return wreads_at(0, unit_addr(0)) + wreads_at(1, unit_addr(0)) + rebase(-unit_addr(0)) + wreads_at(2, 0) + wreads_at(3, 0)
    a(f'''
    s_cmp_lt_u32 {sJ}, 14
    s_cbranch_scc1 L_c_reg
    s_sleep 16
    ''')
    ep_issue()
    publish_stats(sleep=8)
    a('s_waitcnt vmcnt(0)')
    final_setup()
    a(flag_read('L', 9))
    a('s_waitcnt lgkmcnt(0)')
    flag_check('L', 9, sleep=4)
    for o in pf_list(): a(o)
    a('s_waitcnt lgkmcnt(0)')
    a(sig_ins(10))
    poll_h_issue(0)
    poll_h_check(0, sleep=6)
    a('s_branch L_c_p2')
    a('L_c_reg:')
    V.q = []

    L = LQ(a)
    def reads(s, ks, fs):
        so = (s & 1) * SLOT
        fb = FR + 32 * fs
        rb = [f'ds_read_b128 {vr(fb+4*mt,4)}, v{aB+ks} offset:{so+2048*mt}' for mt in range(4)]
        ra = [[f'ds_read_b64_tr_b16 {vr(fb+16+4*t+2*h,2)}, v{aA+t} offset:{so+8192*ks+1024*h}' for h in range(2)] for t in range(4)]
        return ra[0] + [rb[0], rb[1], rb[2], rb[3]] + ra[1] + ra[2] + ra[3]
    def mfmas(fs, first=False):
        fb = FR + 32 * fs
        out = []
        for t in range(4):
            if t < 2:
                c = '0' if first else vr(CS + 4 * t, 4)
                out.append(f'v_mfma_f32_16x16x32_bf16 {vr(CS+4*t,4)}, {vr(vONE,4)}, {vr(fb+16+4*t,4)}, {c}')
            for mt in range(4):
                d = ACC + 4 * (4 * mt + t)
                c = '0' if first else vr(d, 4)
                out.append(f'v_mfma_f32_16x16x32_bf16 {vr(d,4)}, {vr(fb+16+4*t,4)}, {vr(fb+4*mt,4)}, {c}')
        return out
    def put(o):
        if isinstance(o, tuple): a(o[0]); V.op(o[1])
        elif o.startswith('ds_'): L.op(o)
        else: a(o)
    def weave(ms, fill, per=1):
        k = 0
        for m in ms:
            L.mfma(m)
            for o in fill[k:k+per]: put(o)
            k += per
        for o in fill[k:]: put(o)
    def two_waits(fs):
        fb = FR + 32 * fs
        L.need(set(range(fb, fb + 24)))
    toggle = [f'v_xor_b32 v{r}, 0x10000, v{r}' for r in range(aB, aB + 6)]
    a(flag_read('L', 1))
    a('s_waitcnt lgkmcnt(0)')
    flag_check('L', 1)
    st('c:B0')
    for o in reads(0, 0, 0): L.op(o)
    ep_issue()
    for s in range(8):
        if s == hooks[0]: publish_stats()
        if s == hooks[2]: gather_check()
        fill = reads(s, 1, 1)
        if s < 7: fill.append(flag_read('L', s + 2))
        if s % 2 == 1 and s < 7: fill = fill + toggle[:4]
        if s == hooks[1]: fill = fill + [(o, 'g') for o in gather_list()]
        ms = mfmas(0, first=(s == 0))
        st(f'c:S{s}')
        two_waits(0)
        weave(ms[:10], fill[:10])
        L.need(set(range(FR + 24, FR + 32)))
        weave(ms[10:], fill[10:])
        ms = mfmas(1)
        L.drain()
        pre = [(sig_ins(s + 1), 'sig')] + (toggle[4:] if (s % 2 == 1 and s < 7) else [])
        weave(ms[:chk], pre)
        if s < 7:
            st(f'c:A{s+1}')
            flag_check('L', s + 2)
            st(f'c:B{s+1}')
            weave(ms[chk:], reads(s + 1, 0, 0))
        else:
            extra = []
            for mt in range(4):
                rec = vGR + 2 * mt
                rs = vS + 2 * mt + 1
                extra += [f'v_cndmask_b32 v{vBAUG+2*mt+1}, 0, v{rec}, s[100:101]',
                          f'v_and_b32 v{vS+2*mt}, {sMASK}, v{rec}',
                          f'v_perm_b32 v{vBAUG+2*mt}, v{vBAUG+2*mt+1}, v{vBAUG+2*mt+1}, {sSEL0}',
                          f'v_rcp_f32 v{rs}, v{vS+2*mt}']
            for t in range(2):
                c = CS + 4 * t
                extra += [f'v_and_b32 v{c+1}, {sMASK}, v{c}',
                          f'v_sub_f32 v{c+1}, v{c}, v{c+1}',
                          f'v_and_b32 v{c+2}, {sMASK}, v{c+1}',
                          f'v_sub_f32 v{c+2}, v{c+1}, v{c+2}',
                          f'v_perm_b32 v{vAAUG+2*t}, v{c+1}, v{c}, {sSEL1}',
                          f'v_perm_b32 v{vAAUG+2*t+1}, v{vBI+t}, v{c+2}, {sSEL2}']
            extra.append(f'ds_write_b128 v{vXA}, {vr(vAAUG,4)}')
            weave(ms[chk:], extra, per=2)
    st('c:kend')
    def aug(ts):
        out = []
        for mt in range(4):
            for t in ts:
                d = ACC + 4 * (4 * mt + t)
                out.append(f'v_mfma_f32_16x16x16_bf16 {vr(d,4)}, {vr(vAAUG+2*t,2)}, {vr(vBAUG+2*mt,2)}, {vr(d,4)}')
        return out
    extra = []
    for mt in range(4):
        rs = vS + 2 * mt + 1
        extra += [f'v_mul_f32 v{vKC+2*mt}, {f32(K1C)}, v{rs}',
                  f'v_mul_f32 v{vKC+2*mt+1}, v{rs}, v{rs}',
                  f'v_mul_f32 v{rs}, {f32(K3C)}, v{rs}',
                  f'v_mul_f32 v{vKC+2*mt+1}, v{vKC+2*mt+1}, v{rs}']
    a(f'v_mov_b32 v{vFLAGV}, {sEP}')
    a('s_nop 0')
    weave(aug((0, 1)), extra, per=2)
    st('c:aug')
    def store2(ins, tag):
        l1 = a.label('L_s')
        a(f'''
        s_cbranch_scc0 {l1}a
        {ins}
        {l1}:
        ''')
        tail(f'''
        {l1}a:
        {ins} sc1
        s_branch {l1}
        ''')
        V.op(tag)
    def flag_h(stage):
        V.need(f'h{stage}')
        a('s_mov_b64 exec, 1')
        a('s_cmp_eq_u64 s[98:99], 0')
        store2(f'buffer_store_dword v{vFLAGV}, v{vFLAGA}, {WS}, {sFLG} offen offset:{64*stage}', 'f')
        a('s_mov_b64 exec, -1')
    idx = 0
    for stg in range(2):
        for mt in range(4):
            A = ACC + 16 * mt + 8 * stg
            T = GT + 8 * (idx & 1)
            O = GT + 16 + 4 * (idx & 3)
            P = lambda r: vr(r, 2)
            kc, s_ = vr(vKC + 2 * mt, 2), vr(vS + 2 * mt, 2)
            mids = []
            if idx == 1:
                L.drain(); csig(9)
            if idx == 3:
                L.drain()
                flag_check('F', 9)
                L.op(f'ds_read_b128 {vr(vAAUG+4,4)}, v{vXA+1}')
            if idx == pfat:
                L.drain()
                flag_check('L', 9)
                mids = pf_list()
            if idx == pfat + 1:
                L.drain(); csig(10)
            body = []
            for i in range(0, 8, 2): body.append(f'v_pk_mul_f32 {P(T+i)}, {P(A+i)}, {P(A+i)}')
            for i in range(0, 8, 2): body.append(f'v_pk_fma_f32 {P(T+i)}, {P(T+i)}, {kc}, {kc} op_sel:[0,1,0] op_sel_hi:[1,1,0]')
            for i in range(0, 8, 2): body.append(f'v_pk_mul_f32 {P(T+i)}, {P(A+i)}, {P(T+i)}')
            for i in range(8): body.append(f'v_exp_f32 v{T+i}, v{T+i}')
            for i in range(0, 8, 2): body.append(f'v_pk_fma_f32 {P(T+i)}, {P(T+i)}, {s_}, {s_} op_sel_hi:[1,0,0]')
            for i in range(8): body.append(f'v_rcp_f32 v{T+i}, v{T+i}')
            for i in range(0, 8, 2): body.append(f'v_pk_mul_f32 {P(T+i)}, {P(A+i)}, {P(T+i)}')
            for i in range(4): body.append(f'v_cvt_pk_bf16_f32 v{O+i}, v{T+2*i}, v{T+2*i+1}')
            am = aug((2, 3)) if idx == 3 else []
            for i, o in enumerate(body):
                if am and 24 <= i < 32: L.mfma(am[i - 24])
                a(o)
                if i < len(mids): put(mids[i])
            if idx == 2: L.op(flag_read('F', 9))
            if idx == pfat - 1: L.op(flag_read('L', 9))
            a(f's_add_u32 {sT0}, {sHB}, {(mt>>1)*H_MB + stg*H_ST}')
            a('s_cmp_eq_u64 s[98:99], 0')
            store2(f'buffer_store_dwordx4 {vr(O,4)}, v{vHS}, {WS}, {sT0} offen offset:{256*(mt&1)}', f'h{stg}')
            st(f'c:g{idx}')
            idx += 1
            if idx == flagat:
                flag_h(0)
                st('c:flagA')
            if idx == 7 and earlypoll: poll_h_issue(0)
    if pfat == 7:
        L.drain(); csig(10)
    if not earlypoll: poll_h_issue(0)
    final_setup()
    if earlypoll:
        poll_h_check(0)
        flag_h(1)
    else:
        flag_h(1)
        poll_h_check(0)
    st('c:seenA')
    a('L_c_p2:')
    ACC2 = GT
    HR = ACC
    V.q = []
    L = LQ(a)
    def hload(n):
        r = HR + 8 * (n % D)
        pre = f's_add_u32 {sT3}, {sHC}, {2048*n}\n' if n % 2 == 0 else ''
        o = 2048 * (n % 2)
        return [pre + f'buffer_load_dwordx4 {vr(r,4)}, v{vHL}, {WS}, {sT3} offen offset:{o} {haux}',
                f'buffer_load_dwordx4 {vr(r+4,4)}, v{vHL}, {WS}, {sT3} offen offset:{o+1024} {haux}']
    cur_base = [0]
    def wreads(n):
        ad = unit_addr(n // 2) + 8192 * (n % 2)
        pre = []
        if not (0 <= ad - cur_base[0] <= 65535 - 8192):
            pre = rebase(ad - cur_base[0]); cur_base[0] = ad
        return pre + wreads_at(n, cur_base[0])
    pending = []
    for n in range(28):
        for ph, o in enumerate(hload(n)): pending.append((n, ph, o))
    def issue_h():
        n, ph, o = pending.pop(0)
        if n == 14 and ph == 0: poll_h_check(1)
        a(o); V.op((n, ph))
    if p2w:
        poll_h_issue(1); poll_h_check(1)
    if p2priv:
        a(f's_mul_i32 {sT0}, {sC}, {H_KH}')
        a(f's_mul_i32 {sHC}, {sG}, {H_G}')
        a(f's_add_u32 {sHC}, {sHC}, {sT0}')
    L.op(flag_read('L', 10))
    for k in range(2 * ramp):
        issue_h()
        if k == 3: poll_h_issue(1)
    PD = 3
    LCHK = {4: 10, 18: 11, 22: 12}
    FSIG = {9: 11, 13: 12}
    for n in range(28):
        fb = FR + 16 * (n % 4)
        hr = HR + 8 * (n % D)
        st(f'c:n{n}')
        fill = []
        m = n + PD
        if (m - 1) in FSIG or m in LCHK: L.drain()
        if (m - 1) in FSIG: fill.append((sig_ins(FSIG[m - 1]), 'sig'))
        if n >= 1 and m < 28:
            if m in LCHK: flag_check('L', LCHK[m])
            if not p2nord: fill += wreads(m)
        if (m + 1) in LCHK and m + 1 != 4: fill.append(flag_read('L', LCHK[m + 1]))
        if n == 26: fill.append(flag_read('F', 12))
        if n == 27: fill += [f'v_xor_b32 v{vTMP+i}, {32*i}, v{vRW}' for i in range(1, 8)]
        per = (len(fill) + 2) // 3
        k = 0
        i = 0
        for ph in range(2):
            for dl in range(2):
                d = ACC2 + 16 * dl
                c = '0' if (n == 0 and ph == 0) else vr(d, 16)
                if dl == 0:
                    vc = V.count((n, ph))
                    lc = L.count(set(range(fb, fb + 16))) if ph == 0 else None
                    w = ([f'vmcnt({vc})'] if vc is not None else []) + ([f'lgkmcnt({lc})'] if lc is not None else [])
                    if w: a('s_waitcnt ' + ' '.join(w))
                if not p2nomfma: a(f'v_mfma_f32_32x32x16_bf16 {vr(d,16)}, {vr(fb+8*ph+4*dl,4)}, {vr(hr+4*ph,4)}, {c}')
                for o in fill[k:k+per]: put(o)
                k += per
                if i >= 1 and pending and pending[0][0] <= n - 1 + D and (i != 2 or pending[0][0] < n - 1 + D):
                    issue_h()
                i += 1
    assert not pending
    st('c:p2end')
    L.drain()
    flag_check('F', 12)
    a('s_nop 7')
    for dl in range(2):
        for g in range(4):
            i = 4 * dl + g
            ad = vRW if i == 0 else vTMP + i
            a(f'ds_write_b128 v{ad}, {vr(ACC2+16*dl+4*g,4)}')
    a('s_waitcnt lgkmcnt(0)')
    a('L_final:')
    a('s_barrier')
    st('c:W4')
    R = 64
    a(f'''
    ds_read_b128 {vr(R,4)}, v{vFA0}
    ds_read_b128 {vr(R+8,4)}, v{vFA0} offset:16384
    ds_read_b128 {vr(R+4,4)}, v{vFA1}
    ds_read_b128 {vr(R+12,4)}, v{vFA1} offset:16384
    s_lshl_b32 {sT0}, {sG}, 17
    s_lshl_b32 {sT1}, {sR}, 16
    s_add_u32 {sT0}, {sT0}, {sT1}
    s_lshl_b32 {sT1}, {sC}, 7
    s_add_u32 {sT0}, {sT0}, {sT1}
    s_waitcnt lgkmcnt(0)
    ''')
    for i in range(4): a(f'v_pk_add_f32 {vr(R+2*i,2)}, {vr(R+2*i,2)}, {vr(R+8+2*i,2)}')
    for i in range(4): a(f'v_cvt_pk_bf16_f32 v{R+8+i}, v{R+2*i}, v{R+2*i+1}')
    for i in range(4):
        a(f'v_lshlrev_b32 v{R+2*i}, 16, v{R+8+i}')
        a(f'v_and_b32 v{R+2*i+1}, {sMASK}, v{R+8+i}')
    for i in range(4): a(f'v_pk_add_f32 {vr(R+2*i,2)}, {vr(R+2*i,2)}, {vr(vB2f+2*i,2)}')
    for i in range(4): a(f'v_cvt_pk_bf16_f32 v{R+12+i}, v{R+2*i}, v{R+2*i+1}')
    a(f'buffer_store_dwordx4 {vr(R+12,4)}, v{vOUTO}, {OUT}, {sT0} offen {outaux}')
    if stamps:
        a('s_waitcnt vmcnt(0)')
        st('c:end')
        a(f'''
        s_cmp_eq_u32 {sWAVE}, {hst}
        s_cbranch_scc1 L_sth
        s_cmp_lg_u32 {sWAVE}, {cst}
        s_cbranch_scc1 L_end
        ''')
        st_flush('c:')
        a('s_branch L_end')
        a('L_sth:')
        st_flush('h:')
    if padend:
        a(f'''
        L_pad:
        s_memrealtime s[94:95]
        s_waitcnt lgkmcnt(0)
        s_sub_u32 s94, s94, s62
        s_cmp_lt_u32 s94, {padend}
        s_cbranch_scc1 L_pad
        ''')
    a('s_endpgm')
    body = a.text() + tail.text() + 'L_end:\n'
    return make_file([(KNAME, body, 256, 102, 256)], [(KNAME, 256, 512, 163840)])

ST_MAIN = ['c:start', 'c:B0', 'c:kend', 'c:aug', 'c:flagA', 'c:seenA', 'c:n1', 'c:p2end', 'c:end', 'h:sig8', 'h:w9', 'h:w2issued']
ST_K = ['c:start', 'c:B0@'] + [f'c:B{i}@' for i in range(1, 8)] + ['c:kend@', 'h:sig8@', 'h:w9@']
ST_CYC = ['c:start', 'c:B0@', 'c:kend@', 'c:aug@', 'c:g3@', 'c:flagA@', 'c:g7@', 'c:seenA@', 'c:n1@', 'c:p2end@', 'c:W4@', 'c:end@']
if __name__ == '__main__':
    names = []
    def g(nm, **kw):
        open(nm + '.s', 'w').write(gen(**kw)); names.append(nm)
    g('k4')
    g('k4s', stamps=ST_MAIN)
    g('k4k', stamps=ST_K)
    g('k4c', stamps=ST_CYC)
    print(' '.join(names))
```

```python
import sys, struct, re
from asmlib import *
from gen4 import LQ, VQ, f32, vr, regs_of, K1C, K3C

H_G, H_WM, H_MB, H_KH, H_ST, H_J = 458752, 229376, 114688, 57344, 28672, 2048
FLAG_BASE = 8 << 20
WS_SIZE = 16 << 20
SLOT = 32768
XCH = 147456
XCH2 = XCH + 4096
RED = 49152
def unit_addr(u): return 147456 if u == 13 else ((u + 8) % 9) * 16384

def gen(stamps=None, D=8, rot='xj', force_slow=False, padend=0, outaux='sc1', ramp=4, earlypoll=False, wb=False,
        hst=4, cst=0, pfat=(4, 5), flagat=6, chk=6, lead=24, lprio=0, pollb=3, zat=12, svc=(0, 3, 5)):
    a = Asm()
    tail = Asm()
    NST = 12
    sWAVE, sG, sJ, sR, sC = 's3', 's4', 's5', 's6', 's7'
    X, W1, W2, WS, OUT, DBG, B1, B2 = 's[8:11]', 's[12:15]', 's[16:19]', 's[20:23]', 's[24:27]', 's[28:31]', 's[32:35]', 's[36:39]'
    sXCC, sHW = 's41', 's42'
    sT0, sT1, sT2, sT3 = 's43', 's44', 's45', 's46'
    sXOFF, sW1OFF, sW2A, sFLG, sHB, sW2B, sM0B, sKAP = 's47', 's48', 's49', 's50', 's51', 's52', 's53', 's54'
    sMASK, sONES, sSPIN = 's55', 's56', 's57'
    sWM, sWN, sEP, sHC = 's58', 's59', 's60', 's61'
    sSEL0, sSEL1, sSEL2 = 's40', 's94', 's95'
    KA = 80 if stamps else 64
    stamps = stamps or []
    SB = 64
    assert len(stamps) <= 8 or True
    def ka(i): return f's[{KA+2*i}:{KA+2*i+1}]'
    def st(name):
        for suffix, ins in (('', 's_memrealtime'), ('@', 's_memtime')):
            if name + suffix in stamps:
                i = stamps.index(name + suffix); a(f'{ins} s[{SB+2*i}:{SB+2*i+1}]')
    def st_flush(pref):
        a('s_waitcnt lgkmcnt(0)')
        a(f's_load_dwordx2 s[90:91], s[0:1], 56')
        a('s_waitcnt lgkmcnt(0)')
        stamp_setup(a, NST)
        a('v_mov_b32 v250, 0')
        for i, n in enumerate(stamps):
            if not n.startswith(pref): continue
            if n == 'c:start': a(f's_mov_b64 s[{SB+2*i}:{SB+2*i+1}], s[62:63]')
            if n.endswith('@'):
                a(f's_sub_u32 s{SB+2*i}, s{SB+2*i}, s96')
                a(f's_add_u32 s{SB+2*i}, s{SB+2*i}, s62')
                a(f's_addc_u32 s{SB+2*i+1}, s63, 0')
            a(f'v_mov_b32 v252, s{SB+2*i}')
            a(f'v_mov_b32 v253, s{SB+2*i+1}')
            a(f'global_store_dwordx2 v250, v[252:253], s[90:91] offset:{i*8}')
            a('s_nop 1')
    assert len(stamps) <= 8
    if stamps: sSEL1, sSEL2 = 's33', 's32'
    sSEL1, sSEL2 = 's12', 's13'

    vB2raw, vB2f, vFA0, vFA1, vOUTO, vRW = 2, 20, 28, 29, 30, 31
    a(f'''
    s_cmp_ge_u32 s2, 256
    s_cbranch_scc1 L_end
    s_load_dwordx16 s[{KA}:{KA+15}], s[0:1], 0
    s_memrealtime s[62:63]
    ''')
    if stamps: a('s_memtime s[96:97]')
    a(f'''
    v_lshrrev_b32 v1, 6, v0
    v_and_b32 v0, 63, v0
    s_and_b32 {sT0}, s2, 7
    v_readfirstlane_b32 {sWAVE}, v1
    s_lshr_b32 {sT1}, s2, 3
    s_lshr_b32 {sT2}, {sT1}, 4
    s_lshl_b32 {sG}, {sT0}, 1
    s_add_u32 {sG}, {sG}, {sT2}
    s_and_b32 {sJ}, {sT1}, 15
    s_mov_b32 s10, 2097152
    s_mov_b32 s11, 0x20000
    s_cmp_lt_u32 {sWAVE}, 4
    s_cbranch_scc1 L_comp
    s_cmp_ge_u32 {sWAVE}, 6
    s_cbranch_scc1 L_serv
    ''')
    def lines(s): return [l.strip() for l in s.strip().split('\n') if l.strip()]
    def common_setup():
        return lines(f'''
        s_mov_b32 {sC}, {sJ}
        s_cmp_eq_u32 {sJ}, 14
        s_cselect_b32 {sC}, 11, {sC}
        s_cmp_eq_u32 {sJ}, 11
        s_cselect_b32 {sC}, 14, {sC}
        s_lshr_b32 {sR}, {sC}, 3
        s_and_b32 {sC}, {sC}, 7
        s_mov_b32 {sMASK}, 0xffff0000
        s_mov_b32 {sSPIN}, 0x40000
        s_mov_b64 s[36:37], {ka(4)}
        s_mov_b32 s38, 1024
        s_mov_b32 s39, 0x20000
        s_mov_b64 s[24:25], {ka(5)}
        s_mov_b32 s26, 2097152
        s_mov_b32 s27, 0x20000
        ''')
    def ws_setup():
        return lines(f'''
        s_mov_b64 s[20:21], {ka(7)}
        s_mov_b32 s22, {WS_SIZE}
        s_mov_b32 s23, 0x20000
        s_getreg_b32 {sXCC}, hwreg(HW_REG_XCC_ID, 0, 3)
        s_lshl_b32 {sFLG}, {sG}, 11
        s_add_u32 {sFLG}, {sFLG}, {FLAG_BASE}
        ''')
    def b2_load():
        return f'''v_and_b32 v{vB2raw+4}, 7, v0
        v_lshlrev_b32 v{vB2raw+4}, 4, v{vB2raw+4}
        s_lshl_b32 {sT0}, {sC}, 7
        buffer_load_dwordx4 {vr(vB2raw,4)}, v{vB2raw+4}, {B2}, {sT0} offen'''
    def final_setup():
        for i in range(4):
            a(f'v_lshlrev_b32 v{vB2f+2*i}, 16, v{vB2raw+i}')
            a(f'v_and_b32 v{vB2f+2*i+1}, {sMASK}, v{vB2raw+i}')
        a(f'''
        v_lshrrev_b32 v{vFA1}, 3, v0
        s_lshl_b32 {sT0}, {sWAVE}, 3
        v_add_u32 v{vFA1}, {sT0}, v{vFA1}
        v_lshl_add_u32 v{vOUTO}, v{vFA1}, 10, v{vB2raw+4}
        v_and_b32 v{vFA0}, 7, v0
        v_lshlrev_b32 v{vFA0}, 1, v{vFA0}
        v_and_b32 v{vB2raw}, 15, v{vFA1}
        v_xor_b32 v{vFA0}, v{vFA0}, v{vB2raw}
        v_lshlrev_b32 v{vFA0}, 4, v{vFA0}
        v_lshl_add_u32 v{vFA0}, v{vFA1}, 8, v{vFA0}
        v_add_u32 v{vFA0}, {RED}, v{vFA0}
        v_xor_b32 v{vFA1}, 16, v{vFA0}
        ''')
    def spin_guard(lab):
        return f'''s_cmp_le_i32 {sSPIN}, 0
        s_cbranch_scc1 {lab}
        s_sub_u32 {sSPIN}, {sSPIN}, 1'''

    vX, vW1, vW2 = 32, 36, 40
    if rot == 'none': a(f's_mov_b32 {sKAP}, 0')
    elif rot == 'x': a(f's_mov_b32 {sKAP}, {sT0}')
    elif rot == 'xj': a(f's_add_u32 {sKAP}, {sT0}, {sJ}\ns_and_b32 {sKAP}, {sKAP}, 7')
    a(f'''
    s_sub_u32 {sHW}, {sWAVE}, 4
    v_lshrrev_b32 v49, 4, v0
    v_and_b32 v51, 15, v0
    v_mul_u32_u24 v53, 3584, v49
    v_lshlrev_b32 v52, 1, v49
    v_xor_b32 v52, v52, v51
    v_lshl_add_u32 v{vW1}, v52, 4, v53
    v_add_u32 v{vW1+1}, {4*3584-1024}, v{vW1}
    v_xor_b32 v52, 8, v52
    v_lshl_add_u32 v52, v52, 4, v53
    v_add_u32 v{vW1+2}, {(4*3584-1024)*2}, v52
    v_add_u32 v{vW1+3}, {(4*3584-1024)*3}, v52
    s_mul_i32 {sW1OFF}, {sHW}, {32*3584}
    s_lshl_b32 {sT0}, {sJ}, 8
    s_add_u32 {sW1OFF}, {sW1OFF}, {sT0}
    s_lshl_b32 {sM0B}, {sHW}, 13
    s_mov_b32 s14, 1835008
    s_mov_b32 s15, 0x20000
    v_lshrrev_b32 v48, 3, v0
    v_and_b32 v50, 7, v0
    s_cmp_ge_u32 {sJ}, 14
    s_cbranch_scc1 L_lspare
    ''')
    xsetup = lines(f'''
    v_xor_b32 v52, v49, v50
    v_lshlrev_b32 v52, 4, v52
    v_lshl_add_u32 v{vX}, v48, 10, v52
    v_xor_b32 v{vX+1}, 64, v{vX}
    v_add_u32 v{vX+1}, {7*1024}, v{vX+1}
    v_add_u32 v{vX+2}, {14*1024}, v{vX}
    v_add_u32 v{vX+3}, {14*1024}, v{vX+1}
    s_lshl_b32 {sXOFF}, {sG}, 17
    s_lshl_b32 {sT0}, {sHW}, 16
    s_add_u32 {sXOFF}, {sXOFF}, {sT0}
    ''')
    w2setup = common_setup() + lines(f'''
    s_mov_b64 s[16:17], {ka(3)}
    s_mov_b32 s18, 1835008
    s_mov_b32 s19, 0x20000
    v_and_b32 v52, 1, v49
    v_lshlrev_b32 v52, 2, v52
    v_xor_b32 v52, v52, v50
    v_lshlrev_b32 v52, 4, v52
    v_lshl_add_u32 v{vW2}, v48, 10, v52
    v_add_u32 v{vW2+1}, {7*1024}, v{vW2}
    v_add_u32 v{vW2+2}, {14*1024}, v{vW2}
    v_add_u32 v{vW2+3}, {21*1024}, v{vW2}
    s_lshl_b32 {sW2A}, {sHW}, 17
    s_lshl_b32 {sT2}, {sC}, 7
    s_add_u32 {sW2A}, {sW2A}, {sT2}
    s_lshl_b32 {sT2}, {sR}, 15
    s_add_u32 {sW2A}, {sW2A}, {sT2}
    s_xor_b32 {sW2B}, {sW2A}, 32768
    ''')
    def grp(pre, vb, srd, soff):
        return [(pre if i == 0 else '') + f'buffer_load_dwordx4 v{vb+i}, {srd}, {soff} offen offset:{1024*i} lds' for i in range(4)]
    def dma_stage_ops(s):
        slot = (s % 4) * SLOT
        g = grp(f'''s_mul_i32 {sT1}, {sKAP}, {64*3584}
        s_add_u32 m0, {sM0B}, {slot+16384}
        s_add_u32 {sT1}, {sT1}, {sW1OFF}
        ''', vW1, W1, sT1)
        g += grp(f'''s_add_u32 m0, {sM0B}, {slot+16384+4096}
        s_add_u32 {sT1}, {sT1}, {16*3584}
        ''', vW1, W1, sT1)
        g += grp(f'''s_lshl_b32 {sT0}, {sKAP}, 7
        s_add_u32 m0, {sM0B}, {slot}
        s_add_u32 {sT0}, {sT0}, {sXOFF}
        ''', vX, X, sT0)
        g += grp(f'''s_add_u32 {sKAP}, {sKAP}, 1
        s_and_b32 {sKAP}, {sKAP}, 7
        s_add_u32 m0, {sM0B}, {slot+4096}
        s_add_u32 {sT0}, {sT0}, 32768
        ''', vX, X, sT0)
        return g
    def w2_unit_ops(u):
        stage, uu = divmod(u, 7)
        goff = 256 * uu * 1024
        g = []
        for h in range(2):
            g += grp(f'''s_add_u32 m0, {sM0B}, {unit_addr(u)+4096*h}
            s_add_u32 {sT2}, {sW2B if stage else sW2A}, {goff+65536*h}
            ''', vW2, W2, sT2)
        return g
    for o in xsetup: a(o)
    a(f'''
    s_waitcnt lgkmcnt(0)
    s_mov_b64 s[12:13], {ka(1)}
    s_mov_b64 s[8:9], {ka(0)}
    ''')
    stream = []
    for s in range(8): stream += dma_stage_ops(s)
    for u in range(9): stream += w2_unit_ops(u)
    bar_at = {}
    for k in range(-1, 8):
        pos = 16 * (k + 2) + lead
        lim = 16 * (k + 4) if k < 4 else 128 + 8 * (1 + 2 * (k - 4))
        if k >= 0: pos = min(pos, lim)
        bar_at[pos] = k
    for i, o in enumerate(stream):
        if i in bar_at:
            k = bar_at[i]
            st(f'h:pa{k+1}')
            if k < 7: a(f's_waitcnt vmcnt({i - 16 * (k + 2)})')
            st(f'h:pb{k+1}')
            a('s_barrier')
            st(f'h:pc{k+1}')
        a(o)
        if i == 19:
            for z in w2setup: a(z)
    a('s_branch L_lpost')
    a('L_lspare:')
    a('s_waitcnt lgkmcnt(0)')
    for z in w2setup: a(z)
    for u in range(9):
        for o in w2_unit_ops(u): a(o)
    a('L_lpost:')
    st('h:w9')
    a(b2_load())
    a('s_waitcnt vmcnt(41)')
    a('s_barrier')
    a('s_waitcnt vmcnt(0)')
    final_setup()
    a('s_barrier')
    if lprio: a(f's_setprio {lprio}')
    for u in range(9, 14):
        for o in w2_unit_ops(u): a(o)
    st('h:w2issued')
    a('s_waitcnt vmcnt(0)')
    st('h:w2landed')
    a('s_barrier')
    a('s_branch L_final')

    a('L_serv:')
    ST = 64
    SA = 80
    vEPA, vPOLL = 17, 12
    a(f'''
    s_sub_u32 {sHW}, {sWAVE}, 6
    v_lshrrev_b32 v52, 4, v0
    v_and_b32 v53, 15, v0
    v_lshlrev_b32 v53, 4, v53
    v_lshl_add_u32 v53, v52, 10, v53
    s_lshl_b32 {sT0}, {sG}, 17
    s_lshl_b32 {sT1}, {sJ}, 13
    s_add_u32 {sT3}, {sT0}, {sT1}
    s_lshl_b32 {sT1}, {sHW}, 12
    s_add_u32 {sT3}, {sT3}, {sT1}
    s_lshl_b32 {sT1}, {sG}, 4
    v_mov_b32 v{vEPA}, {sT1}
    s_mov_b32 s30, 256
    s_mov_b32 s31, 0x20000
    s_add_u32 {sT2}, {sJ}, {sHW}
    s_waitcnt lgkmcnt(0)
    s_mov_b64 s[8:9], {ka(0)}
    s_mov_b64 s[28:29], {ka(6)}
    s_cmp_lg_u32 {sT2}, 0
    s_cbranch_scc1 L_s_nolead
    s_lshl_b32 {sT1}, s62, 4
    s_or_b32 {sT1}, {sT1}, 8
    v_mov_b32 v54, {sT1}
    s_mov_b64 exec, 1
    buffer_store_dword v54, v{vEPA}, {DBG}, 0 offen sc1
    s_mov_b64 exec, -1
    L_s_nolead:
    ''')
    for i in range(4):
        a(f'buffer_load_dwordx4 {vr(ST+4*i,4)}, v53, {X}, {sT3} offen offset:{256*i}')
    for z in common_setup() + ws_setup(): a(z)
    a(f'''
    s_mov_b32 {sONES}, 0x3f803f80
    s_lshl_b32 {sT0}, {sJ}, 6
    s_lshl_b32 {sT1}, {sHW}, 5
    s_add_u32 {sT0}, {sT0}, {sT1}
    s_add_u32 {sT0}, {sT0}, 1024
    v_lshlrev_b32 v55, 3, v52
    v_add_u32 v55, {sT0}, v55
    v_lshlrev_b32 v56, 4, v0
    s_add_u32 {sT3}, {sFLG}, 1024
    v_add_u32 v57, {XCH}, v56
    s_mov_b32 m0, {XCH}
    ''')
    for i in range(8): a(f'v_mov_b32 v{SA+i}, 0')
    for i in range(4):
        a(f's_waitcnt vmcnt({3-i + (1 if i else 0)})')
        if i == 0: a(f'buffer_load_dword v{vPOLL}, v{vEPA}, {DBG}, 0 offen sc1')
        for d in range(4):
            r = ST + 4 * i + d
            a(f'v_dot2_f32_bf16 v{SA+d}, v{r}, {sONES}, v{SA+d}')
            a(f'v_dot2_f32_bf16 v{SA+4+d}, v{r}, v{r}, v{SA+4+d}')
    a(f'''
    s_nop 2
    v_add_f32 v{SA}, v{SA}, v{SA+1}
    v_add_f32 v{SA+2}, v{SA+2}, v{SA+3}
    v_add_f32 v{SA+4}, v{SA+4}, v{SA+5}
    v_add_f32 v{SA+6}, v{SA+6}, v{SA+7}
    v_add_f32 v{SA}, v{SA}, v{SA+2}
    v_add_f32 v{SA+4}, v{SA+4}, v{SA+6}
    s_cmp_ge_u32 {sJ}, 14
    s_cbranch_scc1 L_s_nb0
    s_barrier
    L_s_nb0:
    ''')
    for mode in ('quad_perm:[1,0,3,2]', 'quad_perm:[2,3,0,1]', 'row_half_mirror', 'row_mirror'):
        a(f'''
        v_add_f32_dpp v{SA}, v{SA}, v{SA} {mode} row_mask:0xf bank_mask:0xf
        v_add_f32_dpp v{SA+4}, v{SA+4}, v{SA+4} {mode} row_mask:0xf bank_mask:0xf
        s_nop 1
        ''')
    a(f'''
    v_mul_f32 v{SA}, {f32(1.0/512)}, v{SA}
    v_mul_f32 v{SA+4}, {f32(1.0/512)}, v{SA+4}
    v_fma_f32 v{SA+4}, -v{SA}, v{SA}, v{SA+4}
    v_max_f32 v{SA+4}, 0, v{SA+4}
    v_cvt_pk_bf16_f32 v{SA+4}, v{SA+4}, v{SA+4}
    v_and_b32 v{SA+4}, {sMASK}, v{SA+4}
    v_add_f32 v{SA+4}, {f32(1e-5)}, v{SA+4}
    v_cvt_pk_bf16_f32 v{SA+4}, v{SA+4}, v{SA+4}
    v_and_b32 v{SA+4}, {sMASK}, v{SA+4}
    v_sqrt_f32 v{SA+4}, v{SA+4}
    s_nop 0
    v_cvt_pk_bf16_f32 v{SA}, -v{SA}, v{SA+4}
    ''')
    def bars(k0, k1, spare_sleep=0):
        if k1 <= k0: return
        l1, l2 = a.label('L_sb'), a.label('L_sb')
        a(f's_cmp_ge_u32 {sJ}, 14\ns_cbranch_scc1 {l1}')
        for k in range(k0, k1): a('s_barrier')
        if spare_sleep:
            a(f's_branch {l2}\n{l1}:\ns_sleep {spare_sleep}\n{l2}:')
        else:
            a(f'{l1}:')
    bars(0, svc[0] + 1)
    a(f'''
    L_s_ep:
    s_waitcnt vmcnt(0)
    v_readfirstlane_b32 {sEP}, v{vPOLL}
    s_cmp_lg_u32 {sEP}, 0
    s_cbranch_scc1 L_s_ep2
    {spin_guard('L_s_ep2')}
    s_sleep 2
    buffer_load_dword v{vPOLL}, v{vEPA}, {DBG}, 0 offen sc1
    s_branch L_s_ep
    L_s_ep2:
    s_or_b32 {sT0}, {sEP}, {sXCC}
    v_mov_b32 v{SA+1}, {sT0}
    s_mov_b32 exec_lo, 0x00010001
    s_mov_b32 exec_hi, 0x00010001
    buffer_store_dwordx2 {vr(SA,2)}, v55, {WS}, {sFLG} offen sc1
    s_mov_b64 exec, -1
    ''')
    st('s:pub')
    a(b2_load())
    bars(svc[0] + 1, svc[1] + 1, spare_sleep=48)
    a(f'''
    s_cmp_eq_u32 {sHW}, 1
    s_cbranch_scc1 L_s_g0
    buffer_load_dwordx4 v56, {WS}, {sT3} offen sc1 lds
    L_s_g0:
    ''')
    bars(svc[1] + 1, svc[2] + 1)
    a(f'''
    s_cmp_eq_u32 {sHW}, 1
    s_cbranch_scc1 L_s_g2
    L_s_g:
    s_waitcnt vmcnt(0)
    ds_read_b128 {vr(ST,4)}, v57
    s_waitcnt lgkmcnt(0)
    v_xor_b32 v{ST+1}, {sEP}, v{ST+1}
    v_xor_b32 v{ST+3}, {sEP}, v{ST+3}
    v_or_b32 v{ST+1}, v{ST+1}, v{ST+3}
    v_cmp_lt_u32 vcc, 7, v{ST+1}
    s_cbranch_vccz L_s_g2
    {spin_guard('L_s_g2')}
    s_sleep 4
    buffer_load_dwordx4 v56, {WS}, {sT3} offen sc1 lds
    s_branch L_s_g
    L_s_g2:
    ''')
    st('s:got')
    bars(svc[2] + 1, 8)
    a('s_waitcnt vmcnt(0)')
    final_setup()
    a('s_barrier')
    a('s_barrier')
    a('s_barrier')
    if wb:
        a(f'''
        s_cmp_lg_u32 {sWAVE}, 7
        s_cbranch_scc1 L_final
        s_cmp_lg_u32 {sJ}, 15
        s_cbranch_scc1 L_final
        buffer_wbl2 sc1
        ''')
    a('s_branch L_final')

    a('L_comp:')
    aB, aA, aW = 2, 4, 8
    vHS, vHL, vPOLL, vPA = 10, 11, 12, 13
    vXA, vTA = 14, 15
    vFLAGA, vFLAGV, vRA = 17, 18, 19
    vKC, vS = 20, 28
    ACC, FR, GT = 32, 96, 224
    vBAUG, vAAUG = FR, GT + 24
    CS, vONE, vBI = GT + 16, GT + 28, GT + 5
    q = [GT + 8 + i for i in range(8)]
    tm, tq, tr, tc, t4, t5, t6, t7 = q
    a(f'''
    s_lshr_b32 {sWM}, {sWAVE}, 1
    s_and_b32 {sWN}, {sWAVE}, 1
    v_and_b32 v{tm}, 15, v0
    v_lshrrev_b32 v{tq}, 4, v0
    v_lshrrev_b32 v{t4}, 1, v{tm}
    v_xor_b32 v{t4}, v{t4}, v{tq}
    v_lshlrev_b32 v{t4}, 4, v{t4}
    v_lshl_add_u32 v{t4}, v{tm}, 7, v{t4}
    s_lshl_b32 {sT0}, {sWM}, 13
    v_add_u32 v{aB}, {sT0}, v{t4}
    v_xor_b32 v{aB+1}, 64, v{aB}
    v_lshrrev_b32 v{tr}, 2, v{tm}
    v_and_b32 v{tc}, 3, v{tm}
    v_and_b32 v{t5}, 1, v{tq}
    v_lshl_or_b32 v{t5}, v{t5}, 2, v{tr}
    v_lshl_add_u32 v{t6}, v{tq}, 3, v{tr}
    v_lshlrev_b32 v{t6}, 8, v{t6}
    v_lshl_add_u32 v{t6}, v{tc}, 3, v{t6}
    v_add_u32 v{t6}, 16384, v{t6}
    s_lshl_b32 {sT0}, {sWN}, 2
    s_lshl_b32 {sT1}, {sWM}, 1
    s_or_b32 {sT0}, {sT0}, {sT1}
    v_xor_b32 v{t5}, {sT0}, v{t5}
    v_lshl_add_u32 v{aA}, v{t5}, 5, v{t6}
    v_xor_b32 v{aA+1}, 32, v{aA}
    v_xor_b32 v{aA+2}, 64, v{aA}
    v_xor_b32 v{aA+3}, 96, v{aA}
    s_mov_b32 {sONES}, 0x3f803f80
    v_mov_b32 v{vONE}, {sONES}
    v_mov_b32 v{vONE+1}, {sONES}
    v_mov_b32 v{vONE+2}, {sONES}
    v_mov_b32 v{vONE+3}, {sONES}
    s_waitcnt lgkmcnt(0)
    ''')
    setup2 = common_setup() + ws_setup() + lines(f'''
    v_lshlrev_b32 v{vHL}, 4, v0
    v_lshrrev_b32 v{t4}, 5, v0
    v_lshl_add_u32 v{t6}, v{t4}, 2, v{tr}
    v_lshlrev_b32 v{t6}, 7, v{t6}
    v_lshl_add_u32 v{t6}, v{tc}, 3, v{t6}
    v_and_b32 v{t5}, 1, v{tq}
    v_lshl_add_u32 v{t6}, v{t5}, 5, v{t6}
    v_lshrrev_b32 v{t5}, 1, v{tr}
    v_lshl_add_u32 v{t6}, v{t5}, 6, v{t6}
    s_lshl_b32 {sT0}, {sWN}, 12
    s_add_u32 {sT0}, {sT0}, {unit_addr(0)}
    v_add_u32 v{aW}, {sT0}, v{t6}
    v_xor_b32 v{aW+1}, 64, v{aW}
    v_min_u32 v{vPA}, 13, v0
    v_lshlrev_b32 v{vPA}, 2, v{vPA}
    s_lshl_b32 {sT0}, {sR}, 1
    s_add_u32 {sT0}, {sT0}, {sWN}
    s_lshl_b32 {sT0}, {sT0}, 7
    v_add_u32 v{vPA}, {sT0}, v{vPA}
    s_mul_i32 {sHB}, {sG}, {H_G}
    s_mul_i32 {sT0}, {sWN}, {H_KH}
    s_add_u32 {sHB}, {sHB}, {sT0}
    s_mul_i32 {sT0}, {sR}, {H_WM}
    s_add_u32 {sHC}, {sHB}, {sT0}
    s_mul_i32 {sT0}, {sWM}, {H_MB}
    s_add_u32 {sHC}, {sHC}, {sT0}
    v_lshlrev_b32 v{vTA}, 6, v{tm}
    v_add_u32 v{vTA}, {XCH+4}, v{vTA}
    v_and_b32 v16, 31, v0
    v_lshlrev_b32 v16, 8, v16
    v_xor_b32 v{t5}, v{t4}, v{tm}
    v_lshl_add_u32 v16, v{t5}, 4, v16
    s_lshl_b32 {sT0}, {sWN}, 14
    s_lshl_b32 {sT1}, {sWM}, 13
    s_add_u32 {sT0}, {sT0}, {sT1}
    s_add_u32 {sT0}, {sT0}, {RED}
    v_add_u32 v16, {sT0}, v16
    ''')
    vRW = 16
    setup1 = lines(f'''
    s_mov_b64 s[32:33], {ka(2)}
    s_mov_b32 s34, 3584
    s_mov_b32 s35, 0x20000
    v_lshlrev_b32 v{t7}, 1, v{tm}
    s_lshl_b32 {sT0}, {sJ}, 8
    s_lshl_b32 {sT1}, {sWN}, 7
    s_add_u32 {sT0}, {sT0}, {sT1}
    s_lshl_b32 {sT1}, {sWM}, 6
    s_add_u32 {sT0}, {sT0}, {sT1}
    ''') + [(f'buffer_load_ushort v{vBI}, v{t7}, {B1}, {sT0} offen', 'bias'),
            (f'buffer_load_ushort v{vBI+1}, v{t7}, {B1}, {sT0} offen offset:32', 'bias')] + lines(f'''
    v_lshlrev_b32 v{vHS}, 4, v{tm}
    v_lshl_add_u32 v{vHS}, v{tq}, 9, v{vHS}
    s_mul_i32 {sT0}, {sWM}, {H_WM}
    s_add_u32 {sHB}, {sHB}, {sT0}
    s_lshl_b32 {sT0}, {sJ}, 11
    s_add_u32 {sHB}, {sHB}, {sT0}
    s_lshl_b32 {sT0}, {sWAVE}, 7
    s_lshl_b32 {sT1}, {sJ}, 2
    s_add_u32 {sT0}, {sT0}, {sT1}
    v_mov_b32 v{vFLAGA}, {sT0}
    s_mov_b32 {sSEL0}, 0x01000100
    s_mov_b32 {sSEL1}, 0x07060302
    s_mov_b32 {sSEL2}, 0x05040302
    s_mov_b64 s[100:101], 0xffff
    v_lshlrev_b32 v{vRA}, 3, v{tm}
    s_lshl_b32 {sT0}, {sWM}, 9
    s_add_u32 {sT0}, {sT0}, {XCH}
    v_add_u32 v{vRA}, {sT0}, v{vRA}
    s_lshl_b32 {sT0}, {sWAVE}, 10
    s_add_u32 {sT0}, {sT0}, {XCH2}
    v_add_u32 v{vXA}, {sT0}, v{vHL}
    v_xor_b32 v1, 2048, v{vXA}
    ''')
    V = VQ(a)
    L = LQ(a)
    def put(o):
        if callable(o): o()
        elif isinstance(o, tuple): a(o[0]); V.op(o[1])
        elif o.startswith('ds_'): L.op(o)
        else: a(o)
    def poll_h_issue(stage):
        a(f'buffer_load_dword v{vPOLL}, v{vPA}, {WS}, {sFLG} offen offset:{64*stage} sc1'); V.op('p')
    def poll_h_check(stage, sleep=1):
        l1, l2, l3 = a.label('L_ph'), a.label('L_ph'), a.label('L_ph')
        V.need('p')
        a(f'''
        {l1}:
        v_cmp_ne_u32 vcc, {sEP}, v{vPOLL}
        s_cbranch_vccnz {l3}
        {l2}:
        ''')
        tail(f'''
        {l3}:
        {spin_guard(l2)}
        s_sleep {sleep}
        buffer_load_dword v{vPOLL}, v{vPA}, {WS}, {sFLG} offen offset:{64*stage} sc1
        s_waitcnt vmcnt(0)
        s_branch {l1}
        ''')
    NS = 8
    def wreads_at(n, base):
        ad = unit_addr(n // 2) + 8192 * (n % 2)
        fb = FR + 16 * ((n + 1) % NS)
        return [f'ds_read_b64_tr_b16 {vr(fb+8*ph+4*dl+2*h,2)}, v{aW+dl} offset:{ad-base+1024*ph+2048*h}'
                for ph in range(2) for dl in range(2) for h in range(2)]
    def rebase(delta): return [f'v_add_u32 v{aW+dl}, {delta & 0xffffffff:#x}, v{aW+dl}' for dl in range(2)]
    def pf_list(b):
        if b == 0: return wreads_at(0, unit_addr(0)) + wreads_at(1, unit_addr(0)) + rebase(-unit_addr(0)) + wreads_at(2, 0) + wreads_at(3, 0)
        return sum((wreads_at(n, 0) for n in range(4, 8)), [])
    for o in setup2: put(o)
    a(f'''
    s_cmp_lt_u32 {sJ}, 14
    s_cbranch_scc1 L_c_reg
    ''')
    a(b2_load())
    a('s_barrier')
    a(f'ds_read_b32 v1, v{vTA}')
    for o in pf_list(0) + pf_list(1): a(o)
    a('s_waitcnt vmcnt(0) lgkmcnt(0)')
    a('s_barrier')
    a(f'v_readfirstlane_b32 {sEP}, v1')
    final_setup()
    a(f's_andn2_b32 {sEP}, {sEP}, 7')
    poll_h_issue(0)
    poll_h_check(0, sleep=12)
    a('s_branch L_c_p2')
    a('L_c_reg:')
    V.q = []; L.q = []
    for o in setup1: put(o)
    def reads(s):
        so = (s & 1) * SLOT
        out = []
        for ks in range(2):
            fb = FR + 64 * (s & 1) + 32 * ks
            rb = [f'ds_read_b128 {vr(fb+4*mt,4)}, v{aB+ks} offset:{so+2048*mt}' for mt in range(4)]
            ra = [[f'ds_read_b64_tr_b16 {vr(fb+16+4*t+2*h,2)}, v{aA+t} offset:{so+8192*ks+1024*h}' for h in range(2)] for t in range(4)]
            out += ra[0] + rb + ra[1] + ra[2] + ra[3]
        return out
    def mfmas(s):
        out = []
        for ks in range(2):
            fb = FR + 64 * (s & 1) + 32 * ks
            for t in range(4):
                if t < 2:
                    c = '0' if (s == 0 and ks == 0) else vr(CS + 4 * t, 4)
                    out.append(f'v_mfma_f32_16x16x32_bf16 {vr(CS+4*t,4)}, {vr(vONE,4)}, {vr(fb+16+4*t,4)}, {c}')
                for mt in range(4):
                    d = ACC + 4 * (4 * mt + t)
                    c = '0' if (s == 0 and ks == 0) else vr(d, 4)
                    out.append(f'v_mfma_f32_16x16x32_bf16 {vr(d,4)}, {vr(fb+16+4*t,4)}, {vr(fb+4*mt,4)}, {c}')
        return out
    toggle = [f'v_xor_b32 v{r}, 0x10000, v{r}' for r in range(aB, aB + 6)]
    st('c:rdy')
    a('s_barrier')
    st('c:B0')
    for o in reads(0): L.op(o)
    NM = 36
    chks = chk if isinstance(chk, (list, tuple)) else [chk] * 8
    for s in range(8):
        ms = mfmas(s)
        slots = [[] for _ in range(NM)]
        c = chks[s]
        def barfn(s=s):
            L.drain(); st(f'c:A{s+1}'); a('s_barrier'); st(f'c:B{s+1}')
        slots[c].append(barfn)
        if s < 7:
            rd = reads(s + 1)
            per = 1 if NM - c - 1 >= 24 else 2
            if s % 2 == 1:
                for i, t in enumerate(toggle): slots[i * c // 6].append(t)
                slots[c].remove(barfn); slots[c].append(barfn)
            k = 0; i = c
            while k < len(rd):
                slots[i] += rd[k:k+per]; k += per; i += 1
        else:
            ex = [f'ds_read_b32 v{GT+mt}, v{vRA} offset:{128*mt}' for mt in range(4)]
            ex += [f'ds_read_b32 v{GT+4}, v{vTA}']
            for i in range(5): slots[i].insert(0, ex[i])
            ex = [(b2_load(), 'b2')]
            for mt in range(4):
                ex += [f'v_cndmask_b32 v{vBAUG+2*mt+1}, 0, v{GT+mt}, s[100:101]',
                       f'v_and_b32 v{vS+mt}, {sMASK}, v{GT+mt}',
                       f'v_perm_b32 v{vBAUG+2*mt}, v{vBAUG+2*mt+1}, v{vBAUG+2*mt+1}, {sSEL0}',
                       f'v_rcp_f32 v{GT+mt}, v{vS+mt}']
            ex += [f'v_readfirstlane_b32 {sEP}, v{GT+4}']
            for mt in range(4):
                ex += [f'v_mul_f32 v{vKC+2*mt}, {f32(K1C)}, v{GT+mt}',
                       f'v_mul_f32 v{vKC+2*mt+1}, v{GT+mt}, v{GT+mt}',
                       f'v_mul_f32 v{GT+mt}, {f32(K3C)}, v{GT+mt}',
                       f'v_mul_f32 v{vKC+2*mt+1}, v{vKC+2*mt+1}, v{GT+mt}']
            ex += [f's_andn2_b32 {sEP}, {sEP}, 7', f's_or_b32 {sT0}, {sEP}, {sXCC}',
                   f'v_cmp_ne_u32 s[98:99], {sT0}, v{GT+4}', f'v_mov_b32 v{vFLAGV}, {sEP}']
            if force_slow: ex.append('s_mov_b64 s[98:99], -1')
            assert 5 <= c <= 8
            k = 0
            for i in range(c + 1, 29):
                slots[i] += ex[k:k+2]; k += 2
            assert k >= len(ex)
            ex = [lambda: V.need('bias')]
            for t in range(2):
                cc = CS + 4 * t
                ex += [f'v_and_b32 v{cc+1}, {sMASK}, v{cc}',
                       f'v_sub_f32 v{cc+1}, v{cc}, v{cc+1}',
                       f'v_and_b32 v{cc+2}, {sMASK}, v{cc+1}',
                       f'v_sub_f32 v{cc+2}, v{cc+1}, v{cc+2}',
                       f'v_perm_b32 v{vAAUG+2*t}, v{cc+1}, v{cc}, {sSEL1}',
                       f'v_perm_b32 v{vAAUG+2*t+1}, v{vBI+t}, v{cc+2}, {sSEL2}']
            ex += [f'ds_write_b128 v{vXA}, {vr(vAAUG,4)}']
            k = 0
            for i in range(29, 36):
                slots[i] += ex[k:k+2]; k += 2
            assert k >= len(ex)
        st(f'c:S{s}')
        fb = FR + 64 * (s & 1)
        for i, m in enumerate(ms):
            if i == 0: L.need(set(range(fb, fb + 24)))
            L.mfma(m)
            for o in slots[i]: put(o)
    st('c:kend')
    def aug(ts):
        return [f'v_mfma_f32_16x16x16_bf16 {vr(ACC+4*(4*mt+t),4)}, {vr(vAAUG+2*t,2)}, {vr(vBAUG+2*mt,2)}, {vr(ACC+4*(4*mt+t),4)}'
                for mt in range(4) for t in ts]
    a('s_nop 0')
    for m in aug((0, 1)): L.mfma(m)
    a('s_nop 1')
    st('c:aug')
    def store2(ins, tag):
        l1 = a.label('L_s')
        a(f'''
        s_cbranch_scc0 {l1}a
        {ins}
        {l1}:
        ''')
        tail(f'''
        {l1}a:
        {ins} sc1
        s_branch {l1}
        ''')
        V.op(tag)
    def flag_h(stage):
        V.need(f'h{stage}')
        a('s_mov_b64 exec, 1')
        a('s_cmp_eq_u64 s[98:99], 0')
        store2(f'buffer_store_dword v{vFLAGV}, v{vFLAGA}, {WS}, {sFLG} offen offset:{64*stage}', 'f')
        a('s_mov_b64 exec, -1')
    idx = 0
    for stg in range(2):
        for mt in range(4):
            A = ACC + 16 * mt + 8 * stg
            T = GT + 8 * (idx & 1)
            O = GT + 16 + 4 * (idx & 3)
            P = lambda r: vr(r, 2)
            kc = vr(vKC + 2 * mt, 2)
            s_ = vr(vS + (mt & ~1), 2)
            ssel = 'op_sel:[0,1,1] op_sel_hi:[1,1,1]' if mt & 1 else 'op_sel_hi:[1,0,0]'
            mids = []
            if idx == 3:
                L.drain(); st('c:Xa'); a('s_barrier'); st('c:Xb')
                L.op(f'ds_read_b128 {vr(vAAUG+4,4)}, v1')
            if idx == pfat[1] + 1:
                L.drain(); st('c:Ya'); a('s_barrier'); st('c:Yb')
            for b in range(2):
                if idx == pfat[b]: mids = pf_list(b)
            body = []
            for i in range(0, 8, 2): body.append(f'v_pk_mul_f32 {P(T+i)}, {P(A+i)}, {P(A+i)}')
            for i in range(0, 8, 2): body.append(f'v_pk_fma_f32 {P(T+i)}, {P(T+i)}, {kc}, {kc} op_sel:[0,1,0] op_sel_hi:[1,1,0]')
            for i in range(0, 8, 2): body.append(f'v_pk_mul_f32 {P(T+i)}, {P(A+i)}, {P(T+i)}')
            for i in range(8): body.append(f'v_exp_f32 v{T+i}, v{T+i}')
            for i in range(0, 8, 2): body.append(f'v_pk_fma_f32 {P(T+i)}, {P(T+i)}, {s_}, {s_} {ssel}')
            for i in range(8): body.append(f'v_rcp_f32 v{T+i}, v{T+i}')
            for i in range(0, 8, 2): body.append(f'v_pk_mul_f32 {P(T+i)}, {P(A+i)}, {P(T+i)}')
            for i in range(4): body.append(f'v_cvt_pk_bf16_f32 v{O+i}, v{T+2*i}, v{T+2*i+1}')
            am = aug((2, 3)) if idx == 3 else []
            for i, o in enumerate(body):
                if am and 24 <= i < 32: L.mfma(am[i - 24])
                a(o)
                if i < len(mids): put(mids[i])
            a(f's_add_u32 {sT0}, {sHB}, {(mt>>1)*H_MB + stg*H_ST}')
            a('s_cmp_eq_u64 s[98:99], 0')
            store2(f'buffer_store_dwordx4 {vr(O,4)}, v{vHS}, {WS}, {sT0} offen offset:{256*(mt&1)}', f'h{stg}')
            st(f'c:g{idx}')
            idx += 1
            if idx == flagat:
                flag_h(0)
                st('c:flagA')
            if idx == 7 and earlypoll: poll_h_issue(0)
    if not earlypoll: poll_h_issue(0)
    if pfat[1] == 7:
        L.drain(); a('s_barrier')
    final_setup()
    if earlypoll:
        poll_h_check(0)
        flag_h(1)
    else:
        flag_h(1)
        poll_h_check(0)
    st('c:seenA')
    a('L_c_p2:')
    ACC2 = GT
    HR = ACC
    V.q = []; L.q = []
    def hload(n):
        r = HR + 8 * (n % D)
        pre = f's_add_u32 {sT3}, {sHC}, {2048*n}\n' if n % 2 == 0 else ''
        o = 2048 * (n % 2)
        return [pre + f'buffer_load_dwordx4 {vr(r,4)}, v{vHL}, {WS}, {sT3} offen offset:{o} sc1',
                f'buffer_load_dwordx4 {vr(r+4,4)}, v{vHL}, {WS}, {sT3} offen offset:{o+1024} sc1']
    cur_base = [0]
    def wreads(n):
        ad = unit_addr(n // 2) + 8192 * (n % 2)
        pre = []
        if not (0 <= ad - cur_base[0] <= 65535 - 8192):
            pre = rebase(ad - cur_base[0]); cur_base[0] = ad
        return pre + wreads_at(n, cur_base[0])
    pending = []
    for n in range(28):
        for ph, o in enumerate(hload(n)): pending.append((n, ph, o))
    def issue_h():
        n, ph, o = pending.pop(0)
        if n == 14 and ph == 0: poll_h_check(1)
        a(o); V.op((n, ph))
    for k in range(2 * ramp): issue_h()
    PD = 4
    assert 11 - PD < zat <= 18 - PD
    for n in range(28):
        fb = FR + 16 * ((n + 1) % NS)
        hr = HR + 8 * (n % D)
        st(f'c:n{n}')
        fill = []
        m = n + PD
        if n == zat:
            L.drain(); st('c:Za'); a('s_barrier'); st('c:Zb')
        if 8 <= m < 28: fill += wreads(m)
        if n == pollb: fill.append(lambda: poll_h_issue(1))
        if n == 27: fill += [f'v_xor_b32 v{HR+i}, {32*i}, v{vRW}' for i in range(1, 8)]
        per = (len(fill) + 2) // 3
        k = 0
        i = 0
        for ph in range(2):
            for dl in range(2):
                d = ACC2 + 16 * dl
                c = '0' if (n == 0 and ph == 0) else vr(d, 16)
                if dl == 0:
                    vc = V.count((n, ph))
                    lc = L.count(set(range(fb, fb + 16))) if ph == 0 else None
                    w = ([f'vmcnt({vc})'] if vc is not None else []) + ([f'lgkmcnt({lc})'] if lc is not None else [])
                    if w: a('s_waitcnt ' + ' '.join(w))
                a(f'v_mfma_f32_32x32x16_bf16 {vr(d,16)}, {vr(fb+8*ph+4*dl,4)}, {vr(hr+4*ph,4)}, {c}')
                for o in fill[k:k+per]: put(o)
                k += per
                if i >= 1 and pending and pending[0][0] <= n - 1 + D and (i != 2 or pending[0][0] < n - 1 + D):
                    issue_h()
                i += 1
    assert not pending
    st('c:p2end')
    a('s_nop 9')
    for dl in range(2):
        for g in range(4):
            i = 4 * dl + g
            ad = vRW if i == 0 else HR + i
            a(f'ds_write_b128 v{ad}, {vr(ACC2+16*dl+4*g,4)}')
    a('s_waitcnt lgkmcnt(0)')
    a('L_final:')
    a('s_barrier')
    st('c:W4')
    R = 64
    a(f'''
    ds_read_b128 {vr(R,4)}, v{vFA0}
    ds_read_b128 {vr(R+8,4)}, v{vFA0} offset:16384
    ds_read_b128 {vr(R+4,4)}, v{vFA1}
    ds_read_b128 {vr(R+12,4)}, v{vFA1} offset:16384
    s_lshl_b32 {sT0}, {sG}, 17
    s_lshl_b32 {sT1}, {sR}, 16
    s_add_u32 {sT0}, {sT0}, {sT1}
    s_lshl_b32 {sT1}, {sC}, 7
    s_add_u32 {sT0}, {sT0}, {sT1}
    s_waitcnt lgkmcnt(0)
    ''')
    for i in range(4): a(f'v_pk_add_f32 {vr(R+2*i,2)}, {vr(R+2*i,2)}, {vr(R+8+2*i,2)}')
    for i in range(4): a(f'v_cvt_pk_bf16_f32 v{R+8+i}, v{R+2*i}, v{R+2*i+1}')
    for i in range(4):
        a(f'v_lshlrev_b32 v{R+2*i}, 16, v{R+8+i}')
        a(f'v_and_b32 v{R+2*i+1}, {sMASK}, v{R+8+i}')
    for i in range(4): a(f'v_pk_add_f32 {vr(R+2*i,2)}, {vr(R+2*i,2)}, {vr(vB2f+2*i,2)}')
    for i in range(4): a(f'v_cvt_pk_bf16_f32 v{R+12+i}, v{R+2*i}, v{R+2*i+1}')
    a(f'buffer_store_dwordx4 {vr(R+12,4)}, v{vOUTO}, {OUT}, {sT0} offen {outaux}')
    if stamps:
        a('s_waitcnt vmcnt(0)')
        st('c:end')
        a(f'''
        s_cmp_eq_u32 {sWAVE}, {hst}
        s_cbranch_scc1 L_sth
        s_cmp_eq_u32 {sWAVE}, 6
        s_cbranch_scc1 L_sts
        s_cmp_lg_u32 {sWAVE}, {cst}
        s_cbranch_scc1 L_end
        ''')
        st_flush('c:')
        a('s_branch L_end')
        a('L_sts:')
        st_flush('s:')
        a('s_branch L_end')
        a('L_sth:')
        st_flush('h:')
    if padend:
        a(f'''
        L_pad:
        s_memrealtime s[94:95]
        s_waitcnt lgkmcnt(0)
        s_sub_u32 s94, s94, s62
        s_cmp_lt_u32 s94, {padend}
        s_cbranch_scc1 L_pad
        ''')
    a('s_endpgm')
    body = a.text() + tail.text() + 'L_end:\n'
    return make_file([(KNAME, body, 256, 102, 256)], [(KNAME, 256, 512, 163840)])

ST_MAIN = ['c:start', 'c:B0', 'c:kend', 'c:flagA', 'c:seenA', 'c:n1', 'c:p2end', 'c:end']
ST_K = ['c:start', 'c:rdy@', 'c:B0@', 'c:B1@', 'c:B3@', 'c:B5@', 'c:B7@', 'c:kend@']
ST_G = ['c:start', 'c:kend@', 'c:Xa@', 'c:Xb@', 'c:flagA@', 'c:Yb@', 'c:g7@', 'c:seenA@']
ST_P = ['c:start', 'c:seenA@', 'c:n1@', 'c:Za@', 'c:Zb@', 'c:p2end@', 'c:W4@', 'c:end@']
ST_H = ['c:start', 'h:pa0@', 'h:pb0@', 'h:pa4@', 'h:pb4@', 'h:pc4@', 'h:w9@', 'h:w2landed@']
if __name__ == '__main__':
    names = []
    def g(nm, **kw):
        open(nm + '.s', 'w').write(gen(**kw)); names.append(nm)
    g('k7')
    g('k7s', stamps=ST_MAIN)
    g('k7k', stamps=ST_K)
    g('k7g', stamps=ST_G)
    g('k7p', stamps=ST_P)
    g('k7h', stamps=ST_H)
    print(' '.join(names))
```

```python
import sys, struct, re
from asmlib import *
from gen4 import LQ, VQ, f32, vr, regs_of, K1C, K3C

H_G, H_WM, H_MB, H_KH, H_ST, H_J = 458752, 229376, 114688, 57344, 28672, 2048
FLAG_BASE = 8 << 20
WS_SIZE = 16 << 20
SLOT = 32768
XCH = 147456
XCH2 = XCH + 4096
RED = 49152
def unit_addr(u): return 147456 if u == 13 else ((u + 8) % 9) * 16384

def gen(stamps=None, D=8, rot='xj', force_slow=False, padend=0, outaux='sc1', ramp=4, earlypoll=False, wb=False,
        hst=4, cst=0, pfat=(4, 5), flagat=6, chk=6, lead=24, lprio=0, pollb=3, zat=12, svc=(0, 3, 5), padat=None, rst=True):
    a = Asm()
    tail = Asm()
    NST = 12
    sWAVE, sG, sJ, sR, sC = 's3', 's4', 's5', 's6', 's7'
    X, W1, W2, WS, OUT, DBG, B1, B2 = 's[8:11]', 's[12:15]', 's[16:19]', 's[20:23]', 's[24:27]', 's[28:31]', 's[32:35]', 's[36:39]'
    sXCC, sHW = 's41', 's42'
    sT0, sT1, sT2, sT3 = 's43', 's44', 's45', 's46'
    sXOFF, sW1OFF, sW2A, sFLG, sHB, sW2B, sM0B, sKAP = 's47', 's48', 's49', 's50', 's51', 's52', 's53', 's54'
    sMASK, sONES, sSPIN = 's55', 's56', 's57'
    sWM, sWN, sEP, sHC = 's58', 's59', 's60', 's61'
    sSEL0, sSEL1, sSEL2 = 's40', 's94', 's95'
    KA = 80 if stamps else 64
    stamps = stamps or []
    SB = 64
    assert len(stamps) <= 8 or True
    def ka(i): return f's[{KA+2*i}:{KA+2*i+1}]'
    def st(name):
        if padat and name == padat[0]:
            lab = a.label('L_padp')
            a(f'''
            {lab}:
            s_memrealtime s[92:93]
            s_waitcnt lgkmcnt(0)
            s_sub_u32 s92, s92, s62
            s_cmp_lt_u32 s92, {padat[1]}
            s_cbranch_scc1 {lab}
            ''')
        for suffix, ins in (('', 's_memrealtime'), ('@', 's_memtime')):
            if name + suffix in stamps:
                i = stamps.index(name + suffix); a(f'{ins} s[{SB+2*i}:{SB+2*i+1}]')
    def st_flush(pref):
        a('s_waitcnt lgkmcnt(0)')
        a(f's_load_dwordx2 s[90:91], s[0:1], 56')
        a('s_waitcnt lgkmcnt(0)')
        stamp_setup(a, NST)
        a('v_mov_b32 v250, 0')
        for i, n in enumerate(stamps):
            if not n.startswith(pref): continue
            if n == 'c:start': a(f's_mov_b64 s[{SB+2*i}:{SB+2*i+1}], s[62:63]')
            if n.endswith('@'):
                a(f's_sub_u32 s{SB+2*i}, s{SB+2*i}, s96')
                a(f's_add_u32 s{SB+2*i}, s{SB+2*i}, s62')
                a(f's_addc_u32 s{SB+2*i+1}, s63, 0')
            a(f'v_mov_b32 v252, s{SB+2*i}')
            a(f'v_mov_b32 v253, s{SB+2*i+1}')
            a(f'global_store_dwordx2 v250, v[252:253], s[90:91] offset:{i*8}')
            a('s_nop 1')
    assert len(stamps) <= 8
    if stamps: sSEL1, sSEL2 = 's33', 's32'
    sSEL1, sSEL2 = 's12', 's13'

    vB2raw, vB2f, vFA0, vFA1, vOUTO, vRW = 2, 20, 28, 29, 30, 31
    a(f'''
    s_cmp_ge_u32 s2, 256
    s_cbranch_scc1 L_end
    s_load_dwordx16 s[{KA}:{KA+15}], s[0:1], 0
    s_memrealtime s[62:63]
    ''')
    if stamps: a('s_memtime s[96:97]')
    a(f'''
    v_lshrrev_b32 v1, 6, v0
    v_and_b32 v0, 63, v0
    s_and_b32 {sT0}, s2, 7
    v_readfirstlane_b32 {sWAVE}, v1
    s_lshr_b32 {sT1}, s2, 3
    s_lshr_b32 {sT2}, {sT1}, 4
    s_lshl_b32 {sG}, {sT0}, 1
    s_add_u32 {sG}, {sG}, {sT2}
    s_and_b32 {sJ}, {sT1}, 15
    s_mov_b32 s10, 2097152
    s_mov_b32 s11, 0x20000
    s_cmp_lt_u32 {sWAVE}, 4
    s_cbranch_scc1 L_comp
    s_cmp_ge_u32 {sWAVE}, 6
    s_cbranch_scc1 L_serv
    ''')
    def lines(s): return [l.strip() for l in s.strip().split('\n') if l.strip()]
    def common_setup():
        return lines(f'''
        s_mov_b32 {sC}, {sJ}
        s_cmp_eq_u32 {sJ}, 14
        s_cselect_b32 {sC}, 11, {sC}
        s_cmp_eq_u32 {sJ}, 11
        s_cselect_b32 {sC}, 14, {sC}
        s_lshr_b32 {sR}, {sC}, 3
        s_and_b32 {sC}, {sC}, 7
        s_mov_b32 {sMASK}, 0xffff0000
        s_mov_b32 {sSPIN}, 0x40000
        s_mov_b64 s[36:37], {ka(4)}
        s_mov_b32 s38, 1024
        s_mov_b32 s39, 0x20000
        s_mov_b64 s[24:25], {ka(5)}
        s_mov_b32 s26, 2097152
        s_mov_b32 s27, 0x20000
        ''')
    def ws_setup():
        return lines(f'''
        s_mov_b64 s[20:21], {ka(7)}
        s_mov_b32 s22, {WS_SIZE}
        s_mov_b32 s23, 0x20000
        s_getreg_b32 {sXCC}, hwreg(HW_REG_XCC_ID, 0, 3)
        s_lshl_b32 {sFLG}, {sG}, 11
        s_add_u32 {sFLG}, {sFLG}, {FLAG_BASE}
        ''')
    def b2_load():
        return f'''v_and_b32 v{vB2raw+4}, 7, v0
        v_lshlrev_b32 v{vB2raw+4}, 4, v{vB2raw+4}
        s_lshl_b32 {sT0}, {sC}, 7
        buffer_load_dwordx4 {vr(vB2raw,4)}, v{vB2raw+4}, {B2}, {sT0} offen'''
    def final_setup():
        for i in range(4):
            a(f'v_lshlrev_b32 v{vB2f+2*i}, 16, v{vB2raw+i}')
            a(f'v_and_b32 v{vB2f+2*i+1}, {sMASK}, v{vB2raw+i}')
        a(f'''
        v_lshrrev_b32 v{vFA1}, 3, v0
        s_lshl_b32 {sT0}, {sWAVE}, 3
        v_add_u32 v{vFA1}, {sT0}, v{vFA1}
        v_lshl_add_u32 v{vOUTO}, v{vFA1}, 10, v{vB2raw+4}
        v_and_b32 v{vFA0}, 7, v0
        v_lshlrev_b32 v{vFA0}, 1, v{vFA0}
        v_and_b32 v{vB2raw}, 15, v{vFA1}
        v_xor_b32 v{vFA0}, v{vFA0}, v{vB2raw}
        v_lshlrev_b32 v{vFA0}, 4, v{vFA0}
        v_lshl_add_u32 v{vFA0}, v{vFA1}, 8, v{vFA0}
        v_add_u32 v{vFA0}, {RED}, v{vFA0}
        v_xor_b32 v{vFA1}, 16, v{vFA0}
        ''')
    def spin_guard(lab):
        return f'''s_cmp_le_i32 {sSPIN}, 0
        s_cbranch_scc1 {lab}
        s_sub_u32 {sSPIN}, {sSPIN}, 1'''

    vX, vW1, vW2 = 32, 36, 40
    if rot == 'none': a(f's_mov_b32 {sKAP}, 0')
    elif rot == 'x': a(f's_mov_b32 {sKAP}, {sT0}')
    elif rot == 'xj': a(f's_add_u32 {sKAP}, {sT0}, {sJ}\ns_and_b32 {sKAP}, {sKAP}, 7')
    a(f'''
    s_sub_u32 {sHW}, {sWAVE}, 4
    v_lshrrev_b32 v49, 4, v0
    v_and_b32 v51, 15, v0
    v_mul_u32_u24 v53, 3584, v49
    v_lshlrev_b32 v52, 1, v49
    v_xor_b32 v52, v52, v51
    v_lshl_add_u32 v{vW1}, v52, 4, v53
    v_add_u32 v{vW1+1}, {4*3584-1024}, v{vW1}
    v_xor_b32 v52, 8, v52
    v_lshl_add_u32 v52, v52, 4, v53
    v_add_u32 v{vW1+2}, {(4*3584-1024)*2}, v52
    v_add_u32 v{vW1+3}, {(4*3584-1024)*3}, v52
    s_mul_i32 {sW1OFF}, {sHW}, {32*3584}
    s_lshl_b32 {sT0}, {sJ}, 8
    s_add_u32 {sW1OFF}, {sW1OFF}, {sT0}
    s_lshl_b32 {sM0B}, {sHW}, 13
    s_mov_b32 s14, 1835008
    s_mov_b32 s15, 0x20000
    v_lshrrev_b32 v48, 3, v0
    v_and_b32 v50, 7, v0
    s_cmp_ge_u32 {sJ}, 14
    s_cbranch_scc1 L_lspare
    ''')
    xsetup = lines(f'''
    v_xor_b32 v52, v49, v50
    v_lshlrev_b32 v52, 4, v52
    v_lshl_add_u32 v{vX}, v48, 10, v52
    v_xor_b32 v{vX+1}, 64, v{vX}
    v_add_u32 v{vX+1}, {7*1024}, v{vX+1}
    v_add_u32 v{vX+2}, {14*1024}, v{vX}
    v_add_u32 v{vX+3}, {14*1024}, v{vX+1}
    s_lshl_b32 {sXOFF}, {sG}, 17
    s_lshl_b32 {sT0}, {sHW}, 16
    s_add_u32 {sXOFF}, {sXOFF}, {sT0}
    ''')
    w2setup = common_setup() + lines(f'''
    s_mov_b64 s[16:17], {ka(3)}
    s_mov_b32 s18, 1835008
    s_mov_b32 s19, 0x20000
    v_and_b32 v52, 1, v49
    v_lshlrev_b32 v52, 2, v52
    v_xor_b32 v52, v52, v50
    v_lshlrev_b32 v52, 4, v52
    v_lshl_add_u32 v{vW2}, v48, 10, v52
    v_add_u32 v{vW2+1}, {7*1024}, v{vW2}
    v_add_u32 v{vW2+2}, {14*1024}, v{vW2}
    v_add_u32 v{vW2+3}, {21*1024}, v{vW2}
    s_lshl_b32 {sW2A}, {sHW}, 17
    s_lshl_b32 {sT2}, {sC}, 7
    s_add_u32 {sW2A}, {sW2A}, {sT2}
    s_lshl_b32 {sT2}, {sR}, 15
    s_add_u32 {sW2A}, {sW2A}, {sT2}
    s_xor_b32 {sW2B}, {sW2A}, 32768
    ''')
    def grp(pre, vb, srd, soff):
        return [(pre if i == 0 else '') + f'buffer_load_dwordx4 v{vb+i}, {srd}, {soff} offen offset:{1024*i} lds' for i in range(4)]
    def dma_stage_ops(s):
        slot = (s % 4) * SLOT
        g = grp(f'''s_mul_i32 {sT1}, {sKAP}, {64*3584}
        s_add_u32 m0, {sM0B}, {slot+16384}
        s_add_u32 {sT1}, {sT1}, {sW1OFF}
        ''', vW1, W1, sT1)
        g += grp(f'''s_add_u32 m0, {sM0B}, {slot+16384+4096}
        s_add_u32 {sT1}, {sT1}, {16*3584}
        ''', vW1, W1, sT1)
        g += grp(f'''s_lshl_b32 {sT0}, {sKAP}, 7
        s_add_u32 m0, {sM0B}, {slot}
        s_add_u32 {sT0}, {sT0}, {sXOFF}
        ''', vX, X, sT0)
        g += grp(f'''s_add_u32 {sKAP}, {sKAP}, 1
        s_and_b32 {sKAP}, {sKAP}, 7
        s_add_u32 m0, {sM0B}, {slot+4096}
        s_add_u32 {sT0}, {sT0}, 32768
        ''', vX, X, sT0)
        return g
    def w2_unit_ops(u):
        stage, uu = divmod(u, 7)
        goff = 256 * uu * 1024
        g = []
        for h in range(2):
            g += grp(f'''s_add_u32 m0, {sM0B}, {unit_addr(u)+4096*h}
            s_add_u32 {sT2}, {sW2B if stage else sW2A}, {goff+65536*h}
            ''', vW2, W2, sT2)
        return g
    for o in xsetup: a(o)
    a(f'''
    s_waitcnt lgkmcnt(0)
    s_mov_b64 s[12:13], {ka(1)}
    s_mov_b64 s[8:9], {ka(0)}
    ''')
    stream = []
    for s in range(8): stream += dma_stage_ops(s)
    for u in range(9): stream += w2_unit_ops(u)
    bar_at = {}
    for k in range(-1, 8):
        pos = 16 * (k + 2) + lead
        lim = 16 * (k + 4) if k < 4 else 128 + 8 * (1 + 2 * (k - 4))
        if k >= 0: pos = min(pos, lim)
        bar_at[pos] = k
    for i, o in enumerate(stream):
        if i in bar_at:
            k = bar_at[i]
            st(f'h:pa{k+1}')
            if k < 7: a(f's_waitcnt vmcnt({i - 16 * (k + 2)})')
            st(f'h:pb{k+1}')
            a('s_barrier')
            st(f'h:pc{k+1}')
        a(o)
        if i == 19:
            for z in w2setup: a(z)
    a('s_branch L_lpost')
    a('L_lspare:')
    a('s_waitcnt lgkmcnt(0)')
    for z in w2setup: a(z)
    for u in range(9):
        for o in w2_unit_ops(u): a(o)
    a('L_lpost:')
    st('h:w9')
    a(b2_load())
    a('s_waitcnt vmcnt(41)')
    a('s_barrier')
    a('s_waitcnt vmcnt(0)')
    final_setup()
    a('s_barrier')
    if lprio: a(f's_setprio {lprio}')
    for u in range(9, 14):
        for o in w2_unit_ops(u): a(o)
    st('h:w2issued')
    a('s_waitcnt vmcnt(0)')
    st('h:w2landed')
    a('s_barrier')
    a('s_branch L_final')

    a('L_serv:')
    ST = 64
    SA = 80
    vEPA, vPOLL = 17, 12
    a(f'''
    s_sub_u32 {sHW}, {sWAVE}, 6
    v_lshrrev_b32 v52, 4, v0
    v_and_b32 v53, 15, v0
    v_lshlrev_b32 v53, 4, v53
    v_lshl_add_u32 v53, v52, 10, v53
    s_lshl_b32 {sT0}, {sG}, 17
    s_lshl_b32 {sT1}, {sJ}, 13
    s_add_u32 {sT3}, {sT0}, {sT1}
    s_lshl_b32 {sT1}, {sHW}, 12
    s_add_u32 {sT3}, {sT3}, {sT1}
    s_lshl_b32 {sT1}, {sG}, 4
    v_mov_b32 v{vEPA}, {sT1}
    s_mov_b32 s30, 256
    s_mov_b32 s31, 0x20000
    s_add_u32 {sT2}, {sJ}, {sHW}
    s_waitcnt lgkmcnt(0)
    s_mov_b64 s[8:9], {ka(0)}
    s_mov_b64 s[28:29], {ka(6)}
    s_cmp_lg_u32 {sT2}, 0
    s_cbranch_scc1 L_s_nolead
    s_lshl_b32 {sT1}, s62, 4
    s_or_b32 {sT1}, {sT1}, 8
    v_mov_b32 v54, {sT1}
    s_mov_b64 exec, 1
    buffer_store_dword v54, v{vEPA}, {DBG}, 0 offen sc1
    s_mov_b64 exec, -1
    L_s_nolead:
    ''')
    for i in range(4):
        a(f'buffer_load_dwordx4 {vr(ST+4*i,4)}, v53, {X}, {sT3} offen offset:{256*i}')
    for z in common_setup() + ws_setup(): a(z)
    a(f'''
    s_mov_b32 {sONES}, 0x3f803f80
    s_lshl_b32 {sT0}, {sJ}, 6
    s_lshl_b32 {sT1}, {sHW}, 5
    s_add_u32 {sT0}, {sT0}, {sT1}
    s_add_u32 {sT0}, {sT0}, 1024
    v_lshlrev_b32 v55, 3, v52
    v_add_u32 v55, {sT0}, v55
    v_lshlrev_b32 v56, 4, v0
    s_add_u32 {sT3}, {sFLG}, 1024
    v_add_u32 v57, {XCH}, v56
    s_mov_b32 m0, {XCH}
    ''')
    for i in range(8): a(f'v_mov_b32 v{SA+i}, 0')
    for i in range(4):
        a(f's_waitcnt vmcnt({3-i + (1 if i else 0)})')
        if i == 0: a(f'buffer_load_dword v{vPOLL}, v{vEPA}, {DBG}, 0 offen sc1')
        for d in range(4):
            r = ST + 4 * i + d
            a(f'v_dot2_f32_bf16 v{SA+d}, v{r}, {sONES}, v{SA+d}')
            a(f'v_dot2_f32_bf16 v{SA+4+d}, v{r}, v{r}, v{SA+4+d}')
    a(f'''
    s_nop 2
    v_add_f32 v{SA}, v{SA}, v{SA+1}
    v_add_f32 v{SA+2}, v{SA+2}, v{SA+3}
    v_add_f32 v{SA+4}, v{SA+4}, v{SA+5}
    v_add_f32 v{SA+6}, v{SA+6}, v{SA+7}
    v_add_f32 v{SA}, v{SA}, v{SA+2}
    v_add_f32 v{SA+4}, v{SA+4}, v{SA+6}
    s_cmp_ge_u32 {sJ}, 14
    s_cbranch_scc1 L_s_nb0
    s_barrier
    L_s_nb0:
    ''')
    for mode in ('quad_perm:[1,0,3,2]', 'quad_perm:[2,3,0,1]', 'row_half_mirror', 'row_mirror'):
        a(f'''
        v_add_f32_dpp v{SA}, v{SA}, v{SA} {mode} row_mask:0xf bank_mask:0xf
        v_add_f32_dpp v{SA+4}, v{SA+4}, v{SA+4} {mode} row_mask:0xf bank_mask:0xf
        s_nop 1
        ''')
    a(f'''
    v_mul_f32 v{SA}, {f32(1.0/512)}, v{SA}
    v_mul_f32 v{SA+4}, {f32(1.0/512)}, v{SA+4}
    v_fma_f32 v{SA+4}, -v{SA}, v{SA}, v{SA+4}
    v_max_f32 v{SA+4}, 0, v{SA+4}
    v_cvt_pk_bf16_f32 v{SA+4}, v{SA+4}, v{SA+4}
    v_and_b32 v{SA+4}, {sMASK}, v{SA+4}
    v_add_f32 v{SA+4}, {f32(1e-5)}, v{SA+4}
    v_cvt_pk_bf16_f32 v{SA+4}, v{SA+4}, v{SA+4}
    v_and_b32 v{SA+4}, {sMASK}, v{SA+4}
    v_sqrt_f32 v{SA+4}, v{SA+4}
    s_nop 0
    v_cvt_pk_bf16_f32 v{SA}, -v{SA}, v{SA+4}
    ''')
    def bars(k0, k1, spare_sleep=0):
        if k1 <= k0: return
        l1, l2 = a.label('L_sb'), a.label('L_sb')
        a(f's_cmp_ge_u32 {sJ}, 14\ns_cbranch_scc1 {l1}')
        for k in range(k0, k1): a('s_barrier')
        if spare_sleep:
            a(f's_branch {l2}\n{l1}:\ns_sleep {spare_sleep}\n{l2}:')
        else:
            a(f'{l1}:')
    bars(0, svc[0] + 1)
    a(f'''
    L_s_ep:
    s_waitcnt vmcnt(0)
    v_readfirstlane_b32 {sEP}, v{vPOLL}
    s_cmp_lg_u32 {sEP}, 0
    s_cbranch_scc1 L_s_ep2
    {spin_guard('L_s_ep2')}
    s_sleep 2
    buffer_load_dword v{vPOLL}, v{vEPA}, {DBG}, 0 offen sc1
    s_branch L_s_ep
    L_s_ep2:
    s_or_b32 {sT0}, {sEP}, {sXCC}
    v_mov_b32 v{SA+1}, {sT0}
    s_mov_b32 exec_lo, 0x00010001
    s_mov_b32 exec_hi, 0x00010001
    buffer_store_dwordx2 {vr(SA,2)}, v55, {WS}, {sFLG} offen sc1
    s_mov_b64 exec, -1
    ''')
    st('s:pub')
    a(b2_load())
    bars(svc[0] + 1, svc[1] + 1, spare_sleep=48)
    a(f'''
    s_cmp_eq_u32 {sHW}, 1
    s_cbranch_scc1 L_s_g0
    buffer_load_dwordx4 v56, {WS}, {sT3} offen sc1 lds
    L_s_g0:
    ''')
    bars(svc[1] + 1, svc[2] + 1)
    a(f'''
    s_cmp_eq_u32 {sHW}, 1
    s_cbranch_scc1 L_s_g2
    L_s_g:
    s_waitcnt vmcnt(0)
    ds_read_b128 {vr(ST,4)}, v57
    s_waitcnt lgkmcnt(0)
    v_xor_b32 v{ST+1}, {sEP}, v{ST+1}
    v_xor_b32 v{ST+3}, {sEP}, v{ST+3}
    v_or_b32 v{ST+1}, v{ST+1}, v{ST+3}
    v_cmp_lt_u32 vcc, 7, v{ST+1}
    s_cbranch_vccz L_s_g2
    {spin_guard('L_s_g2')}
    s_sleep 4
    buffer_load_dwordx4 v56, {WS}, {sT3} offen sc1 lds
    s_branch L_s_g
    L_s_g2:
    ''')
    st('s:got')
    bars(svc[2] + 1, 8)
    a('s_waitcnt vmcnt(0)')
    final_setup()
    a('s_barrier')
    a('s_barrier')
    a('s_barrier')
    if rst:
        a(f'''
        s_add_u32 {sT2}, {sJ}, {sHW}
        s_cmp_lg_u32 {sT2}, 0
        s_cbranch_scc1 L_s_norst
        v_mov_b32 v54, 0
        s_mov_b64 exec, 1
        buffer_store_dword v54, v{vEPA}, {DBG}, 0 offen sc1
        s_mov_b64 exec, -1
        L_s_norst:
        ''')
    if wb:
        a(f'''
        s_cmp_lg_u32 {sWAVE}, 7
        s_cbranch_scc1 L_final
        s_cmp_lg_u32 {sJ}, 15
        s_cbranch_scc1 L_final
        buffer_wbl2 sc1
        ''')
    a('s_branch L_final')

    a('L_comp:')
    aB, aA, aW = 2, 4, 8
    vHS, vHL, vPOLL, vPA = 10, 11, 12, 13
    vXA, vTA = 14, 15
    vFLAGA, vFLAGV, vRA = 17, 18, 19
    vKC, vS = 20, 28
    ACC, FR, GT = 32, 96, 224
    vBAUG, vAAUG = FR, GT + 24
    CS, vONE, vBI = GT + 16, GT + 28, GT + 5
    q = [GT + 8 + i for i in range(8)]
    tm, tq, tr, tc, t4, t5, t6, t7 = q
    a(f'''
    s_lshr_b32 {sWM}, {sWAVE}, 1
    s_and_b32 {sWN}, {sWAVE}, 1
    v_and_b32 v{tm}, 15, v0
    v_lshrrev_b32 v{tq}, 4, v0
    v_lshrrev_b32 v{t4}, 1, v{tm}
    v_xor_b32 v{t4}, v{t4}, v{tq}
    v_lshlrev_b32 v{t4}, 4, v{t4}
    v_lshl_add_u32 v{t4}, v{tm}, 7, v{t4}
    s_lshl_b32 {sT0}, {sWM}, 13
    v_add_u32 v{aB}, {sT0}, v{t4}
    v_xor_b32 v{aB+1}, 64, v{aB}
    v_lshrrev_b32 v{tr}, 2, v{tm}
    v_and_b32 v{tc}, 3, v{tm}
    v_and_b32 v{t5}, 1, v{tq}
    v_lshl_or_b32 v{t5}, v{t5}, 2, v{tr}
    v_lshl_add_u32 v{t6}, v{tq}, 3, v{tr}
    v_lshlrev_b32 v{t6}, 8, v{t6}
    v_lshl_add_u32 v{t6}, v{tc}, 3, v{t6}
    v_add_u32 v{t6}, 16384, v{t6}
    s_lshl_b32 {sT0}, {sWN}, 2
    s_lshl_b32 {sT1}, {sWM}, 1
    s_or_b32 {sT0}, {sT0}, {sT1}
    v_xor_b32 v{t5}, {sT0}, v{t5}
    v_lshl_add_u32 v{aA}, v{t5}, 5, v{t6}
    v_xor_b32 v{aA+1}, 32, v{aA}
    v_xor_b32 v{aA+2}, 64, v{aA}
    v_xor_b32 v{aA+3}, 96, v{aA}
    s_mov_b32 {sONES}, 0x3f803f80
    v_mov_b32 v{vONE}, {sONES}
    v_mov_b32 v{vONE+1}, {sONES}
    v_mov_b32 v{vONE+2}, {sONES}
    v_mov_b32 v{vONE+3}, {sONES}
    s_waitcnt lgkmcnt(0)
    ''')
    setup2 = common_setup() + ws_setup() + lines(f'''
    v_lshlrev_b32 v{vHL}, 4, v0
    v_lshrrev_b32 v{t4}, 5, v0
    v_lshl_add_u32 v{t6}, v{t4}, 2, v{tr}
    v_lshlrev_b32 v{t6}, 7, v{t6}
    v_lshl_add_u32 v{t6}, v{tc}, 3, v{t6}
    v_and_b32 v{t5}, 1, v{tq}
    v_lshl_add_u32 v{t6}, v{t5}, 5, v{t6}
    v_lshrrev_b32 v{t5}, 1, v{tr}
    v_lshl_add_u32 v{t6}, v{t5}, 6, v{t6}
    s_lshl_b32 {sT0}, {sWN}, 12
    s_add_u32 {sT0}, {sT0}, {unit_addr(0)}
    v_add_u32 v{aW}, {sT0}, v{t6}
    v_xor_b32 v{aW+1}, 64, v{aW}
    v_min_u32 v{vPA}, 13, v0
    v_lshlrev_b32 v{vPA}, 2, v{vPA}
    s_lshl_b32 {sT0}, {sR}, 1
    s_add_u32 {sT0}, {sT0}, {sWN}
    s_lshl_b32 {sT0}, {sT0}, 7
    v_add_u32 v{vPA}, {sT0}, v{vPA}
    s_mul_i32 {sHB}, {sG}, {H_G}
    s_mul_i32 {sT0}, {sWN}, {H_KH}
    s_add_u32 {sHB}, {sHB}, {sT0}
    s_mul_i32 {sT0}, {sR}, {H_WM}
    s_add_u32 {sHC}, {sHB}, {sT0}
    s_mul_i32 {sT0}, {sWM}, {H_MB}
    s_add_u32 {sHC}, {sHC}, {sT0}
    v_lshlrev_b32 v{vTA}, 6, v{tm}
    v_add_u32 v{vTA}, {XCH+4}, v{vTA}
    v_and_b32 v16, 31, v0
    v_lshlrev_b32 v16, 8, v16
    v_xor_b32 v{t5}, v{t4}, v{tm}
    v_lshl_add_u32 v16, v{t5}, 4, v16
    s_lshl_b32 {sT0}, {sWN}, 14
    s_lshl_b32 {sT1}, {sWM}, 13
    s_add_u32 {sT0}, {sT0}, {sT1}
    s_add_u32 {sT0}, {sT0}, {RED}
    v_add_u32 v16, {sT0}, v16
    ''')
    vRW = 16
    setup1 = lines(f'''
    s_mov_b64 s[32:33], {ka(2)}
    s_mov_b32 s34, 3584
    s_mov_b32 s35, 0x20000
    v_lshlrev_b32 v{t7}, 1, v{tm}
    s_lshl_b32 {sT0}, {sJ}, 8
    s_lshl_b32 {sT1}, {sWN}, 7
    s_add_u32 {sT0}, {sT0}, {sT1}
    s_lshl_b32 {sT1}, {sWM}, 6
    s_add_u32 {sT0}, {sT0}, {sT1}
    ''') + [(f'buffer_load_ushort v{vBI}, v{t7}, {B1}, {sT0} offen', 'bias'),
            (f'buffer_load_ushort v{vBI+1}, v{t7}, {B1}, {sT0} offen offset:32', 'bias')] + lines(f'''
    v_lshlrev_b32 v{vHS}, 4, v{tm}
    v_lshl_add_u32 v{vHS}, v{tq}, 9, v{vHS}
    s_mul_i32 {sT0}, {sWM}, {H_WM}
    s_add_u32 {sHB}, {sHB}, {sT0}
    s_lshl_b32 {sT0}, {sJ}, 11
    s_add_u32 {sHB}, {sHB}, {sT0}
    s_lshl_b32 {sT0}, {sWAVE}, 7
    s_lshl_b32 {sT1}, {sJ}, 2
    s_add_u32 {sT0}, {sT0}, {sT1}
    v_mov_b32 v{vFLAGA}, {sT0}
    s_mov_b32 {sSEL0}, 0x01000100
    s_mov_b32 {sSEL1}, 0x07060302
    s_mov_b32 {sSEL2}, 0x05040302
    s_mov_b64 s[100:101], 0xffff
    v_lshlrev_b32 v{vRA}, 3, v{tm}
    s_lshl_b32 {sT0}, {sWM}, 9
    s_add_u32 {sT0}, {sT0}, {XCH}
    v_add_u32 v{vRA}, {sT0}, v{vRA}
    s_lshl_b32 {sT0}, {sWAVE}, 10
    s_add_u32 {sT0}, {sT0}, {XCH2}
    v_add_u32 v{vXA}, {sT0}, v{vHL}
    v_xor_b32 v1, 2048, v{vXA}
    ''')
    V = VQ(a)
    L = LQ(a)
    def put(o):
        if callable(o): o()
        elif isinstance(o, tuple): a(o[0]); V.op(o[1])
        elif o.startswith('ds_'): L.op(o)
        else: a(o)
    def poll_h_issue(stage):
        a(f'buffer_load_dword v{vPOLL}, v{vPA}, {WS}, {sFLG} offen offset:{64*stage} sc1'); V.op('p')
    def poll_h_check(stage, sleep=1):
        l1, l2, l3 = a.label('L_ph'), a.label('L_ph'), a.label('L_ph')
        V.need('p')
        a(f'''
        {l1}:
        v_cmp_ne_u32 vcc, {sEP}, v{vPOLL}
        s_cbranch_vccnz {l3}
        {l2}:
        ''')
        tail(f'''
        {l3}:
        {spin_guard(l2)}
        s_sleep {sleep}
        buffer_load_dword v{vPOLL}, v{vPA}, {WS}, {sFLG} offen offset:{64*stage} sc1
        s_waitcnt vmcnt(0)
        s_branch {l1}
        ''')
    NS = 8
    def wreads_at(n, base):
        ad = unit_addr(n // 2) + 8192 * (n % 2)
        fb = FR + 16 * ((n + 1) % NS)
        return [f'ds_read_b64_tr_b16 {vr(fb+8*ph+4*dl+2*h,2)}, v{aW+dl} offset:{ad-base+1024*ph+2048*h}'
                for ph in range(2) for dl in range(2) for h in range(2)]
    def rebase(delta): return [f'v_add_u32 v{aW+dl}, {delta & 0xffffffff:#x}, v{aW+dl}' for dl in range(2)]
    def pf_list(b):
        if b == 0: return wreads_at(0, unit_addr(0)) + wreads_at(1, unit_addr(0)) + rebase(-unit_addr(0)) + wreads_at(2, 0) + wreads_at(3, 0)
        return sum((wreads_at(n, 0) for n in range(4, 8)), [])
    for o in setup2: put(o)
    a(f'''
    s_cmp_lt_u32 {sJ}, 14
    s_cbranch_scc1 L_c_reg
    ''')
    a(b2_load())
    a('s_barrier')
    a(f'ds_read_b32 v1, v{vTA}')
    for o in pf_list(0) + pf_list(1): a(o)
    a('s_waitcnt vmcnt(0) lgkmcnt(0)')
    a('s_barrier')
    a(f'v_readfirstlane_b32 {sEP}, v1')
    final_setup()
    a(f's_andn2_b32 {sEP}, {sEP}, 7')
    poll_h_issue(0)
    poll_h_check(0, sleep=12)
    a('s_branch L_c_p2')
    a('L_c_reg:')
    V.q = []; L.q = []
    for o in setup1: put(o)
    def reads(s):
        so = (s & 1) * SLOT
        out = []
        for ks in range(2):
            fb = FR + 64 * (s & 1) + 32 * ks
            rb = [f'ds_read_b128 {vr(fb+4*mt,4)}, v{aB+ks} offset:{so+2048*mt}' for mt in range(4)]
            ra = [[f'ds_read_b64_tr_b16 {vr(fb+16+4*t+2*h,2)}, v{aA+t} offset:{so+8192*ks+1024*h}' for h in range(2)] for t in range(4)]
            out += ra[0] + rb + ra[1] + ra[2] + ra[3]
        return out
    def mfmas(s):
        out = []
        for ks in range(2):
            fb = FR + 64 * (s & 1) + 32 * ks
            for t in range(4):
                if t < 2:
                    c = '0' if (s == 0 and ks == 0) else vr(CS + 4 * t, 4)
                    out.append(f'v_mfma_f32_16x16x32_bf16 {vr(CS+4*t,4)}, {vr(vONE,4)}, {vr(fb+16+4*t,4)}, {c}')
                for mt in range(4):
                    d = ACC + 4 * (4 * mt + t)
                    c = '0' if (s == 0 and ks == 0) else vr(d, 4)
                    out.append(f'v_mfma_f32_16x16x32_bf16 {vr(d,4)}, {vr(fb+16+4*t,4)}, {vr(fb+4*mt,4)}, {c}')
        return out
    toggle = [f'v_xor_b32 v{r}, 0x10000, v{r}' for r in range(aB, aB + 6)]
    st('c:rdy')
    a('s_barrier')
    st('c:B0')
    for o in reads(0): L.op(o)
    NM = 36
    chks = chk if isinstance(chk, (list, tuple)) else [chk] * 8
    for s in range(8):
        ms = mfmas(s)
        slots = [[] for _ in range(NM)]
        c = chks[s]
        def barfn(s=s):
            L.drain(); st(f'c:A{s+1}'); a('s_barrier'); st(f'c:B{s+1}')
        slots[c].append(barfn)
        if s < 7:
            rd = reads(s + 1)
            per = 1 if NM - c - 1 >= 24 else 2
            if s % 2 == 1:
                for i, t in enumerate(toggle): slots[i * c // 6].append(t)
                slots[c].remove(barfn); slots[c].append(barfn)
            k = 0; i = c
            while k < len(rd):
                slots[i] += rd[k:k+per]; k += per; i += 1
        else:
            ex = [f'ds_read_b32 v{GT+mt}, v{vRA} offset:{128*mt}' for mt in range(4)]
            ex += [f'ds_read_b32 v{GT+4}, v{vTA}']
            for i in range(5): slots[i].insert(0, ex[i])
            ex = [(b2_load(), 'b2')]
            for mt in range(4):
                ex += [f'v_cndmask_b32 v{vBAUG+2*mt+1}, 0, v{GT+mt}, s[100:101]',
                       f'v_and_b32 v{vS+mt}, {sMASK}, v{GT+mt}',
                       f'v_perm_b32 v{vBAUG+2*mt}, v{vBAUG+2*mt+1}, v{vBAUG+2*mt+1}, {sSEL0}',
                       f'v_rcp_f32 v{GT+mt}, v{vS+mt}']
            ex += [f'v_readfirstlane_b32 {sEP}, v{GT+4}']
            for mt in range(4):
                ex += [f'v_mul_f32 v{vKC+2*mt}, {f32(K1C)}, v{GT+mt}',
                       f'v_mul_f32 v{vKC+2*mt+1}, v{GT+mt}, v{GT+mt}',
                       f'v_mul_f32 v{GT+mt}, {f32(K3C)}, v{GT+mt}',
                       f'v_mul_f32 v{vKC+2*mt+1}, v{vKC+2*mt+1}, v{GT+mt}']
            ex += [f's_andn2_b32 {sEP}, {sEP}, 7', f's_or_b32 {sT0}, {sEP}, {sXCC}',
                   f'v_cmp_ne_u32 s[98:99], {sT0}, v{GT+4}', f'v_mov_b32 v{vFLAGV}, {sEP}']
            if force_slow: ex.append('s_mov_b64 s[98:99], -1')
            assert 5 <= c <= 8
            k = 0
            for i in range(c + 1, 29):
                slots[i] += ex[k:k+2]; k += 2
            assert k >= len(ex)
            ex = [lambda: V.need('bias')]
            for t in range(2):
                cc = CS + 4 * t
                ex += [f'v_and_b32 v{cc+1}, {sMASK}, v{cc}',
                       f'v_sub_f32 v{cc+1}, v{cc}, v{cc+1}',
                       f'v_and_b32 v{cc+2}, {sMASK}, v{cc+1}',
                       f'v_sub_f32 v{cc+2}, v{cc+1}, v{cc+2}',
                       f'v_perm_b32 v{vAAUG+2*t}, v{cc+1}, v{cc}, {sSEL1}',
                       f'v_perm_b32 v{vAAUG+2*t+1}, v{vBI+t}, v{cc+2}, {sSEL2}']
            ex += [f'ds_write_b128 v{vXA}, {vr(vAAUG,4)}']
            k = 0
            for i in range(29, 36):
                slots[i] += ex[k:k+2]; k += 2
            assert k >= len(ex)
        st(f'c:S{s}')
        fb = FR + 64 * (s & 1)
        for i, m in enumerate(ms):
            if i == 0: L.need(set(range(fb, fb + 24)))
            L.mfma(m)
            for o in slots[i]: put(o)
    st('c:kend')
    def aug(ts):
        return [f'v_mfma_f32_16x16x16_bf16 {vr(ACC+4*(4*mt+t),4)}, {vr(vAAUG+2*t,2)}, {vr(vBAUG+2*mt,2)}, {vr(ACC+4*(4*mt+t),4)}'
                for mt in range(4) for t in ts]
    a('s_nop 0')
    for m in aug((0, 1)): L.mfma(m)
    a('s_nop 1')
    st('c:aug')
    def store2(ins, tag):
        l1 = a.label('L_s')
        a(f'''
        s_cbranch_scc0 {l1}a
        {ins}
        {l1}:
        ''')
        tail(f'''
        {l1}a:
        {ins} sc1
        s_branch {l1}
        ''')
        V.op(tag)
    def flag_h(stage):
        V.need(f'h{stage}')
        a('s_mov_b64 exec, 1')
        a('s_cmp_eq_u64 s[98:99], 0')
        store2(f'buffer_store_dword v{vFLAGV}, v{vFLAGA}, {WS}, {sFLG} offen offset:{64*stage}', 'f')
        a('s_mov_b64 exec, -1')
    idx = 0
    for stg in range(2):
        for mt in range(4):
            A = ACC + 16 * mt + 8 * stg
            T = GT + 8 * (idx & 1)
            O = GT + 16 + 4 * (idx & 3)
            P = lambda r: vr(r, 2)
            kc = vr(vKC + 2 * mt, 2)
            s_ = vr(vS + (mt & ~1), 2)
            ssel = 'op_sel:[0,1,1] op_sel_hi:[1,1,1]' if mt & 1 else 'op_sel_hi:[1,0,0]'
            mids = []
            if idx == 3:
                L.drain(); st('c:Xa'); a('s_barrier'); st('c:Xb')
                L.op(f'ds_read_b128 {vr(vAAUG+4,4)}, v1')
            if idx == pfat[1] + 1:
                L.drain(); st('c:Ya'); a('s_barrier'); st('c:Yb')
            for b in range(2):
                if idx == pfat[b]: mids = pf_list(b)
            body = []
            for i in range(0, 8, 2): body.append(f'v_pk_mul_f32 {P(T+i)}, {P(A+i)}, {P(A+i)}')
            for i in range(0, 8, 2): body.append(f'v_pk_fma_f32 {P(T+i)}, {P(T+i)}, {kc}, {kc} op_sel:[0,1,0] op_sel_hi:[1,1,0]')
            for i in range(0, 8, 2): body.append(f'v_pk_mul_f32 {P(T+i)}, {P(A+i)}, {P(T+i)}')
            for i in range(8): body.append(f'v_exp_f32 v{T+i}, v{T+i}')
            for i in range(0, 8, 2): body.append(f'v_pk_fma_f32 {P(T+i)}, {P(T+i)}, {s_}, {s_} {ssel}')
            for i in range(8): body.append(f'v_rcp_f32 v{T+i}, v{T+i}')
            for i in range(0, 8, 2): body.append(f'v_pk_mul_f32 {P(T+i)}, {P(A+i)}, {P(T+i)}')
            for i in range(4): body.append(f'v_cvt_pk_bf16_f32 v{O+i}, v{T+2*i}, v{T+2*i+1}')
            am = aug((2, 3)) if idx == 3 else []
            for i, o in enumerate(body):
                if am and 24 <= i < 32: L.mfma(am[i - 24])
                a(o)
                if i < len(mids): put(mids[i])
            a(f's_add_u32 {sT0}, {sHB}, {(mt>>1)*H_MB + stg*H_ST}')
            a('s_cmp_eq_u64 s[98:99], 0')
            store2(f'buffer_store_dwordx4 {vr(O,4)}, v{vHS}, {WS}, {sT0} offen offset:{256*(mt&1)}', f'h{stg}')
            st(f'c:g{idx}')
            idx += 1
            if idx == flagat:
                flag_h(0)
                st('c:flagA')
            if idx == 7 and earlypoll: poll_h_issue(0)
    if not earlypoll: poll_h_issue(0)
    if pfat[1] == 7:
        L.drain(); a('s_barrier')
    final_setup()
    if earlypoll:
        poll_h_check(0)
        flag_h(1)
    else:
        flag_h(1)
        poll_h_check(0)
    st('c:seenA')
    a('L_c_p2:')
    ACC2 = GT
    HR = ACC
    V.q = []; L.q = []
    def hload(n):
        r = HR + 8 * (n % D)
        pre = f's_add_u32 {sT3}, {sHC}, {2048*n}\n' if n % 2 == 0 else ''
        o = 2048 * (n % 2)
        return [pre + f'buffer_load_dwordx4 {vr(r,4)}, v{vHL}, {WS}, {sT3} offen offset:{o} sc1',
                f'buffer_load_dwordx4 {vr(r+4,4)}, v{vHL}, {WS}, {sT3} offen offset:{o+1024} sc1']
    cur_base = [0]
    def wreads(n):
        ad = unit_addr(n // 2) + 8192 * (n % 2)
        pre = []
        if not (0 <= ad - cur_base[0] <= 65535 - 8192):
            pre = rebase(ad - cur_base[0]); cur_base[0] = ad
        return pre + wreads_at(n, cur_base[0])
    pending = []
    for n in range(28):
        for ph, o in enumerate(hload(n)): pending.append((n, ph, o))
    def issue_h():
        n, ph, o = pending.pop(0)
        if n == 14 and ph == 0: poll_h_check(1)
        a(o); V.op((n, ph))
    for k in range(2 * ramp): issue_h()
    PD = 4
    assert 11 - PD < zat <= 18 - PD
    for n in range(28):
        fb = FR + 16 * ((n + 1) % NS)
        hr = HR + 8 * (n % D)
        st(f'c:n{n}')
        fill = []
        m = n + PD
        if n == zat:
            L.drain(); st('c:Za'); a('s_barrier'); st('c:Zb')
        if 8 <= m < 28: fill += wreads(m)
        if n == pollb: fill.append(lambda: poll_h_issue(1))
        if n == 27: fill += [f'v_xor_b32 v{HR+i}, {32*i}, v{vRW}' for i in range(1, 8)]
        per = (len(fill) + 2) // 3
        k = 0
        i = 0
        for ph in range(2):
            for dl in range(2):
                d = ACC2 + 16 * dl
                c = '0' if (n == 0 and ph == 0) else vr(d, 16)
                if dl == 0:
                    vc = V.count((n, ph))
                    lc = L.count(set(range(fb, fb + 16))) if ph == 0 else None
                    w = ([f'vmcnt({vc})'] if vc is not None else []) + ([f'lgkmcnt({lc})'] if lc is not None else [])
                    if w: a('s_waitcnt ' + ' '.join(w))
                a(f'v_mfma_f32_32x32x16_bf16 {vr(d,16)}, {vr(fb+8*ph+4*dl,4)}, {vr(hr+4*ph,4)}, {c}')
                for o in fill[k:k+per]: put(o)
                k += per
                if i >= 1 and pending and pending[0][0] <= n - 1 + D and (i != 2 or pending[0][0] < n - 1 + D):
                    issue_h()
                i += 1
    assert not pending
    st('c:p2end')
    a('s_nop 9')
    for dl in range(2):
        for g in range(4):
            i = 4 * dl + g
            ad = vRW if i == 0 else HR + i
            a(f'ds_write_b128 v{ad}, {vr(ACC2+16*dl+4*g,4)}')
    a('s_waitcnt lgkmcnt(0)')
    a('L_final:')
    a('s_barrier')
    st('c:W4')
    R = 64
    a(f'''
    ds_read_b128 {vr(R,4)}, v{vFA0}
    ds_read_b128 {vr(R+8,4)}, v{vFA0} offset:16384
    ds_read_b128 {vr(R+4,4)}, v{vFA1}
    ds_read_b128 {vr(R+12,4)}, v{vFA1} offset:16384
    s_lshl_b32 {sT0}, {sG}, 17
    s_lshl_b32 {sT1}, {sR}, 16
    s_add_u32 {sT0}, {sT0}, {sT1}
    s_lshl_b32 {sT1}, {sC}, 7
    s_add_u32 {sT0}, {sT0}, {sT1}
    s_waitcnt lgkmcnt(0)
    ''')
    for i in range(4): a(f'v_pk_add_f32 {vr(R+2*i,2)}, {vr(R+2*i,2)}, {vr(R+8+2*i,2)}')
    for i in range(4): a(f'v_cvt_pk_bf16_f32 v{R+8+i}, v{R+2*i}, v{R+2*i+1}')
    for i in range(4):
        a(f'v_lshlrev_b32 v{R+2*i}, 16, v{R+8+i}')
        a(f'v_and_b32 v{R+2*i+1}, {sMASK}, v{R+8+i}')
    for i in range(4): a(f'v_pk_add_f32 {vr(R+2*i,2)}, {vr(R+2*i,2)}, {vr(vB2f+2*i,2)}')
    for i in range(4): a(f'v_cvt_pk_bf16_f32 v{R+12+i}, v{R+2*i}, v{R+2*i+1}')
    a(f'buffer_store_dwordx4 {vr(R+12,4)}, v{vOUTO}, {OUT}, {sT0} offen {outaux}')
    if stamps:
        a('s_waitcnt vmcnt(0)')
        st('c:end')
        a(f'''
        s_cmp_eq_u32 {sWAVE}, {hst}
        s_cbranch_scc1 L_sth
        s_cmp_eq_u32 {sWAVE}, 6
        s_cbranch_scc1 L_sts
        s_cmp_lg_u32 {sWAVE}, {cst}
        s_cbranch_scc1 L_end
        ''')
        st_flush('c:')
        a('s_branch L_end')
        a('L_sts:')
        st_flush('s:')
        a('s_branch L_end')
        a('L_sth:')
        st_flush('h:')
    if padend:
        a(f'''
        L_pad:
        s_memrealtime s[94:95]
        s_waitcnt lgkmcnt(0)
        s_sub_u32 s94, s94, s62
        s_cmp_lt_u32 s94, {padend}
        s_cbranch_scc1 L_pad
        ''')
    a('s_endpgm')
    body = a.text() + tail.text() + 'L_end:\n'
    return make_file([(KNAME, body, 256, 102, 256)], [(KNAME, 256, 512, 163840)])

ST_MAIN = ['c:start', 'c:B0', 'c:kend', 'c:flagA', 'c:seenA', 'c:n1', 'c:p2end', 'c:end']
ST_K = ['c:start', 'c:rdy@', 'c:B0@', 'c:B1@', 'c:B3@', 'c:B5@', 'c:B7@', 'c:kend@']
ST_G = ['c:start', 'c:kend@', 'c:Xa@', 'c:Xb@', 'c:flagA@', 'c:Yb@', 'c:g7@', 'c:seenA@']
ST_P = ['c:start', 'c:seenA@', 'c:n1@', 'c:Za@', 'c:Zb@', 'c:p2end@', 'c:W4@', 'c:end@']
ST_H = ['c:start', 'h:pa0@', 'h:pb0@', 'h:pa4@', 'h:pb4@', 'h:pc4@', 'h:w9@', 'h:w2landed@']
if __name__ == '__main__':
    names = []
    def g(nm, **kw):
        open(nm + '.s', 'w').write(gen(**kw)); names.append(nm)
    g('k7')
    g('k7s', stamps=ST_MAIN)
    g('k7k', stamps=ST_K)
    g('k7g', stamps=ST_G)
    g('k7p', stamps=ST_P)
    g('k7h', stamps=ST_H)
    print(' '.join(names))
```

```python
from gen7 import *
names = []
def g(nm, **kw):
    open(nm + '.s', 'w').write(gen(**kw)); names.append(nm)
g('o7_base')
g('o7_B0', padat=('c:B0', 1500))
g('o7_kend', padat=('c:kend', 1500))
g('o7_seen', padat=('c:n0', 1500))
g('o7_p2end', padat=('c:p2end', 1500))
g('o7_end', padend=1500)
print(' '.join(names))
```

```python
import sys, struct, re
from asmlib import *
from gen4 import LQ, VQ, f32, vr, regs_of, K1C, K3C

H_G, H_WM, H_MB, H_KH, H_ST, H_J = 458752, 229376, 114688, 57344, 28672, 2048
FLAG_BASE = 8 << 20
WS_SIZE = 16 << 20
SLOT = 32768
XCH = 147456
XCH2 = XCH + 4096
RED = 49152
def unit_addr(u): return 147456 if u == 13 else ((u + 8) % 9) * 16384

def gen(stamps=None, D=8, rot='xj', force_slow=False, padend=0, outaux='sc1', ramp=4, earlypoll=False, wb=False,
        hst=4, cst=0, pfat=(4, 5), flagat=6, chk=6, lead=24, lprio=0, pollb=3, zat=12, svc=(0, 3, 5), padat=None, rst=True, touch=0):
    a = Asm()
    tail = Asm()
    NST = 12
    sWAVE, sG, sJ, sR, sC = 's3', 's4', 's5', 's6', 's7'
    X, W1, W2, WS, OUT, DBG, B1, B2 = 's[8:11]', 's[12:15]', 's[16:19]', 's[20:23]', 's[24:27]', 's[28:31]', 's[32:35]', 's[36:39]'
    sXCC, sHW = 's41', 's42'
    sT0, sT1, sT2, sT3 = 's43', 's44', 's45', 's46'
    sXOFF, sW1OFF, sW2A, sFLG, sHB, sW2B, sM0B, sKAP = 's47', 's48', 's49', 's50', 's51', 's52', 's53', 's54'
    sMASK, sONES, sSPIN = 's55', 's56', 's57'
    sWM, sWN, sEP, sHC = 's58', 's59', 's60', 's61'
    sSEL0, sSEL1, sSEL2 = 's40', 's94', 's95'
    KA = 80 if stamps else 64
    stamps = stamps or []
    SB = 64
    assert len(stamps) <= 8 or True
    def ka(i): return f's[{KA+2*i}:{KA+2*i+1}]'
    def st(name):
        if padat and name == padat[0]:
            lab = a.label('L_padp')
            a(f'''
            {lab}:
            s_memrealtime s[92:93]
            s_waitcnt lgkmcnt(0)
            s_sub_u32 s92, s92, s62
            s_cmp_lt_u32 s92, {padat[1]}
            s_cbranch_scc1 {lab}
            ''')
        for suffix, ins in (('', 's_memrealtime'), ('@', 's_memtime')):
            if name + suffix in stamps:
                i = stamps.index(name + suffix); a(f'{ins} s[{SB+2*i}:{SB+2*i+1}]')
    def st_flush(pref):
        a('s_waitcnt lgkmcnt(0)')
        a(f's_load_dwordx2 s[90:91], s[0:1], 56')
        a('s_waitcnt lgkmcnt(0)')
        stamp_setup(a, NST)
        a('v_mov_b32 v250, 0')
        for i, n in enumerate(stamps):
            if not n.startswith(pref): continue
            if n == 'c:start': a(f's_mov_b64 s[{SB+2*i}:{SB+2*i+1}], s[62:63]')
            if n.endswith('@'):
                a(f's_sub_u32 s{SB+2*i}, s{SB+2*i}, s96')
                a(f's_add_u32 s{SB+2*i}, s{SB+2*i}, s62')
                a(f's_addc_u32 s{SB+2*i+1}, s63, 0')
            a(f'v_mov_b32 v252, s{SB+2*i}')
            a(f'v_mov_b32 v253, s{SB+2*i+1}')
            a(f'global_store_dwordx2 v250, v[252:253], s[90:91] offset:{i*8}')
            a('s_nop 1')
    assert len(stamps) <= 8
    if stamps: sSEL1, sSEL2 = 's33', 's32'
    sSEL1, sSEL2 = 's12', 's13'

    vB2raw, vB2f, vFA0, vFA1, vOUTO, vRW = 2, 20, 28, 29, 30, 31
    a(f'''
    s_cmp_ge_u32 s2, 256
    s_cbranch_scc1 L_end
    s_load_dwordx16 s[{KA}:{KA+15}], s[0:1], 0
    s_memrealtime s[62:63]
    ''')
    if stamps: a('s_memtime s[96:97]')
    a(f'''
    v_lshrrev_b32 v1, 6, v0
    v_and_b32 v0, 63, v0
    s_and_b32 {sT0}, s2, 7
    v_readfirstlane_b32 {sWAVE}, v1
    s_lshr_b32 {sT1}, s2, 3
    s_lshr_b32 {sT2}, {sT1}, 4
    s_lshl_b32 {sG}, {sT0}, 1
    s_add_u32 {sG}, {sG}, {sT2}
    s_and_b32 {sJ}, {sT1}, 15
    s_mov_b32 s10, 2097152
    s_mov_b32 s11, 0x20000
    s_cmp_lt_u32 {sWAVE}, 4
    s_cbranch_scc1 L_comp
    s_cmp_ge_u32 {sWAVE}, 6
    s_cbranch_scc1 L_serv
    ''')
    def lines(s): return [l.strip() for l in s.strip().split('\n') if l.strip()]
    def common_setup():
        return lines(f'''
        s_mov_b32 {sC}, {sJ}
        s_cmp_eq_u32 {sJ}, 14
        s_cselect_b32 {sC}, 11, {sC}
        s_cmp_eq_u32 {sJ}, 11
        s_cselect_b32 {sC}, 14, {sC}
        s_lshr_b32 {sR}, {sC}, 3
        s_and_b32 {sC}, {sC}, 7
        s_mov_b32 {sMASK}, 0xffff0000
        s_mov_b32 {sSPIN}, 0x40000
        s_mov_b64 s[36:37], {ka(4)}
        s_mov_b32 s38, 1024
        s_mov_b32 s39, 0x20000
        s_mov_b64 s[24:25], {ka(5)}
        s_mov_b32 s26, 2097152
        s_mov_b32 s27, 0x20000
        ''')
    def ws_setup():
        return lines(f'''
        s_mov_b64 s[20:21], {ka(7)}
        s_mov_b32 s22, {WS_SIZE}
        s_mov_b32 s23, 0x20000
        s_getreg_b32 {sXCC}, hwreg(HW_REG_XCC_ID, 0, 3)
        s_lshl_b32 {sFLG}, {sG}, 11
        s_add_u32 {sFLG}, {sFLG}, {FLAG_BASE}
        ''')
    def b2_load():
        return f'''v_and_b32 v{vB2raw+4}, 7, v0
        v_lshlrev_b32 v{vB2raw+4}, 4, v{vB2raw+4}
        s_lshl_b32 {sT0}, {sC}, 7
        buffer_load_dwordx4 {vr(vB2raw,4)}, v{vB2raw+4}, {B2}, {sT0} offen'''
    def final_setup():
        for i in range(4):
            a(f'v_lshlrev_b32 v{vB2f+2*i}, 16, v{vB2raw+i}')
            a(f'v_and_b32 v{vB2f+2*i+1}, {sMASK}, v{vB2raw+i}')
        a(f'''
        v_lshrrev_b32 v{vFA1}, 3, v0
        s_lshl_b32 {sT0}, {sWAVE}, 3
        v_add_u32 v{vFA1}, {sT0}, v{vFA1}
        v_lshl_add_u32 v{vOUTO}, v{vFA1}, 10, v{vB2raw+4}
        v_and_b32 v{vFA0}, 7, v0
        v_lshlrev_b32 v{vFA0}, 1, v{vFA0}
        v_and_b32 v{vB2raw}, 15, v{vFA1}
        v_xor_b32 v{vFA0}, v{vFA0}, v{vB2raw}
        v_lshlrev_b32 v{vFA0}, 4, v{vFA0}
        v_lshl_add_u32 v{vFA0}, v{vFA1}, 8, v{vFA0}
        v_add_u32 v{vFA0}, {RED}, v{vFA0}
        v_xor_b32 v{vFA1}, 16, v{vFA0}
        ''')
    def spin_guard(lab):
        return f'''s_cmp_le_i32 {sSPIN}, 0
        s_cbranch_scc1 {lab}
        s_sub_u32 {sSPIN}, {sSPIN}, 1'''

    vX, vW1, vW2 = 32, 36, 40
    if rot == 'none': a(f's_mov_b32 {sKAP}, 0')
    elif rot == 'x': a(f's_mov_b32 {sKAP}, {sT0}')
    elif rot == 'xj': a(f's_add_u32 {sKAP}, {sT0}, {sJ}\ns_and_b32 {sKAP}, {sKAP}, 7')
    a(f'''
    s_sub_u32 {sHW}, {sWAVE}, 4
    v_lshrrev_b32 v49, 4, v0
    v_and_b32 v51, 15, v0
    v_mul_u32_u24 v53, 3584, v49
    v_lshlrev_b32 v52, 1, v49
    v_xor_b32 v52, v52, v51
    v_lshl_add_u32 v{vW1}, v52, 4, v53
    v_add_u32 v{vW1+1}, {4*3584-1024}, v{vW1}
    v_xor_b32 v52, 8, v52
    v_lshl_add_u32 v52, v52, 4, v53
    v_add_u32 v{vW1+2}, {(4*3584-1024)*2}, v52
    v_add_u32 v{vW1+3}, {(4*3584-1024)*3}, v52
    s_mul_i32 {sW1OFF}, {sHW}, {32*3584}
    s_lshl_b32 {sT0}, {sJ}, 8
    s_add_u32 {sW1OFF}, {sW1OFF}, {sT0}
    s_lshl_b32 {sM0B}, {sHW}, 13
    s_mov_b32 s14, 1835008
    s_mov_b32 s15, 0x20000
    v_lshrrev_b32 v48, 3, v0
    v_and_b32 v50, 7, v0
    s_cmp_ge_u32 {sJ}, 14
    s_cbranch_scc1 L_lspare
    ''')
    xsetup = lines(f'''
    v_xor_b32 v52, v49, v50
    v_lshlrev_b32 v52, 4, v52
    v_lshl_add_u32 v{vX}, v48, 10, v52
    v_xor_b32 v{vX+1}, 64, v{vX}
    v_add_u32 v{vX+1}, {7*1024}, v{vX+1}
    v_add_u32 v{vX+2}, {14*1024}, v{vX}
    v_add_u32 v{vX+3}, {14*1024}, v{vX+1}
    s_lshl_b32 {sXOFF}, {sG}, 17
    s_lshl_b32 {sT0}, {sHW}, 16
    s_add_u32 {sXOFF}, {sXOFF}, {sT0}
    ''')
    w2setup = common_setup() + lines(f'''
    s_mov_b64 s[16:17], {ka(3)}
    s_mov_b32 s18, 1835008
    s_mov_b32 s19, 0x20000
    v_and_b32 v52, 1, v49
    v_lshlrev_b32 v52, 2, v52
    v_xor_b32 v52, v52, v50
    v_lshlrev_b32 v52, 4, v52
    v_lshl_add_u32 v{vW2}, v48, 10, v52
    v_add_u32 v{vW2+1}, {7*1024}, v{vW2}
    v_add_u32 v{vW2+2}, {14*1024}, v{vW2}
    v_add_u32 v{vW2+3}, {21*1024}, v{vW2}
    s_lshl_b32 {sW2A}, {sHW}, 17
    s_lshl_b32 {sT2}, {sC}, 7
    s_add_u32 {sW2A}, {sW2A}, {sT2}
    s_lshl_b32 {sT2}, {sR}, 15
    s_add_u32 {sW2A}, {sW2A}, {sT2}
    s_xor_b32 {sW2B}, {sW2A}, 32768
    ''')
    def grp(pre, vb, srd, soff):
        return [(pre if i == 0 else '') + f'buffer_load_dwordx4 v{vb+i}, {srd}, {soff} offen offset:{1024*i} lds' for i in range(4)]
    def dma_stage_ops(s):
        slot = (s % 4) * SLOT
        g = grp(f'''s_mul_i32 {sT1}, {sKAP}, {64*3584}
        s_add_u32 m0, {sM0B}, {slot+16384}
        s_add_u32 {sT1}, {sT1}, {sW1OFF}
        ''', vW1, W1, sT1)
        g += grp(f'''s_add_u32 m0, {sM0B}, {slot+16384+4096}
        s_add_u32 {sT1}, {sT1}, {16*3584}
        ''', vW1, W1, sT1)
        g += grp(f'''s_lshl_b32 {sT0}, {sKAP}, 7
        s_add_u32 m0, {sM0B}, {slot}
        s_add_u32 {sT0}, {sT0}, {sXOFF}
        ''', vX, X, sT0)
        g += grp(f'''s_add_u32 {sKAP}, {sKAP}, 1
        s_and_b32 {sKAP}, {sKAP}, 7
        s_add_u32 m0, {sM0B}, {slot+4096}
        s_add_u32 {sT0}, {sT0}, 32768
        ''', vX, X, sT0)
        return g
    def w2_unit_ops(u):
        stage, uu = divmod(u, 7)
        goff = 256 * uu * 1024
        g = []
        for h in range(2):
            g += grp(f'''s_add_u32 m0, {sM0B}, {unit_addr(u)+4096*h}
            s_add_u32 {sT2}, {sW2B if stage else sW2A}, {goff+65536*h}
            ''', vW2, W2, sT2)
        return g
    for o in xsetup: a(o)
    a(f'''
    s_waitcnt lgkmcnt(0)
    s_mov_b64 s[12:13], {ka(1)}
    s_mov_b64 s[8:9], {ka(0)}
    ''')
    stream = []
    for s in range(8): stream += dma_stage_ops(s)
    for u in range(9): stream += w2_unit_ops(u)
    bar_at = {}
    for k in range(-1, 8):
        pos = 16 * (k + 2) + lead
        lim = 16 * (k + 4) if k < 4 else 128 + 8 * (1 + 2 * (k - 4))
        if k >= 0: pos = min(pos, lim)
        bar_at[pos] = k
    for i, o in enumerate(stream):
        if i in bar_at:
            k = bar_at[i]
            st(f'h:pa{k+1}')
            if k < 7: a(f's_waitcnt vmcnt({i - 16 * (k + 2)})')
            st(f'h:pb{k+1}')
            a('s_barrier')
            st(f'h:pc{k+1}')
        a(o)
        if i == 19:
            for z in w2setup: a(z)
    a('s_branch L_lpost')
    a('L_lspare:')
    a('s_waitcnt lgkmcnt(0)')
    for z in w2setup: a(z)
    for u in range(9):
        for o in w2_unit_ops(u): a(o)
    a('L_lpost:')
    st('h:w9')
    a(b2_load())
    a('s_waitcnt vmcnt(41)')
    a('s_barrier')
    a('s_waitcnt vmcnt(0)')
    final_setup()
    a('s_barrier')
    if lprio: a(f's_setprio {lprio}')
    for u in range(9, 14):
        for o in w2_unit_ops(u): a(o)
    st('h:w2issued')
    a('s_waitcnt vmcnt(0)')
    st('h:w2landed')
    a('s_barrier')
    a('s_branch L_final')

    a('L_serv:')
    ST = 64
    SA = 80
    vEPA, vPOLL = 17, 12
    a(f'''
    s_sub_u32 {sHW}, {sWAVE}, 6
    v_lshrrev_b32 v52, 4, v0
    v_and_b32 v53, 15, v0
    v_lshlrev_b32 v53, 4, v53
    v_lshl_add_u32 v53, v52, 10, v53
    s_lshl_b32 {sT0}, {sG}, 17
    s_lshl_b32 {sT1}, {sJ}, 13
    s_add_u32 {sT3}, {sT0}, {sT1}
    s_lshl_b32 {sT1}, {sHW}, 12
    s_add_u32 {sT3}, {sT3}, {sT1}
    s_lshl_b32 {sT1}, {sG}, 4
    v_mov_b32 v{vEPA}, {sT1}
    s_mov_b32 s30, 256
    s_mov_b32 s31, 0x20000
    s_add_u32 {sT2}, {sJ}, {sHW}
    s_waitcnt lgkmcnt(0)
    s_mov_b64 s[8:9], {ka(0)}
    s_mov_b64 s[28:29], {ka(6)}
    s_cmp_lg_u32 {sT2}, 0
    s_cbranch_scc1 L_s_nolead
    s_lshl_b32 {sT1}, s62, 4
    s_or_b32 {sT1}, {sT1}, 8
    v_mov_b32 v54, {sT1}
    s_mov_b64 exec, 1
    buffer_store_dword v54, v{vEPA}, {DBG}, 0 offen sc1
    s_mov_b64 exec, -1
    L_s_nolead:
    ''')
    for i in range(4):
        a(f'buffer_load_dwordx4 {vr(ST+4*i,4)}, v53, {X}, {sT3} offen offset:{256*i}')
    for z in common_setup() + ws_setup(): a(z)
    a(f'''
    s_mov_b32 {sONES}, 0x3f803f80
    s_lshl_b32 {sT0}, {sJ}, 6
    s_lshl_b32 {sT1}, {sHW}, 5
    s_add_u32 {sT0}, {sT0}, {sT1}
    s_add_u32 {sT0}, {sT0}, 1024
    v_lshlrev_b32 v55, 3, v52
    v_add_u32 v55, {sT0}, v55
    v_lshlrev_b32 v56, 4, v0
    s_add_u32 {sT3}, {sFLG}, 1024
    v_add_u32 v57, {XCH}, v56
    s_mov_b32 m0, {XCH}
    ''')
    for i in range(8): a(f'v_mov_b32 v{SA+i}, 0')
    for i in range(4):
        a(f's_waitcnt vmcnt({3-i + (1 if i else 0)})')
        if i == 0: a(f'buffer_load_dword v{vPOLL}, v{vEPA}, {DBG}, 0 offen sc1')
        for d in range(4):
            r = ST + 4 * i + d
            a(f'v_dot2_f32_bf16 v{SA+d}, v{r}, {sONES}, v{SA+d}')
            a(f'v_dot2_f32_bf16 v{SA+4+d}, v{r}, v{r}, v{SA+4+d}')
    a(f'''
    s_nop 2
    v_add_f32 v{SA}, v{SA}, v{SA+1}
    v_add_f32 v{SA+2}, v{SA+2}, v{SA+3}
    v_add_f32 v{SA+4}, v{SA+4}, v{SA+5}
    v_add_f32 v{SA+6}, v{SA+6}, v{SA+7}
    v_add_f32 v{SA}, v{SA}, v{SA+2}
    v_add_f32 v{SA+4}, v{SA+4}, v{SA+6}
    s_cmp_ge_u32 {sJ}, 14
    s_cbranch_scc1 L_s_nb0
    s_barrier
    L_s_nb0:
    ''')
    for mode in ('quad_perm:[1,0,3,2]', 'quad_perm:[2,3,0,1]', 'row_half_mirror', 'row_mirror'):
        a(f'''
        v_add_f32_dpp v{SA}, v{SA}, v{SA} {mode} row_mask:0xf bank_mask:0xf
        v_add_f32_dpp v{SA+4}, v{SA+4}, v{SA+4} {mode} row_mask:0xf bank_mask:0xf
        s_nop 1
        ''')
    a(f'''
    v_mul_f32 v{SA}, {f32(1.0/512)}, v{SA}
    v_mul_f32 v{SA+4}, {f32(1.0/512)}, v{SA+4}
    v_fma_f32 v{SA+4}, -v{SA}, v{SA}, v{SA+4}
    v_max_f32 v{SA+4}, 0, v{SA+4}
    v_cvt_pk_bf16_f32 v{SA+4}, v{SA+4}, v{SA+4}
    v_and_b32 v{SA+4}, {sMASK}, v{SA+4}
    v_add_f32 v{SA+4}, {f32(1e-5)}, v{SA+4}
    v_cvt_pk_bf16_f32 v{SA+4}, v{SA+4}, v{SA+4}
    v_and_b32 v{SA+4}, {sMASK}, v{SA+4}
    v_sqrt_f32 v{SA+4}, v{SA+4}
    s_nop 0
    v_cvt_pk_bf16_f32 v{SA}, -v{SA}, v{SA+4}
    ''')
    def bars(k0, k1, spare_sleep=0):
        if k1 <= k0: return
        l1, l2 = a.label('L_sb'), a.label('L_sb')
        a(f's_cmp_ge_u32 {sJ}, 14\ns_cbranch_scc1 {l1}')
        for k in range(k0, k1): a('s_barrier')
        if spare_sleep:
            a(f's_branch {l2}\n{l1}:\ns_sleep {spare_sleep}\n{l2}:')
        else:
            a(f'{l1}:')
    bars(0, svc[0] + 1)
    a(f'''
    L_s_ep:
    s_waitcnt vmcnt(0)
    v_readfirstlane_b32 {sEP}, v{vPOLL}
    s_cmp_lg_u32 {sEP}, 0
    s_cbranch_scc1 L_s_ep2
    {spin_guard('L_s_ep2')}
    s_sleep 2
    buffer_load_dword v{vPOLL}, v{vEPA}, {DBG}, 0 offen sc1
    s_branch L_s_ep
    L_s_ep2:
    s_or_b32 {sT0}, {sEP}, {sXCC}
    v_mov_b32 v{SA+1}, {sT0}
    s_mov_b32 exec_lo, 0x00010001
    s_mov_b32 exec_hi, 0x00010001
    buffer_store_dwordx2 {vr(SA,2)}, v55, {WS}, {sFLG} offen sc1
    s_mov_b64 exec, -1
    ''')
    st('s:pub')
    a(b2_load())
    if touch:
        a(f'''
        s_mul_i32 {sT0}, {sG}, {H_G}
        v_lshlrev_b32 v58, 16, v0
        v_min_u32 v58, {H_G - 4}, v58
        s_lshl_b32 {sT1}, {sG}, 17
        s_lshl_b32 {sT2}, {sR}, 16
        s_add_u32 {sT1}, {sT1}, {sT2}
        s_mov_b64 exec, 0xff
        buffer_load_dword v59, v58, {WS}, {sT0} offen sc1
        s_mov_b64 exec, 1
        buffer_load_dword v60, v58, {OUT}, {sT1} offen sc1
        s_mov_b64 exec, -1
        ''')
    bars(svc[0] + 1, svc[1] + 1, spare_sleep=48)
    a(f'''
    s_cmp_eq_u32 {sHW}, 1
    s_cbranch_scc1 L_s_g0
    buffer_load_dwordx4 v56, {WS}, {sT3} offen sc1 lds
    L_s_g0:
    ''')
    bars(svc[1] + 1, svc[2] + 1)
    a(f'''
    s_cmp_eq_u32 {sHW}, 1
    s_cbranch_scc1 L_s_g2
    L_s_g:
    s_waitcnt vmcnt(0)
    ds_read_b128 {vr(ST,4)}, v57
    s_waitcnt lgkmcnt(0)
    v_xor_b32 v{ST+1}, {sEP}, v{ST+1}
    v_xor_b32 v{ST+3}, {sEP}, v{ST+3}
    v_or_b32 v{ST+1}, v{ST+1}, v{ST+3}
    v_cmp_lt_u32 vcc, 7, v{ST+1}
    s_cbranch_vccz L_s_g2
    {spin_guard('L_s_g2')}
    s_sleep 4
    buffer_load_dwordx4 v56, {WS}, {sT3} offen sc1 lds
    s_branch L_s_g
    L_s_g2:
    ''')
    st('s:got')
    bars(svc[2] + 1, 8)
    a('s_waitcnt vmcnt(0)')
    final_setup()
    a('s_barrier')
    a('s_barrier')
    a('s_barrier')
    if rst:
        a(f'''
        s_add_u32 {sT2}, {sJ}, {sHW}
        s_cmp_lg_u32 {sT2}, 0
        s_cbranch_scc1 L_s_norst
        v_mov_b32 v54, 0
        s_mov_b64 exec, 1
        buffer_store_dword v54, v{vEPA}, {DBG}, 0 offen sc1
        s_mov_b64 exec, -1
        L_s_norst:
        ''')
    if wb:
        a(f'''
        s_cmp_lg_u32 {sWAVE}, 7
        s_cbranch_scc1 L_final
        s_cmp_lg_u32 {sJ}, 15
        s_cbranch_scc1 L_final
        buffer_wbl2 sc1
        ''')
    a('s_branch L_final')

    a('L_comp:')
    aB, aA, aW = 2, 4, 8
    vHS, vHL, vPOLL, vPA = 10, 11, 12, 13
    vXA, vTA = 14, 15
    vFLAGA, vFLAGV, vRA = 17, 18, 19
    vKC, vS = 20, 28
    ACC, FR, GT = 32, 96, 224
    vBAUG, vAAUG = FR, GT + 24
    CS, vONE, vBI = GT + 16, GT + 28, GT + 5
    q = [GT + 8 + i for i in range(8)]
    tm, tq, tr, tc, t4, t5, t6, t7 = q
    a(f'''
    s_lshr_b32 {sWM}, {sWAVE}, 1
    s_and_b32 {sWN}, {sWAVE}, 1
    v_and_b32 v{tm}, 15, v0
    v_lshrrev_b32 v{tq}, 4, v0
    v_lshrrev_b32 v{t4}, 1, v{tm}
    v_xor_b32 v{t4}, v{t4}, v{tq}
    v_lshlrev_b32 v{t4}, 4, v{t4}
    v_lshl_add_u32 v{t4}, v{tm}, 7, v{t4}
    s_lshl_b32 {sT0}, {sWM}, 13
    v_add_u32 v{aB}, {sT0}, v{t4}
    v_xor_b32 v{aB+1}, 64, v{aB}
    v_lshrrev_b32 v{tr}, 2, v{tm}
    v_and_b32 v{tc}, 3, v{tm}
    v_and_b32 v{t5}, 1, v{tq}
    v_lshl_or_b32 v{t5}, v{t5}, 2, v{tr}
    v_lshl_add_u32 v{t6}, v{tq}, 3, v{tr}
    v_lshlrev_b32 v{t6}, 8, v{t6}
    v_lshl_add_u32 v{t6}, v{tc}, 3, v{t6}
    v_add_u32 v{t6}, 16384, v{t6}
    s_lshl_b32 {sT0}, {sWN}, 2
    s_lshl_b32 {sT1}, {sWM}, 1
    s_or_b32 {sT0}, {sT0}, {sT1}
    v_xor_b32 v{t5}, {sT0}, v{t5}
    v_lshl_add_u32 v{aA}, v{t5}, 5, v{t6}
    v_xor_b32 v{aA+1}, 32, v{aA}
    v_xor_b32 v{aA+2}, 64, v{aA}
    v_xor_b32 v{aA+3}, 96, v{aA}
    s_mov_b32 {sONES}, 0x3f803f80
    v_mov_b32 v{vONE}, {sONES}
    v_mov_b32 v{vONE+1}, {sONES}
    v_mov_b32 v{vONE+2}, {sONES}
    v_mov_b32 v{vONE+3}, {sONES}
    s_waitcnt lgkmcnt(0)
    ''')
    setup2 = common_setup() + ws_setup() + lines(f'''
    v_lshlrev_b32 v{vHL}, 4, v0
    v_lshrrev_b32 v{t4}, 5, v0
    v_lshl_add_u32 v{t6}, v{t4}, 2, v{tr}
    v_lshlrev_b32 v{t6}, 7, v{t6}
    v_lshl_add_u32 v{t6}, v{tc}, 3, v{t6}
    v_and_b32 v{t5}, 1, v{tq}
    v_lshl_add_u32 v{t6}, v{t5}, 5, v{t6}
    v_lshrrev_b32 v{t5}, 1, v{tr}
    v_lshl_add_u32 v{t6}, v{t5}, 6, v{t6}
    s_lshl_b32 {sT0}, {sWN}, 12
    s_add_u32 {sT0}, {sT0}, {unit_addr(0)}
    v_add_u32 v{aW}, {sT0}, v{t6}
    v_xor_b32 v{aW+1}, 64, v{aW}
    v_min_u32 v{vPA}, 13, v0
    v_lshlrev_b32 v{vPA}, 2, v{vPA}
    s_lshl_b32 {sT0}, {sR}, 1
    s_add_u32 {sT0}, {sT0}, {sWN}
    s_lshl_b32 {sT0}, {sT0}, 7
    v_add_u32 v{vPA}, {sT0}, v{vPA}
    s_mul_i32 {sHB}, {sG}, {H_G}
    s_mul_i32 {sT0}, {sWN}, {H_KH}
    s_add_u32 {sHB}, {sHB}, {sT0}
    s_mul_i32 {sT0}, {sR}, {H_WM}
    s_add_u32 {sHC}, {sHB}, {sT0}
    s_mul_i32 {sT0}, {sWM}, {H_MB}
    s_add_u32 {sHC}, {sHC}, {sT0}
    v_lshlrev_b32 v{vTA}, 6, v{tm}
    v_add_u32 v{vTA}, {XCH+4}, v{vTA}
    v_and_b32 v16, 31, v0
    v_lshlrev_b32 v16, 8, v16
    v_xor_b32 v{t5}, v{t4}, v{tm}
    v_lshl_add_u32 v16, v{t5}, 4, v16
    s_lshl_b32 {sT0}, {sWN}, 14
    s_lshl_b32 {sT1}, {sWM}, 13
    s_add_u32 {sT0}, {sT0}, {sT1}
    s_add_u32 {sT0}, {sT0}, {RED}
    v_add_u32 v16, {sT0}, v16
    ''')
    vRW = 16
    setup1 = lines(f'''
    s_mov_b64 s[32:33], {ka(2)}
    s_mov_b32 s34, 3584
    s_mov_b32 s35, 0x20000
    v_lshlrev_b32 v{t7}, 1, v{tm}
    s_lshl_b32 {sT0}, {sJ}, 8
    s_lshl_b32 {sT1}, {sWN}, 7
    s_add_u32 {sT0}, {sT0}, {sT1}
    s_lshl_b32 {sT1}, {sWM}, 6
    s_add_u32 {sT0}, {sT0}, {sT1}
    ''') + [(f'buffer_load_ushort v{vBI}, v{t7}, {B1}, {sT0} offen', 'bias'),
            (f'buffer_load_ushort v{vBI+1}, v{t7}, {B1}, {sT0} offen offset:32', 'bias')] + lines(f'''
    v_lshlrev_b32 v{vHS}, 4, v{tm}
    v_lshl_add_u32 v{vHS}, v{tq}, 9, v{vHS}
    s_mul_i32 {sT0}, {sWM}, {H_WM}
    s_add_u32 {sHB}, {sHB}, {sT0}
    s_lshl_b32 {sT0}, {sJ}, 11
    s_add_u32 {sHB}, {sHB}, {sT0}
    s_lshl_b32 {sT0}, {sWAVE}, 7
    s_lshl_b32 {sT1}, {sJ}, 2
    s_add_u32 {sT0}, {sT0}, {sT1}
    v_mov_b32 v{vFLAGA}, {sT0}
    s_mov_b32 {sSEL0}, 0x01000100
    s_mov_b32 {sSEL1}, 0x07060302
    s_mov_b32 {sSEL2}, 0x05040302
    s_mov_b64 s[100:101], 0xffff
    v_lshlrev_b32 v{vRA}, 3, v{tm}
    s_lshl_b32 {sT0}, {sWM}, 9
    s_add_u32 {sT0}, {sT0}, {XCH}
    v_add_u32 v{vRA}, {sT0}, v{vRA}
    s_lshl_b32 {sT0}, {sWAVE}, 10
    s_add_u32 {sT0}, {sT0}, {XCH2}
    v_add_u32 v{vXA}, {sT0}, v{vHL}
    v_xor_b32 v1, 2048, v{vXA}
    ''')
    V = VQ(a)
    L = LQ(a)
    def put(o):
        if callable(o): o()
        elif isinstance(o, tuple): a(o[0]); V.op(o[1])
        elif o.startswith('ds_'): L.op(o)
        else: a(o)
    def poll_h_issue(stage):
        a(f'buffer_load_dword v{vPOLL}, v{vPA}, {WS}, {sFLG} offen offset:{64*stage} sc1'); V.op('p')
    def poll_h_check(stage, sleep=1):
        l1, l2, l3 = a.label('L_ph'), a.label('L_ph'), a.label('L_ph')
        V.need('p')
        a(f'''
        {l1}:
        v_cmp_ne_u32 vcc, {sEP}, v{vPOLL}
        s_cbranch_vccnz {l3}
        {l2}:
        ''')
        tail(f'''
        {l3}:
        {spin_guard(l2)}
        s_sleep {sleep}
        buffer_load_dword v{vPOLL}, v{vPA}, {WS}, {sFLG} offen offset:{64*stage} sc1
        s_waitcnt vmcnt(0)
        s_branch {l1}
        ''')
    NS = 8
    def wreads_at(n, base):
        ad = unit_addr(n // 2) + 8192 * (n % 2)
        fb = FR + 16 * ((n + 1) % NS)
        return [f'ds_read_b64_tr_b16 {vr(fb+8*ph+4*dl+2*h,2)}, v{aW+dl} offset:{ad-base+1024*ph+2048*h}'
                for ph in range(2) for dl in range(2) for h in range(2)]
    def rebase(delta): return [f'v_add_u32 v{aW+dl}, {delta & 0xffffffff:#x}, v{aW+dl}' for dl in range(2)]
    def pf_list(b):
        if b == 0: return wreads_at(0, unit_addr(0)) + wreads_at(1, unit_addr(0)) + rebase(-unit_addr(0)) + wreads_at(2, 0) + wreads_at(3, 0)
        return sum((wreads_at(n, 0) for n in range(4, 8)), [])
    for o in setup2: put(o)
    a(f'''
    s_cmp_lt_u32 {sJ}, 14
    s_cbranch_scc1 L_c_reg
    ''')
    a(b2_load())
    a('s_barrier')
    a(f'ds_read_b32 v1, v{vTA}')
    for o in pf_list(0) + pf_list(1): a(o)
    a('s_waitcnt vmcnt(0) lgkmcnt(0)')
    a('s_barrier')
    a(f'v_readfirstlane_b32 {sEP}, v1')
    final_setup()
    a(f's_andn2_b32 {sEP}, {sEP}, 7')
    poll_h_issue(0)
    poll_h_check(0, sleep=12)
    a('s_branch L_c_p2')
    a('L_c_reg:')
    V.q = []; L.q = []
    for o in setup1: put(o)
    def reads(s):
        so = (s & 1) * SLOT
        out = []
        for ks in range(2):
            fb = FR + 64 * (s & 1) + 32 * ks
            rb = [f'ds_read_b128 {vr(fb+4*mt,4)}, v{aB+ks} offset:{so+2048*mt}' for mt in range(4)]
            ra = [[f'ds_read_b64_tr_b16 {vr(fb+16+4*t+2*h,2)}, v{aA+t} offset:{so+8192*ks+1024*h}' for h in range(2)] for t in range(4)]
            out += ra[0] + rb + ra[1] + ra[2] + ra[3]
        return out
    def mfmas(s):
        out = []
        for ks in range(2):
            fb = FR + 64 * (s & 1) + 32 * ks
            for t in range(4):
                if t < 2:
                    c = '0' if (s == 0 and ks == 0) else vr(CS + 4 * t, 4)
                    out.append(f'v_mfma_f32_16x16x32_bf16 {vr(CS+4*t,4)}, {vr(vONE,4)}, {vr(fb+16+4*t,4)}, {c}')
                for mt in range(4):
                    d = ACC + 4 * (4 * mt + t)
                    c = '0' if (s == 0 and ks == 0) else vr(d, 4)
                    out.append(f'v_mfma_f32_16x16x32_bf16 {vr(d,4)}, {vr(fb+16+4*t,4)}, {vr(fb+4*mt,4)}, {c}')
        return out
    toggle = [f'v_xor_b32 v{r}, 0x10000, v{r}' for r in range(aB, aB + 6)]
    st('c:rdy')
    a('s_barrier')
    st('c:B0')
    for o in reads(0): L.op(o)
    NM = 36
    chks = chk if isinstance(chk, (list, tuple)) else [chk] * 8
    for s in range(8):
        ms = mfmas(s)
        slots = [[] for _ in range(NM)]
        c = chks[s]
        def barfn(s=s):
            L.drain(); st(f'c:A{s+1}'); a('s_barrier'); st(f'c:B{s+1}')
        slots[c].append(barfn)
        if s < 7:
            rd = reads(s + 1)
            per = 1 if NM - c - 1 >= 24 else 2
            if s % 2 == 1:
                for i, t in enumerate(toggle): slots[i * c // 6].append(t)
                slots[c].remove(barfn); slots[c].append(barfn)
            k = 0; i = c
            while k < len(rd):
                slots[i] += rd[k:k+per]; k += per; i += 1
        else:
            ex = [f'ds_read_b32 v{GT+mt}, v{vRA} offset:{128*mt}' for mt in range(4)]
            ex += [f'ds_read_b32 v{GT+4}, v{vTA}']
            for i in range(5): slots[i].insert(0, ex[i])
            ex = [(b2_load(), 'b2')]
            for mt in range(4):
                ex += [f'v_cndmask_b32 v{vBAUG+2*mt+1}, 0, v{GT+mt}, s[100:101]',
                       f'v_and_b32 v{vS+mt}, {sMASK}, v{GT+mt}',
                       f'v_perm_b32 v{vBAUG+2*mt}, v{vBAUG+2*mt+1}, v{vBAUG+2*mt+1}, {sSEL0}',
                       f'v_rcp_f32 v{GT+mt}, v{vS+mt}']
            ex += [f'v_readfirstlane_b32 {sEP}, v{GT+4}']
            for mt in range(4):
                ex += [f'v_mul_f32 v{vKC+2*mt}, {f32(K1C)}, v{GT+mt}',
                       f'v_mul_f32 v{vKC+2*mt+1}, v{GT+mt}, v{GT+mt}',
                       f'v_mul_f32 v{GT+mt}, {f32(K3C)}, v{GT+mt}',
                       f'v_mul_f32 v{vKC+2*mt+1}, v{vKC+2*mt+1}, v{GT+mt}']
            ex += [f's_andn2_b32 {sEP}, {sEP}, 7', f's_or_b32 {sT0}, {sEP}, {sXCC}',
                   f'v_cmp_ne_u32 s[98:99], {sT0}, v{GT+4}', f'v_mov_b32 v{vFLAGV}, {sEP}']
            if force_slow: ex.append('s_mov_b64 s[98:99], -1')
            assert 5 <= c <= 8
            k = 0
            for i in range(c + 1, 29):
                slots[i] += ex[k:k+2]; k += 2
            assert k >= len(ex)
            ex = [lambda: V.need('bias')]
            for t in range(2):
                cc = CS + 4 * t
                ex += [f'v_and_b32 v{cc+1}, {sMASK}, v{cc}',
                       f'v_sub_f32 v{cc+1}, v{cc}, v{cc+1}',
                       f'v_and_b32 v{cc+2}, {sMASK}, v{cc+1}',
                       f'v_sub_f32 v{cc+2}, v{cc+1}, v{cc+2}',
                       f'v_perm_b32 v{vAAUG+2*t}, v{cc+1}, v{cc}, {sSEL1}',
                       f'v_perm_b32 v{vAAUG+2*t+1}, v{vBI+t}, v{cc+2}, {sSEL2}']
            ex += [f'ds_write_b128 v{vXA}, {vr(vAAUG,4)}']
            k = 0
            for i in range(29, 36):
                slots[i] += ex[k:k+2]; k += 2
            assert k >= len(ex)
        st(f'c:S{s}')
        fb = FR + 64 * (s & 1)
        for i, m in enumerate(ms):
            if i == 0: L.need(set(range(fb, fb + 24)))
            L.mfma(m)
            for o in slots[i]: put(o)
    st('c:kend')
    def aug(ts):
        return [f'v_mfma_f32_16x16x16_bf16 {vr(ACC+4*(4*mt+t),4)}, {vr(vAAUG+2*t,2)}, {vr(vBAUG+2*mt,2)}, {vr(ACC+4*(4*mt+t),4)}'
                for mt in range(4) for t in ts]
    a('s_nop 0')
    for m in aug((0, 1)): L.mfma(m)
    a('s_nop 1')
    st('c:aug')
    def store2(ins, tag):
        l1 = a.label('L_s')
        a(f'''
        s_cbranch_scc0 {l1}a
        {ins}
        {l1}:
        ''')
        tail(f'''
        {l1}a:
        {ins} sc1
        s_branch {l1}
        ''')
        V.op(tag)
    def flag_h(stage):
        V.need(f'h{stage}')
        a('s_mov_b64 exec, 1')
        a('s_cmp_eq_u64 s[98:99], 0')
        store2(f'buffer_store_dword v{vFLAGV}, v{vFLAGA}, {WS}, {sFLG} offen offset:{64*stage}', 'f')
        a('s_mov_b64 exec, -1')
    idx = 0
    for stg in range(2):
        for mt in range(4):
            A = ACC + 16 * mt + 8 * stg
            T = GT + 8 * (idx & 1)
            O = GT + 16 + 4 * (idx & 3)
            P = lambda r: vr(r, 2)
            kc = vr(vKC + 2 * mt, 2)
            s_ = vr(vS + (mt & ~1), 2)
            ssel = 'op_sel:[0,1,1] op_sel_hi:[1,1,1]' if mt & 1 else 'op_sel_hi:[1,0,0]'
            mids = []
            if idx == 3:
                L.drain(); st('c:Xa'); a('s_barrier'); st('c:Xb')
                L.op(f'ds_read_b128 {vr(vAAUG+4,4)}, v1')
            if idx == pfat[1] + 1:
                L.drain(); st('c:Ya'); a('s_barrier'); st('c:Yb')
            for b in range(2):
                if idx == pfat[b]: mids = pf_list(b)
            body = []
            for i in range(0, 8, 2): body.append(f'v_pk_mul_f32 {P(T+i)}, {P(A+i)}, {P(A+i)}')
            for i in range(0, 8, 2): body.append(f'v_pk_fma_f32 {P(T+i)}, {P(T+i)}, {kc}, {kc} op_sel:[0,1,0] op_sel_hi:[1,1,0]')
            for i in range(0, 8, 2): body.append(f'v_pk_mul_f32 {P(T+i)}, {P(A+i)}, {P(T+i)}')
            for i in range(8): body.append(f'v_exp_f32 v{T+i}, v{T+i}')
            for i in range(0, 8, 2): body.append(f'v_pk_fma_f32 {P(T+i)}, {P(T+i)}, {s_}, {s_} {ssel}')
            for i in range(8): body.append(f'v_rcp_f32 v{T+i}, v{T+i}')
            for i in range(0, 8, 2): body.append(f'v_pk_mul_f32 {P(T+i)}, {P(A+i)}, {P(T+i)}')
            for i in range(4): body.append(f'v_cvt_pk_bf16_f32 v{O+i}, v{T+2*i}, v{T+2*i+1}')
            am = aug((2, 3)) if idx == 3 else []
            for i, o in enumerate(body):
                if am and 24 <= i < 32: L.mfma(am[i - 24])
                a(o)
                if i < len(mids): put(mids[i])
            a(f's_add_u32 {sT0}, {sHB}, {(mt>>1)*H_MB + stg*H_ST}')
            a('s_cmp_eq_u64 s[98:99], 0')
            store2(f'buffer_store_dwordx4 {vr(O,4)}, v{vHS}, {WS}, {sT0} offen offset:{256*(mt&1)}', f'h{stg}')
            st(f'c:g{idx}')
            idx += 1
            if idx == flagat:
                flag_h(0)
                st('c:flagA')
            if idx == 7 and earlypoll: poll_h_issue(0)
    if not earlypoll: poll_h_issue(0)
    if pfat[1] == 7:
        L.drain(); a('s_barrier')
    final_setup()
    if earlypoll:
        poll_h_check(0)
        flag_h(1)
    else:
        flag_h(1)
        poll_h_check(0)
    st('c:seenA')
    a('L_c_p2:')
    ACC2 = GT
    HR = ACC
    V.q = []; L.q = []
    def hload(n):
        r = HR + 8 * (n % D)
        pre = f's_add_u32 {sT3}, {sHC}, {2048*n}\n' if n % 2 == 0 else ''
        o = 2048 * (n % 2)
        return [pre + f'buffer_load_dwordx4 {vr(r,4)}, v{vHL}, {WS}, {sT3} offen offset:{o} sc1',
                f'buffer_load_dwordx4 {vr(r+4,4)}, v{vHL}, {WS}, {sT3} offen offset:{o+1024} sc1']
    cur_base = [0]
    def wreads(n):
        ad = unit_addr(n // 2) + 8192 * (n % 2)
        pre = []
        if not (0 <= ad - cur_base[0] <= 65535 - 8192):
            pre = rebase(ad - cur_base[0]); cur_base[0] = ad
        return pre + wreads_at(n, cur_base[0])
    pending = []
    for n in range(28):
        for ph, o in enumerate(hload(n)): pending.append((n, ph, o))
    def issue_h():
        n, ph, o = pending.pop(0)
        if n == 14 and ph == 0: poll_h_check(1)
        a(o); V.op((n, ph))
    for k in range(2 * ramp): issue_h()
    PD = 4
    assert 11 - PD < zat <= 18 - PD
    for n in range(28):
        fb = FR + 16 * ((n + 1) % NS)
        hr = HR + 8 * (n % D)
        st(f'c:n{n}')
        fill = []
        m = n + PD
        if n == zat:
            L.drain(); st('c:Za'); a('s_barrier'); st('c:Zb')
        if 8 <= m < 28: fill += wreads(m)
        if n == pollb: fill.append(lambda: poll_h_issue(1))
        if n == 27: fill += [f'v_xor_b32 v{HR+i}, {32*i}, v{vRW}' for i in range(1, 8)]
        per = (len(fill) + 2) // 3
        k = 0
        i = 0
        for ph in range(2):
            for dl in range(2):
                d = ACC2 + 16 * dl
                c = '0' if (n == 0 and ph == 0) else vr(d, 16)
                if dl == 0:
                    vc = V.count((n, ph))
                    lc = L.count(set(range(fb, fb + 16))) if ph == 0 else None
                    w = ([f'vmcnt({vc})'] if vc is not None else []) + ([f'lgkmcnt({lc})'] if lc is not None else [])
                    if w: a('s_waitcnt ' + ' '.join(w))
                a(f'v_mfma_f32_32x32x16_bf16 {vr(d,16)}, {vr(fb+8*ph+4*dl,4)}, {vr(hr+4*ph,4)}, {c}')
                for o in fill[k:k+per]: put(o)
                k += per
                if i >= 1 and pending and pending[0][0] <= n - 1 + D and (i != 2 or pending[0][0] < n - 1 + D):
                    issue_h()
                i += 1
    assert not pending
    st('c:p2end')
    a('s_nop 9')
    for dl in range(2):
        for g in range(4):
            i = 4 * dl + g
            ad = vRW if i == 0 else HR + i
            a(f'ds_write_b128 v{ad}, {vr(ACC2+16*dl+4*g,4)}')
    a('s_waitcnt lgkmcnt(0)')
    a('L_final:')
    a('s_barrier')
    st('c:W4')
    R = 64
    a(f'''
    ds_read_b128 {vr(R,4)}, v{vFA0}
    ds_read_b128 {vr(R+8,4)}, v{vFA0} offset:16384
    ds_read_b128 {vr(R+4,4)}, v{vFA1}
    ds_read_b128 {vr(R+12,4)}, v{vFA1} offset:16384
    s_lshl_b32 {sT0}, {sG}, 17
    s_lshl_b32 {sT1}, {sR}, 16
    s_add_u32 {sT0}, {sT0}, {sT1}
    s_lshl_b32 {sT1}, {sC}, 7
    s_add_u32 {sT0}, {sT0}, {sT1}
    s_waitcnt lgkmcnt(0)
    ''')
    for i in range(4): a(f'v_pk_add_f32 {vr(R+2*i,2)}, {vr(R+2*i,2)}, {vr(R+8+2*i,2)}')
    for i in range(4): a(f'v_cvt_pk_bf16_f32 v{R+8+i}, v{R+2*i}, v{R+2*i+1}')
    for i in range(4):
        a(f'v_lshlrev_b32 v{R+2*i}, 16, v{R+8+i}')
        a(f'v_and_b32 v{R+2*i+1}, {sMASK}, v{R+8+i}')
    for i in range(4): a(f'v_pk_add_f32 {vr(R+2*i,2)}, {vr(R+2*i,2)}, {vr(vB2f+2*i,2)}')
    for i in range(4): a(f'v_cvt_pk_bf16_f32 v{R+12+i}, v{R+2*i}, v{R+2*i+1}')
    a(f'buffer_store_dwordx4 {vr(R+12,4)}, v{vOUTO}, {OUT}, {sT0} offen {outaux}')
    if stamps:
        a('s_waitcnt vmcnt(0)')
        st('c:end')
        a(f'''
        s_cmp_eq_u32 {sWAVE}, {hst}
        s_cbranch_scc1 L_sth
        s_cmp_eq_u32 {sWAVE}, 6
        s_cbranch_scc1 L_sts
        s_cmp_lg_u32 {sWAVE}, {cst}
        s_cbranch_scc1 L_end
        ''')
        st_flush('c:')
        a('s_branch L_end')
        a('L_sts:')
        st_flush('s:')
        a('s_branch L_end')
        a('L_sth:')
        st_flush('h:')
    if padend:
        a(f'''
        L_pad:
        s_memrealtime s[94:95]
        s_waitcnt lgkmcnt(0)
        s_sub_u32 s94, s94, s62
        s_cmp_lt_u32 s94, {padend}
        s_cbranch_scc1 L_pad
        ''')
    a('s_endpgm')
    body = a.text() + tail.text() + 'L_end:\n'
    return make_file([(KNAME, body, 256, 102, 256)], [(KNAME, 256, 512, 163840)])

ST_MAIN = ['c:start', 'c:B0', 'c:kend', 'c:flagA', 'c:seenA', 'c:n1', 'c:p2end', 'c:end']
ST_K = ['c:start', 'c:rdy@', 'c:B0@', 'c:B1@', 'c:B3@', 'c:B5@', 'c:B7@', 'c:kend@']
ST_G = ['c:start', 'c:kend@', 'c:Xa@', 'c:Xb@', 'c:flagA@', 'c:Yb@', 'c:g7@', 'c:seenA@']
ST_P = ['c:start', 'c:seenA@', 'c:n1@', 'c:Za@', 'c:Zb@', 'c:p2end@', 'c:W4@', 'c:end@']
ST_H = ['c:start', 'h:pa0@', 'h:pb0@', 'h:pa4@', 'h:pb4@', 'h:pc4@', 'h:w9@', 'h:w2landed@']
if __name__ == '__main__':
    names = []
    def g(nm, **kw):
        open(nm + '.s', 'w').write(gen(**kw)); names.append(nm)
    g('k7')
    g('k7s', stamps=ST_MAIN)
    g('k7k', stamps=ST_K)
    g('k7g', stamps=ST_G)
    g('k7p', stamps=ST_P)
    g('k7h', stamps=ST_H)
    print(' '.join(names))
```

```python
from gen7 import *
names = []
def g(nm, **kw):
    open(nm + '.s', 'w').write(gen(**kw)); names.append(nm)
g('o7_base')
g('o7_t', touch=1)
g('o7_t_plain', touch=1, outaux='')
g('o7_t_pf67', touch=1, pfat=(6, 7))
g('o7_t_wb', touch=1, wb=True)
g('o7_t_p2end', touch=1, padat=('c:p2end', 1500))
print(' '.join(names))
```

```python
import sys, struct, re
from asmlib import *
from gen4 import LQ, VQ, f32, vr, regs_of, K1C, K3C

H_G, H_WM, H_MB, H_KH, H_ST = 524288, 229376, 114688, 57344, 28672
FLAG_BASE = 458752
WS_SIZE = 16 << 20
SLOT = 32768
XCH = 147456
XCH2 = XCH + 4096
RED = 49152
def unit_addr(u): return 147456 if u == 13 else ((u + 8) % 9) * 16384
def lines(s): return [l.strip() for l in s.strip().split('\n') if l.strip()]

def gen(stamps=None, rot='xj', force_slow=False, padend=0, outaux='nt', ramp=4, hst=4, cst=0, flagat=5,
        chk=(20, 12, 6, 6, 6, 6, 6, 6), lead=24, lead0=12, svc=(1, 3, 4), padat=None, touch=0, xat=3, sbat=8, npoll=2,
        wbat='', cs='smf2', recst=6, PD=4, wbd=0, wbj=(15,), cpf=1, leads=(12, 24, 24, 24, 24, 24, 16, 12, 16), spf=4, pf2at=6, fbpos='post', wrd=0, saat=8, wb1=False):
    a = Asm(); tail = Asm()
    NST = 12; D = 8
    sWAVE, sG, sJ, sR, sC = 's3', 's4', 's5', 's6', 's7'
    X, W1, W2, WS, OUT, DBG, B1, B2 = 's[8:11]', 's[12:15]', 's[16:19]', 's[20:23]', 's[24:27]', 's[28:31]', 's[32:35]', 's[36:39]'
    sXCC, sHW = 's41', 's42'
    sT0, sT1, sT2, sT3 = 's43', 's44', 's45', 's46'
    sXOFF, sW1OFF, sW2A, sFLG, sHB, sW2B, sM0B, sKAP = 's47', 's48', 's49', 's50', 's51', 's52', 's53', 's54'
    sMASK, sONES, sSPIN = 's55', 's56', 's57'
    sWM, sWN, sEP, sHC = 's58', 's59', 's60', 's61'
    sSEL0, sSEL1, sSEL2 = 's40', 's12', 's13'
    KA = 80 if stamps else 64
    stamps = stamps or []
    assert len(stamps) <= 8
    SB = 64
    own = cs != 'smf4'
    def ka(i): return f's[{KA+2*i}:{KA+2*i+1}]'
    def st(name):
        if padat and name == padat[0]:
            lab = a.label('L_padp')
            a(f'{lab}:\ns_memrealtime s[92:93]\ns_waitcnt lgkmcnt(0)\ns_sub_u32 s92, s92, s62\ns_cmp_lt_u32 s92, {padat[1]}\ns_cbranch_scc1 {lab}')
        for suffix, ins in (('', 's_memrealtime'), ('@', 's_memtime')):
            if name + suffix in stamps:
                i = stamps.index(name + suffix); a(f'{ins} s[{SB+2*i}:{SB+2*i+1}]')
    def st_flush(pref):
        a('s_waitcnt lgkmcnt(0)\ns_load_dwordx2 s[90:91], s[0:1], 56\ns_waitcnt lgkmcnt(0)')
        stamp_setup(a, NST)
        a('v_mov_b32 v250, 0')
        for i, n in enumerate(stamps):
            if not n.startswith(pref): continue
            if n == 'c:start': a(f's_mov_b64 s[{SB+2*i}:{SB+2*i+1}], s[62:63]')
            if n.endswith('@'):
                a(f's_sub_u32 s{SB+2*i}, s{SB+2*i}, s96\ns_add_u32 s{SB+2*i}, s{SB+2*i}, s62\ns_addc_u32 s{SB+2*i+1}, s63, 0')
            a(f'v_mov_b32 v252, s{SB+2*i}\nv_mov_b32 v253, s{SB+2*i+1}\nglobal_store_dwordx2 v250, v[252:253], s[90:91] offset:{i*8}\ns_nop 1')

    vB2raw, vB2f, vFA0, vFA1, vOUTO = 2, 20, 28, 29, 30
    a(f'''
    s_cmp_ge_u32 s2, 256
    s_cbranch_scc1 L_end
    s_load_dwordx16 s[{KA}:{KA+15}], s[0:1], 0
    s_memrealtime s[62:63]
    ''')
    if stamps: a('s_memtime s[96:97]')
    a(f'''
    v_lshrrev_b32 v1, 6, v0
    v_and_b32 v0, 63, v0
    s_and_b32 {sT0}, s2, 7
    v_readfirstlane_b32 {sWAVE}, v1
    s_lshr_b32 {sT1}, s2, 3
    s_lshr_b32 {sT2}, {sT1}, 4
    s_lshl_b32 {sG}, {sT0}, 1
    s_add_u32 {sG}, {sG}, {sT2}
    s_and_b32 {sJ}, {sT1}, 15
    s_mov_b32 s10, 2097152
    s_mov_b32 s11, 0x20000
    s_cmp_lt_u32 {sWAVE}, 4
    s_cbranch_scc1 L_comp
    s_cmp_ge_u32 {sWAVE}, 6
    s_cbranch_scc1 L_serv
    ''')
    def common_setup():
        perm = list(range(16)); perm[14], perm[11] = 11, 14; perm[15], perm[3] = 3, 15
        lo = sum(perm[i] << (4 * i) for i in range(8)); hi = sum(perm[8 + i] << (4 * i) for i in range(8))
        return lines(f'''
        s_mov_b32 s36, {lo:#x}
        s_mov_b32 s37, {hi:#x}
        s_lshl_b32 {sC}, {sJ}, 2
        s_lshr_b64 s[36:37], s[36:37], {sC}
        s_bfe_u32 {sR}, s36, 0x10003
        s_and_b32 {sC}, s36, 7
        s_mov_b32 {sMASK}, 0xffff0000
        s_mov_b64 s[36:37], {ka(4)}
        s_mov_b32 s38, 1024
        s_mov_b32 s39, 0x20000
        s_mov_b64 s[24:25], {ka(5)}
        s_mov_b32 s26, 2097152
        s_mov_b32 s27, 0x20000
        ''')
    def ws_setup():
        return lines(f'''
        s_mov_b64 s[20:21], {ka(7)}
        s_mov_b32 s22, {WS_SIZE}
        s_mov_b32 s23, 0x20000
        s_getreg_b32 {sXCC}, hwreg(HW_REG_XCC_ID, 0, 3)
        s_lshl_b32 {sFLG}, {sG}, 19
        s_add_u32 {sFLG}, {sFLG}, {FLAG_BASE}
        ''')
    def b2_load():
        return f'''v_and_b32 v{vB2raw+4}, 7, v0
        v_lshlrev_b32 v{vB2raw+4}, 4, v{vB2raw+4}
        s_lshl_b32 {sT0}, {sC}, 7
        buffer_load_dwordx4 {vr(vB2raw,4)}, v{vB2raw+4}, {B2}, {sT0} offen'''
    def final_setup():
        for i in range(4):
            a(f'v_lshlrev_b32 v{vB2f+2*i}, 16, v{vB2raw+i}')
            a(f'v_and_b32 v{vB2f+2*i+1}, {sMASK}, v{vB2raw+i}')
        a(f'''
        v_lshrrev_b32 v{vFA1}, 3, v0
        s_lshl_b32 {sT0}, {sWAVE}, 3
        v_add_u32 v{vFA1}, {sT0}, v{vFA1}
        v_lshl_add_u32 v{vOUTO}, v{vFA1}, 10, v{vB2raw+4}
        v_and_b32 v{vFA0}, 7, v0
        v_lshlrev_b32 v{vFA0}, 1, v{vFA0}
        v_and_b32 v{vB2raw}, 15, v{vFA1}
        v_xor_b32 v{vFA0}, v{vFA0}, v{vB2raw}
        v_lshlrev_b32 v{vFA0}, 4, v{vFA0}
        v_lshl_add_u32 v{vFA0}, v{vFA1}, 8, v{vFA0}
        v_add_u32 v{vFA0}, {RED}, v{vFA0}
        v_xor_b32 v{vFA1}, 16, v{vFA0}
        s_lshl_b32 {sXOFF}, {sG}, 17
        s_lshl_b32 {sT1}, {sR}, 16
        s_add_u32 {sXOFF}, {sXOFF}, {sT1}
        s_lshl_b32 {sT1}, {sC}, 7
        s_add_u32 {sXOFF}, {sXOFF}, {sT1}
        ''')
    def spin_guard(lab):
        return f's_cmp_le_i32 {sSPIN}, 0\ns_cbranch_scc1 {lab}\ns_sub_u32 {sSPIN}, {sSPIN}, 1'

    vX, vW1, vW2 = 32, 36, 40
    if rot == 'none': a(f's_mov_b32 {sKAP}, 0')
    elif rot == 'x': a(f's_mov_b32 {sKAP}, {sT0}')
    elif rot == 'xj': a(f's_add_u32 {sKAP}, {sT0}, {sJ}\ns_and_b32 {sKAP}, {sKAP}, 7')
    a(f'''
    s_sub_u32 {sHW}, {sWAVE}, 4
    v_lshrrev_b32 v49, 4, v0
    v_and_b32 v51, 15, v0
    v_mul_u32_u24 v53, 3584, v49
    v_lshlrev_b32 v52, 1, v49
    v_xor_b32 v52, v52, v51
    v_lshl_add_u32 v{vW1}, v52, 4, v53
    v_add_u32 v{vW1+1}, {4*3584-1024}, v{vW1}
    v_xor_b32 v52, 8, v52
    v_lshl_add_u32 v52, v52, 4, v53
    v_add_u32 v{vW1+2}, {(4*3584-1024)*2}, v52
    v_add_u32 v{vW1+3}, {(4*3584-1024)*3}, v52
    s_mul_i32 {sW1OFF}, {sHW}, {32*3584}
    s_lshl_b32 {sT0}, {sJ}, 8
    s_add_u32 {sW1OFF}, {sW1OFF}, {sT0}
    s_lshl_b32 {sM0B}, {sHW}, 13
    s_mov_b32 s14, 1835008
    s_mov_b32 s15, 0x20000
    v_lshrrev_b32 v48, 3, v0
    v_and_b32 v50, 7, v0
    s_cmp_ge_u32 {sJ}, 14
    s_cbranch_scc1 L_lspare
    v_xor_b32 v52, v49, v50
    v_lshlrev_b32 v52, 4, v52
    v_lshl_add_u32 v{vX}, v48, 10, v52
    v_xor_b32 v{vX+1}, 64, v{vX}
    v_add_u32 v{vX+1}, {7*1024}, v{vX+1}
    v_add_u32 v{vX+2}, {14*1024}, v{vX}
    v_add_u32 v{vX+3}, {14*1024}, v{vX+1}
    s_lshl_b32 {sXOFF}, {sG}, 17
    s_lshl_b32 {sT0}, {sHW}, 16
    s_add_u32 {sXOFF}, {sXOFF}, {sT0}
    s_waitcnt lgkmcnt(0)
    s_mov_b64 s[12:13], {ka(1)}
    s_mov_b64 s[8:9], {ka(0)}
    ''')
    w2setup = common_setup() + lines(f'''
    s_mov_b64 s[16:17], {ka(3)}
    s_mov_b32 s18, 1835008
    s_mov_b32 s19, 0x20000
    v_and_b32 v52, 1, v49
    v_lshlrev_b32 v52, 2, v52
    v_xor_b32 v52, v52, v50
    v_lshlrev_b32 v52, 4, v52
    v_lshl_add_u32 v{vW2}, v48, 10, v52
    v_add_u32 v{vW2+1}, {7*1024}, v{vW2}
    v_add_u32 v{vW2+2}, {14*1024}, v{vW2}
    v_add_u32 v{vW2+3}, {21*1024}, v{vW2}
    s_lshl_b32 {sW2A}, {sHW}, 17
    s_lshl_b32 {sT2}, {sC}, 7
    s_add_u32 {sW2A}, {sW2A}, {sT2}
    ''') + (lines(f's_lshl_b32 {sT2}, {sR}, 15\ns_add_u32 {sW2A}, {sW2A}, {sT2}') if own else []) + [f's_xor_b32 {sW2B}, {sW2A}, 32768']
    def grp(pre, vb, srd, soff):
        return [(pre if i == 0 else '') + f'buffer_load_dwordx4 v{vb+i}, {srd}, {soff} offen offset:{1024*i} lds' for i in range(4)]
    def dma_stage_ops(s):
        slot = (s % 4) * SLOT
        g = grp(f's_mul_i32 {sT1}, {sKAP}, {64*3584}\ns_add_u32 m0, {sM0B}, {slot+16384}\ns_add_u32 {sT1}, {sT1}, {sW1OFF}\n', vW1, W1, sT1)
        g += grp(f's_add_u32 m0, {sM0B}, {slot+16384+4096}\ns_add_u32 {sT1}, {sT1}, {16*3584}\n', vW1, W1, sT1)
        g += grp(f's_lshl_b32 {sT0}, {sKAP}, 7\ns_add_u32 m0, {sM0B}, {slot}\ns_add_u32 {sT0}, {sT0}, {sXOFF}\n', vX, X, sT0)
        g += grp(f's_add_u32 {sKAP}, {sKAP}, 1\ns_and_b32 {sKAP}, {sKAP}, 7\ns_add_u32 m0, {sM0B}, {slot+4096}\ns_add_u32 {sT0}, {sT0}, 32768\n', vX, X, sT0)
        return g
    def w2_unit_ops(u):
        stg_, uu = divmod(u, 7)
        g = []
        for h in range(2):
            g += grp(f's_add_u32 m0, {sM0B}, {unit_addr(u)+4096*h}\ns_add_u32 {sT2}, {sW2B if stg_ else sW2A}, {256*uu*1024+65536*h}\n', vW2, W2, sT2)
        return g
    stream = []
    for s in range(8): stream += dma_stage_ops(s)
    for u in range(9): stream += w2_unit_ops(u)
    bar_at = {}
    for k in range(-1, 8):
        pos = 16 * (k + 2) + (leads[k + 1] if leads else lead0 if k == -1 else lead)
        lim = 16 * (k + 4) if k < 4 else 128 + 8 * (1 + 2 * (k - 4))
        if k >= 0: pos = min(pos, lim)
        bar_at[pos] = k
    for i, o in enumerate(stream):
        if i in bar_at:
            k = bar_at[i]
            st(f'h:pa{k+1}')
            a(f's_waitcnt vmcnt({i - 16 * (k + 2)})')
            st(f'h:pb{k+1}')
            a('s_barrier')
        a(o)
        if i == 19:
            for z in w2setup: a(z)
    a('s_branch L_lpost')
    a('L_lspare:')
    a('s_waitcnt lgkmcnt(0)')
    for z in w2setup: a(z)
    if spf:
        a(f'''
        v_lshlrev_b32 v46, 4, v0
        s_and_b32 {sT0}, {sG}, 1
        s_lshl_b32 {sT0}, {sT0}, 1
        s_add_u32 {sT0}, {sT0}, {sJ}
        s_sub_u32 {sT0}, {sT0}, 14
        s_lshl_b32 {sT0}, {sT0}, 1
        s_add_u32 {sT0}, {sT0}, {sHW}
        s_lshl_b32 {sT0}, {sT0}, 15
        s_mov_b32 {sT1}, {spf * 8}
        L_spf:
        buffer_load_dwordx4 v[64:67], v46, {W2}, {sT0} offen
        buffer_load_dwordx4 v[68:71], v46, {W2}, {sT0} offen offset:1024
        buffer_load_dwordx4 v[72:75], v46, {W2}, {sT0} offen offset:2048
        buffer_load_dwordx4 v[76:79], v46, {W2}, {sT0} offen offset:3072
        s_add_u32 {sT0}, {sT0}, 4096
        s_sub_u32 {sT1}, {sT1}, 1
        s_and_b32 {sT3}, {sT1}, 7
        s_cselect_b32 {sT3}, 0, {262144 - 32768}
        s_add_u32 {sT0}, {sT0}, {sT3}
        s_cmp_lg_u32 {sT1}, 0
        s_cbranch_scc1 L_spf
        ''')
    for u in range(9):
        for o in w2_unit_ops(u): a(o)
    a('s_waitcnt vmcnt(56)')
    a('s_barrier')
    a('L_lpost:')
    st('h:w9')
    a(b2_load())
    STG = 128
    def w2_reg_ops(u):
        stg_, uu = divmod(u, 7)
        g = []
        for h in range(2):
            for i in range(4):
                r = STG + 32 * (u - 11) + 16 * h + 4 * i
                pre = f's_add_u32 {sT2}, {sW2B if stg_ else sW2A}, {256*uu*1024+65536*h}\n' if i == 0 else ''
                g.append(pre + f'buffer_load_dwordx4 {vr(r,4)}, v{vW2+i}, {W2}, {sT2} offen offset:{1024*i}')
        return g
    def w2_write(u):
        for z in range(8):
            r = STG + 32 * (u - 11) + 4 * z
            if u == 13: a(f'ds_write_b128 v45, {vr(r,4)} offset:{1024*z}')
            else: a(f'ds_write_b128 v44, {vr(r,4)} offset:{unit_addr(u)+1024*z}')
    a('s_waitcnt vmcnt(41)')
    a('s_barrier')
    for u in (9, 10):
        for o in w2_unit_ops(u): a(o)
    for u in (11, 12, 13):
        for o in w2_reg_ops(u): a(o)
    st('h:w2issued')
    a(f'''
    v_lshlrev_b32 v44, 4, v0
    v_add_u32 v44, {sM0B}, v44
    v_add_u32 v45, {unit_addr(13)}, v44
    s_waitcnt vmcnt(40)
    ''')
    final_setup()
    a('s_barrier')
    for u in (11, 12, 13):
        a(f's_waitcnt vmcnt({8*(13-u)})')
        if wrd: a(f's_sleep {wrd}')
        w2_write(u)
    a('s_waitcnt lgkmcnt(0)')
    st('h:w2landed')
    a('s_barrier')
    a('s_branch L_final')

    a('L_serv:')
    ST, SA = 64, 80
    vEPA, vPOLL = 17, 12
    a(f'''
    s_sub_u32 {sHW}, {sWAVE}, 6
    v_lshrrev_b32 v52, 4, v0
    v_and_b32 v53, 15, v0
    v_lshlrev_b32 v53, 4, v53
    v_lshl_add_u32 v53, v52, 10, v53
    s_lshl_b32 {sT0}, {sG}, 17
    s_lshl_b32 {sT1}, {sJ}, 13
    s_add_u32 {sT3}, {sT0}, {sT1}
    s_lshl_b32 {sT1}, {sHW}, 12
    s_add_u32 {sT3}, {sT3}, {sT1}
    s_lshl_b32 {sT1}, {sG}, 4
    v_mov_b32 v{vEPA}, {sT1}
    s_mov_b32 s30, 256
    s_mov_b32 s31, 0x20000
    s_add_u32 {sT2}, {sJ}, {sHW}
    s_waitcnt lgkmcnt(0)
    s_mov_b64 s[8:9], {ka(0)}
    s_mov_b64 s[28:29], {ka(6)}
    s_cmp_lg_u32 {sT2}, 0
    s_cbranch_scc1 L_s_nolead
    s_lshl_b32 {sT1}, s62, 4
    s_or_b32 {sT1}, {sT1}, 8
    v_mov_b32 v54, {sT1}
    s_mov_b64 exec, 1
    buffer_store_dword v54, v{vEPA}, {DBG}, 0 offen sc1
    s_mov_b64 exec, -1
    L_s_nolead:
    ''')
    for i in range(4):
        a(f'buffer_load_dwordx4 {vr(ST+4*i,4)}, v53, {X}, {sT3} offen offset:{256*i}')
    for z in common_setup() + ws_setup(): a(z)
    a(f'''
    s_mov_b32 {sSPIN}, 0x40000
    s_lshl_b32 {sT0}, {sJ}, 6
    s_lshl_b32 {sT1}, {sHW}, 5
    s_add_u32 {sT0}, {sT0}, {sT1}
    s_add_u32 {sT0}, {sT0}, 1024
    v_lshlrev_b32 v55, 3, v52
    v_add_u32 v55, {sT0}, v55
    v_lshlrev_b32 v56, 4, v0
    s_add_u32 {sT3}, {sFLG}, 1024
    v_add_u32 v57, {XCH}, v56
    s_mov_b32 m0, {XCH}
    ''')
    def bars(k0, k1):
        if k1 <= k0: return
        l1 = a.label('L_sb')
        a(f's_cmp_ge_u32 {sJ}, 14\ns_cbranch_scc1 {l1}')
        for k in range(k0, k1): a('s_barrier')
        a(f'{l1}:')
    for i in range(8): a(f'v_mov_b32 v{SA+i}, 0')
    bars(-1, 0)
    a('s_waitcnt vmcnt(0)')
    a(f'buffer_load_dword v{vPOLL}, v{vEPA}, {DBG}, 0 offen sc1')
    for i in range(4):
        for d in range(4):
            r = ST + 4 * i + d
            a(f'''
            v_lshlrev_b32 v58, 16, v{r}
            v_and_b32 v59, {sMASK}, v{r}
            v_add_f32 v{SA+(d&1)}, v{SA+(d&1)}, v58
            v_fmac_f32 v{SA+4+(d&1)}, v58, v58
            v_add_f32 v{SA+2+(d&1)}, v{SA+2+(d&1)}, v59
            v_fmac_f32 v{SA+6+(d&1)}, v59, v59
            ''')
        if i == 2: bars(0, 1)
    a(f'''
    v_add_f32 v{SA}, v{SA}, v{SA+1}
    v_add_f32 v{SA+2}, v{SA+2}, v{SA+3}
    v_add_f32 v{SA+4}, v{SA+4}, v{SA+5}
    v_add_f32 v{SA+6}, v{SA+6}, v{SA+7}
    v_add_f32 v{SA}, v{SA}, v{SA+2}
    v_add_f32 v{SA+4}, v{SA+4}, v{SA+6}
    s_nop 1
    ''')
    for mode in ('quad_perm:[1,0,3,2]', 'quad_perm:[2,3,0,1]', 'row_half_mirror', 'row_mirror'):
        a(f'''
        v_add_f32_dpp v{SA}, v{SA}, v{SA} {mode} row_mask:0xf bank_mask:0xf
        v_add_f32_dpp v{SA+4}, v{SA+4}, v{SA+4} {mode} row_mask:0xf bank_mask:0xf
        s_nop 1
        ''')
    a(f'''
    v_mul_f32 v{SA}, {f32(1.0/512)}, v{SA}
    v_mul_f32 v{SA+4}, {f32(1.0/512)}, v{SA+4}
    v_fma_f32 v{SA+4}, -v{SA}, v{SA}, v{SA+4}
    v_max_f32 v{SA+4}, 0, v{SA+4}
    v_cvt_pk_bf16_f32 v{SA+4}, v{SA+4}, v{SA+4}
    v_and_b32 v{SA+4}, {sMASK}, v{SA+4}
    v_add_f32 v{SA+4}, {f32(1e-5)}, v{SA+4}
    v_cvt_pk_bf16_f32 v{SA+4}, v{SA+4}, v{SA+4}
    v_and_b32 v{SA+4}, {sMASK}, v{SA+4}
    v_sqrt_f32 v{SA+4}, v{SA+4}
    s_nop 0
    v_cvt_pk_bf16_f32 v{SA}, -v{SA}, v{SA+4}
    ''')
    bars(1, svc[0] + 1)
    a(f'''
    L_s_ep:
    s_waitcnt vmcnt(0)
    v_readfirstlane_b32 {sEP}, v{vPOLL}
    s_cmp_lg_u32 {sEP}, 0
    s_cbranch_scc1 L_s_ep2
    {spin_guard('L_s_ep2')}
    s_sleep 2
    buffer_load_dword v{vPOLL}, v{vEPA}, {DBG}, 0 offen sc1
    s_branch L_s_ep
    L_s_ep2:
    s_or_b32 {sT0}, {sEP}, {sXCC}
    v_mov_b32 v{SA+1}, {sT0}
    s_mov_b32 exec_lo, 0x00010001
    s_mov_b32 exec_hi, 0x00010001
    buffer_store_dwordx2 {vr(SA,2)}, v55, {WS}, {sFLG} offen sc1
    s_mov_b64 exec, -1
    ''')
    st('s:pub')
    a(b2_load())
    if touch:
        a(f's_lshl_b32 {sT0}, {sG}, 17\ns_load_dword s48, {ka(5)}, {sT0}')
    a(f's_cmp_ge_u32 {sJ}, 14\ns_cbranch_scc1 L_s_g3')
    for k in range(svc[0] + 1, svc[1] + 1): a('s_barrier')
    a(f'''
    s_cmp_eq_u32 {sHW}, 1
    s_cbranch_scc1 L_s_g0
    buffer_load_dwordx4 v56, {WS}, {sT3} offen sc1 lds
    L_s_g0:
    ''')
    for k in range(svc[1] + 1, svc[2] + 1): a('s_barrier')
    a(f'''
    s_cmp_eq_u32 {sHW}, 1
    s_cbranch_scc1 L_s_g2
    L_s_g:
    s_waitcnt vmcnt(0)
    ds_read_b128 {vr(ST,4)}, v57
    s_waitcnt lgkmcnt(0)
    v_xor_b32 v{ST+1}, {sEP}, v{ST+1}
    v_xor_b32 v{ST+3}, {sEP}, v{ST+3}
    v_or_b32 v{ST+1}, v{ST+1}, v{ST+3}
    v_cmp_lt_u32 vcc, 7, v{ST+1}
    s_cbranch_vccz L_s_g2
    {spin_guard('L_s_g2')}
    s_sleep 4
    buffer_load_dwordx4 v56, {WS}, {sT3} offen sc1 lds
    s_branch L_s_g
    L_s_g2:
    ''')
    st('s:got')
    assert svc[2] + 1 <= recst - 1 + 0 or svc[2] + 1 <= recst - 1 or True
    for k in range(svc[2] + 1, 7): a('s_barrier')
    a('L_s_g3:')
    a('s_barrier')
    a('s_waitcnt vmcnt(0) lgkmcnt(0)')
    final_setup()
    a(f'''
    v_and_b32 v58, 15, v0
    v_min_u32 v58, 13, v58
    v_lshlrev_b32 v58, 2, v58
    v_and_b32 v59, 16, v0
    v_lshl_add_u32 v58, v59, 3, v58
    s_lshl_b32 {sT0}, {sR}, 8
    v_add_u32 v58, {sT0}, v58
    ''')
    def svc_poll(stage):
        l0, l1 = a.label('L_sp'), a.label('L_sp')
        a(f's_cmp_eq_u32 {sHW}, 1\ns_cbranch_scc1 {l1}')
        ld = lambda i: f'buffer_load_dword v{60+i}, v58, {WS}, {sFLG} offen offset:{64*stage} sc1'
        for i in range(npoll - 1):
            a(ld(i)); a('s_sleep 1')
        a(f'{l0}:')
        for i in range(npoll):
            a(f'{ld((i + npoll - 1) % npoll)}\ns_waitcnt vmcnt({npoll-1})\nv_cmp_ne_u32 vcc, {sEP}, v{60+i}\ns_cbranch_vccz {l1}\ns_sleep 1')
        a(f'{spin_guard(l1)}\ns_branch {l0}\n{l1}:')
    def wbcode(tag):
        if tag in wbat:
            a(f's_cmp_lg_u32 {sWAVE}, 7\ns_cbranch_scc1 L_nwb{tag}\ns_cmp_lg_u32 {sJ}, 15\ns_cbranch_scc1 L_nwb{tag}\n' + (f's_bitcmp1_b32 {sG}, 0\ns_cbranch_scc1 L_nwb{tag}\n' if wb1 else '') + (f's_sleep {wbd}\n' if wbd else '') + f'buffer_wbl2 sc1\nL_nwb{tag}:')
    a('s_barrier')
    svc_poll(0)
    st('s:seenA')
    a('s_barrier')
    wbcode('A')
    svc_poll(1)
    st('s:seenB')
    a('s_barrier')
    wbcode('B')
    a(f'''
    s_add_u32 {sT2}, {sJ}, {sHW}
    s_cmp_lg_u32 {sT2}, 0
    s_cbranch_scc1 L_final
    v_mov_b32 v54, 0
    s_mov_b64 exec, 1
    buffer_store_dword v54, v{vEPA}, {DBG}, 0 offen sc1
    s_mov_b64 exec, -1
    s_branch L_final
    ''')

    a('L_comp:')
    aB, aA, aW = 2, 4, 8
    vHS, vHL, vONE, vRW = 10, 11, 12, 16
    vFLAGA, vFLAGV, vRA, vTA = 17, 18, 19, 1
    vIDX = vFLAGV
    vKC, vS = 20, 28
    ACC, FR, GT = 32, 96, 224
    vBAUG, CS, vXA = GT + 8, GT + 16, GT + 7
    vBI = [GT + 5, GT + 6, GT + 7, 31]
    def aaug(t): return CS + 4 * t + 2 if (t < 2 or not own) else GT + 28 + 2 * (t - 2)
    tm, tq, tr, tc, t4, t5, t6, t7 = [GT + 8 + i for i in range(8)]
    a(f'''
    s_lshr_b32 {sWM}, {sWAVE}, 1
    s_and_b32 {sWN}, {sWAVE}, 1
    v_and_b32 v{tm}, 15, v0
    v_lshrrev_b32 v{tq}, 4, v0
    v_lshrrev_b32 v{t4}, 1, v{tm}
    v_xor_b32 v{t4}, v{t4}, v{tq}
    v_lshlrev_b32 v{t4}, 4, v{t4}
    v_lshl_add_u32 v{t4}, v{tm}, 7, v{t4}
    s_lshl_b32 {sT0}, {sWM}, 13
    v_add_u32 v{aB}, {sT0}, v{t4}
    v_xor_b32 v{aB+1}, 64, v{aB}
    v_lshrrev_b32 v{tr}, 2, v{tm}
    v_and_b32 v{tc}, 3, v{tm}
    v_and_b32 v{t5}, 1, v{tq}
    v_lshl_or_b32 v{t5}, v{t5}, 2, v{tr}
    v_lshl_add_u32 v{t6}, v{tq}, 3, v{tr}
    v_lshlrev_b32 v{t6}, 8, v{t6}
    v_lshl_add_u32 v{t6}, v{tc}, 3, v{t6}
    v_add_u32 v{t6}, 16384, v{t6}
    s_lshl_b32 {sT0}, {sWN}, 2
    ''')
    if own: a(f's_lshl_b32 {sT1}, {sWM}, 1\ns_or_b32 {sT0}, {sT0}, {sT1}')
    a(f'''
    v_xor_b32 v{t5}, {sT0}, v{t5}
    v_lshl_add_u32 v{aA}, v{t5}, 5, v{t6}
    v_xor_b32 v{aA+1}, 32, v{aA}
    v_xor_b32 v{aA+2}, 64, v{aA}
    v_xor_b32 v{aA+3}, 96, v{aA}
    s_mov_b32 {sONES}, 0x3f803f80
    v_mov_b32 v{vONE}, {sONES}
    v_mov_b32 v{vONE+1}, {sONES}
    v_mov_b32 v{vONE+2}, {sONES}
    v_mov_b32 v{vONE+3}, {sONES}
    v_and_b32 v{vIDX}, 1, v0
    v_mul_u32_u24 v{vIDX}, 0xaaaa, v{vIDX}
    v_add_u32 v{vIDX}, 0x4444, v{vIDX}
    v_lshl_or_b32 v{vIDX}, v{vIDX}, 16, v{vIDX}
    ''')
    NCS = 2 if own else 4
    for i in range(4 * NCS): a(f'v_mov_b32 v{CS+i}, 0')
    a('s_waitcnt lgkmcnt(0)')
    setup2 = common_setup() + ws_setup() + lines(f'''
    v_lshlrev_b32 v{vHL}, 4, v0
    v_lshrrev_b32 v{t4}, 5, v0
    v_lshl_add_u32 v{t6}, v{t4}, 2, v{tr}
    v_lshlrev_b32 v{t6}, 7, v{t6}
    v_lshl_add_u32 v{t6}, v{tc}, 3, v{t6}
    v_and_b32 v{t5}, 1, v{tq}
    v_lshl_add_u32 v{t6}, v{t5}, 5, v{t6}
    v_lshrrev_b32 v{t5}, 1, v{tr}
    v_lshl_add_u32 v{t6}, v{t5}, 6, v{t6}
    s_lshl_b32 {sT0}, {sWN}, 12
    s_add_u32 {sT0}, {sT0}, {unit_addr(0)}
    v_add_u32 v{aW}, {sT0}, v{t6}
    v_xor_b32 v{aW+1}, 64, v{aW}
    s_lshl_b32 {sHB}, {sG}, 19
    s_mul_i32 {sT0}, {sWN}, {H_KH}
    s_add_u32 {sHB}, {sHB}, {sT0}
    s_mul_i32 {sT0}, {sR}, {H_WM}
    s_add_u32 {sHC}, {sHB}, {sT0}
    s_mul_i32 {sT0}, {sWM}, {H_MB}
    s_add_u32 {sHC}, {sHC}, {sT0}
    v_and_b32 v{vRW}, 31, v0
    v_lshlrev_b32 v{vRW}, 8, v{vRW}
    v_xor_b32 v{t5}, v{t4}, v{tm}
    v_lshl_add_u32 v{vRW}, v{t5}, 4, v{vRW}
    s_lshl_b32 {sT0}, {sWN}, 14
    s_lshl_b32 {sT1}, {sWM}, 13
    s_add_u32 {sT0}, {sT0}, {sT1}
    s_add_u32 {sT0}, {sT0}, {RED}
    v_add_u32 v{vRW}, {sT0}, v{vRW}
    ''')
    bl = [(f'buffer_load_ushort v{vBI[t]}, v{t7}, {B1}, {sT0} offen offset:{32*t}', 'bias') for t in range(NCS)]
    assert own
    setup1 = lines(f'''
    s_mov_b64 s[32:33], {ka(2)}
    s_mov_b32 s34, 3584
    s_mov_b32 s35, 0x20000
    v_lshlrev_b32 v{t7}, 1, v{tm}
    s_lshl_b32 {sT0}, {sJ}, 8
    s_lshl_b32 {sT1}, {sWN}, 7
    s_add_u32 {sT0}, {sT0}, {sT1}
    ''') + (lines(f's_lshl_b32 {sT1}, {sWM}, 6\ns_add_u32 {sT0}, {sT0}, {sT1}') if own else []) + bl + lines(f'''
    v_lshlrev_b32 v{vHS}, 4, v{tm}
    v_lshl_add_u32 v{vHS}, v{tq}, 9, v{vHS}
    s_mul_i32 {sT0}, {sWM}, {H_WM}
    s_add_u32 {sHB}, {sHB}, {sT0}
    s_lshl_b32 {sT0}, {sJ}, 11
    s_add_u32 {sHB}, {sHB}, {sT0}
    s_lshl_b32 {sT0}, {sWAVE}, 7
    s_lshl_b32 {sT1}, {sJ}, 2
    s_add_u32 {sT0}, {sT0}, {sT1}
    v_mov_b32 v{vFLAGA}, {sT0}
    s_mov_b32 {sSEL0}, 0x01000100
    s_mov_b32 {sSEL1}, 0x07060302
    s_mov_b32 {sSEL2}, 0x05040302
    s_mov_b64 s[100:101], 0xffff
    v_lshlrev_b32 v{vRA}, 3, v{tm}
    s_lshl_b32 {sT0}, {sWM}, 9
    s_add_u32 {sT0}, {sT0}, {XCH}
    v_add_u32 v{vRA}, {sT0}, v{vRA}
    v_lshlrev_b32 v{vTA}, 6, v{tm}
    v_add_u32 v{vTA}, {XCH+4}, v{vTA}
    ''') + (lines(f'''
    s_lshl_b32 {sT0}, {sWAVE}, 10
    s_add_u32 {sT0}, {sT0}, {XCH2}
    v_add_u32 v{vXA}, {sT0}, v{vHL}
    ''') if own else [])
    V = VQ(a); L = LQ(a)
    def put(o):
        if callable(o): o()
        elif isinstance(o, tuple): a(o[0]); V.op(o[1])
        elif o.startswith('ds_'): L.op(o)
        else: a(o)
    NS = 8
    def wreads_at(n, base):
        ad = unit_addr(n // 2) + 8192 * (n % 2)
        fb = FR + 16 * (n % NS)
        return [f'ds_read_b64_tr_b16 {vr(fb+8*ph+4*dl+2*h,2)}, v{aW+dl} offset:{ad-base+1024*ph+2048*h}'
                for ph in range(2) for dl in range(2) for h in range(2)]
    def rebase(delta): return [f'v_add_u32 v{aW+dl}, {delta & 0xffffffff:#x}, v{aW+dl}' for dl in range(2)]
    def pf_list(b):
        if b == 0: return wreads_at(0, unit_addr(0)) + wreads_at(1, unit_addr(0)) + rebase(-unit_addr(0)) + wreads_at(2, 0) + wreads_at(3, 0)
        return sum((wreads_at(n, 0) for n in range(4, 8)), [])
    def code_pf():
        a(f'''
        s_cmp_ge_u32 {sWAVE}, 3
        s_cbranch_scc1 L_nocpf
        s_getpc_b64 s[14:15]
        L_pc:
        s_sub_u32 s14, s14, L_pc-{KNAME}
        s_subb_u32 s15, s15, 0
        s_lshl_b32 {sT0}, {sWAVE}, 13
        v_lshlrev_b32 v20, 7, v0
        v_add_u32 v20, {sT0}, v20
        v_min_u32 v20, L_end-{KNAME}, v20
        global_load_dword v21, v20, s[14:15]
        L_nocpf:
        ''')
    if cpf == 2: code_pf()
    a(f's_cmp_lt_u32 {sJ}, 14\ns_cbranch_scc1 L_c_reg')
    if cpf == 1: code_pf()
    for o in setup2: put(o)
    a(f'v_mov_b32 v{vFLAGA}, 0')
    a(b2_load())
    a('s_barrier')
    for o in pf_list(0): a(o)
    a('s_waitcnt vmcnt(0) lgkmcnt(0)')
    a('s_barrier')
    for o in pf_list(1): a(o)
    final_setup()
    a('s_branch L_c_p2')
    a('L_c_reg:')
    V.q = []; L.q = []
    deferred = setup2 + setup1
    def fB(s, ks, mt): return FR + 64 * (s & 1) + 16 * ks + 4 * mt
    def fA(s, ks, t): return FR + 64 * (s & 1) + 32 + 8 * t + 4 * ks
    def reads(s):
        so = (s & 1) * SLOT
        out = []
        for ks in range(2):
            rb = [f'ds_read_b128 {vr(fB(s,ks,mt),4)}, v{aB+ks} offset:{so+2048*mt}' for mt in range(4)]
            ra = [[f'ds_read_b64_tr_b16 {vr(fA(s,ks,t)+2*h,2)}, v{aA+t} offset:{so+8192*ks+1024*h}' for h in range(2)] for t in range(4)]
            out += ra[0] + rb + ra[1] + ra[2] + ra[3]
        return out
    def mfmas(s, c):
        out = []
        for ks in range(2):
            for t in range(4):
                if cs == 'ones' and t < 2:
                    out.append(f'v_mfma_f32_16x16x32_bf16 {vr(CS+4*t,4)}, {vr(vONE,4)}, {vr(fA(s,ks,t),4)}, {vr(CS+4*t,4)}')
                for mt in range(4):
                    d = ACC + 4 * (4 * mt + t)
                    cc = '0' if (s == 0 and ks == 0) else vr(d, 4)
                    out.append(f'v_mfma_f32_16x16x32_bf16 {vr(d,4)}, {vr(fA(s,ks,t),4)}, {vr(fB(s,ks,mt),4)}, {cc}')
        if cs != 'ones':
            for t in range(NCS):
                out.insert(c + 1 + 2 * t, f'v_smfmac_f32_16x16x64_bf16 {vr(CS+4*t,4)}, {vr(vONE,4)}, {vr(fA(s,0,t),8)}, v{vIDX}')
        return out
    toggle = [f'v_xor_b32 v{r}, 0x10000, v{r}' for r in range(aB, aB + 6)]
    st('c:rdy')
    a('s_barrier')
    st('c:B0')
    for o in reads(0): L.op(o)
    rec_reads = [f'ds_read_b32 v{GT+mt}, v{vRA} offset:{128*mt}' for mt in range(4)] + [f'ds_read_b32 v{GT+4}, v{vTA}']
    rec_ops = []
    for mt in range(4):
        rec_ops += [f'v_cndmask_b32 v{vBAUG+2*mt+1}, 0, v{GT+mt}, s[100:101]',
                    f'v_and_b32 v{vS+mt}, {sMASK}, v{GT+mt}',
                    f'v_perm_b32 v{vBAUG+2*mt}, v{vBAUG+2*mt+1}, v{vBAUG+2*mt+1}, {sSEL0}',
                    f'v_rcp_f32 v{GT+mt}, v{vS+mt}']
    rec_ops += [f'v_readfirstlane_b32 {sEP}, v{GT+4}']
    for mt in range(4):
        rec_ops += [f'v_mul_f32 v{vKC+2*mt}, {f32(K1C)}, v{GT+mt}',
                    f'v_mul_f32 v{vKC+2*mt+1}, v{GT+mt}, v{GT+mt}',
                    f'v_mul_f32 v{GT+mt}, {f32(K3C)}, v{GT+mt}',
                    f'v_mul_f32 v{vKC+2*mt+1}, v{vKC+2*mt+1}, v{GT+mt}']
    rec_ops += [f's_andn2_b32 {sEP}, {sEP}, 7', f's_or_b32 {sT0}, {sEP}, {sXCC}', f'v_cmp_ne_u32 s[98:99], {sT0}, v{GT+4}']
    if force_slow: rec_ops.append('s_mov_b64 s[98:99], -1')
    split_ops = [lambda: V.need('bias')]
    for t in range(NCS):
        cc = CS + 4 * t
        if cs != 'ones': split_ops.append(f'v_add_f32 v{cc}, v{cc}, v{cc+1}')
        split_ops += [f'v_and_b32 v{cc+1}, {sMASK}, v{cc}',
                      f'v_sub_f32 v{cc+1}, v{cc}, v{cc+1}',
                      f'v_and_b32 v{cc+2}, {sMASK}, v{cc+1}',
                      f'v_sub_f32 v{cc+2}, v{cc+1}, v{cc+2}',
                      f'v_perm_b32 v{cc+3}, v{vBI[t]}, v{cc+2}, {sSEL2}',
                      f'v_perm_b32 v{cc+2}, v{cc+1}, v{cc}, {sSEL1}']
    if own:
        split_ops += [f'ds_write2_b64 v{vXA}, {vr(CS+2,2)}, {vr(CS+6,2)} offset0:0 offset1:1', f'v_xor_b32 v{vTA}, 2048, v{vXA}']
    split_ops += [f'v_mov_b32 v{vFLAGV}, {sEP}']
    assert svc[2] + 1 < recst
    for s in range(8):
        c = chk[s]
        ms = mfmas(s, c)
        NM = len(ms)
        slots = [[] for _ in range(NM)]
        def barfn(s=s):
            L.drain(); st(f'c:A{s+1}'); a('s_barrier'); st(f'c:B{s+1}')
        if s % 2 == 1 and s < 7:
            for i, t in enumerate(toggle): slots[i * c // 6].append(t)
        if s == recst:
            for i in range(5): slots[i].append(rec_reads[i])
        slots[c].append(barfn)
        rd = reads(s + 1) if s < 7 else pf_list(0)
        n = NM - c - (1 if s < 7 else 0)
        per = -(-len(rd) // n)
        if s == 7:
            k = 0
            for i in range(c, NM):
                e = (len(rd) * (i - c + 1) + n - 1) // n
                slots[i] += rd[k:e]; k = e
        else:
            k = 0; i = c
            while k < len(rd):
                slots[i] += rd[k:k+per]; k += per; i += 1
        if s < recst:
            for i in range(NM):
                if not slots[i]:
                    slots[i] += deferred[:2]; deferred = deferred[2:]
            if s == recst - 1: assert not deferred, len(deferred)
        if s >= recst:
            lo = c + 1 if s == recst else 0
            hi = NM if s < 7 else NM - (len(split_ops) + 1) // 2 - (0 if cs != 'ones' else 0)
            for i in range(lo, hi):
                room = 2 - len(slots[i])
                if s == 7 and recst == 7: room = 4 - len(slots[i])
                if room > 0:
                    slots[i] += rec_ops[:room]; rec_ops = rec_ops[room:]
        if s == 7:
            assert not rec_ops, len(rec_ops)
            slots[c].append((b2_load(), 'b2'))
            first = max(NM - len(split_ops), (c + 2 * NCS + 8) if cs != 'ones' else 29)
            n2 = NM - first
            k = 0
            for i in range(first, NM):
                e = (len(split_ops) * (i - first + 1) + n2 - 1) // n2
                slots[i] += split_ops[k:e]; k = e
        st(f'c:S{s}')
        for i, m in enumerate(ms):
            if i == 0: L.need(set(range(fB(s,0,0), fB(s,0,0) + 16)) | set(range(fA(s,0,1), fA(s,0,1) + 4)))
            L.mfma(m)
            for o in slots[i]: put(o)
    st('c:kend')
    def aug(ts):
        return [f'v_mfma_f32_16x16x16_bf16 {vr(ACC+4*(4*mt+t),4)}, {vr(aaug(t),2)}, {vr(vBAUG+2*mt,2)}, {vr(ACC+4*(4*mt+t),4)}'
                for mt in range(4) for t in ts]
    a('s_nop 0')
    for m in aug((0, 1)): L.mfma(m)
    a('s_nop 1')
    st('c:aug')
    def store2(ins, tag):
        l1 = a.label('L_s')
        a(f's_cbranch_scc0 {l1}a\n{ins}\n{l1}:')
        tail(f'{l1}a:\n{ins} sc1\ns_branch {l1}')
        V.op(tag)
    def flag_h(stage):
        V.need(f'h{stage}')
        a('s_mov_b64 exec, 1\ns_cmp_eq_u64 s[98:99], 0')
        store2(f'buffer_store_dword v{vFLAGV}, v{vFLAGA}, {WS}, {sFLG} offen offset:{64*stage}', 'f')
        a('s_mov_b64 exec, -1')
    augat = xat if own else 0
    idx = 0
    for stg in range(2):
        for mt in range(4):
            A = ACC + 16 * mt + 8 * stg
            T = GT
            O = GT + 16 + 4 * ((idx + (2 if own else 0)) % 3 if own else idx & 3)
            P = lambda r: vr(r, 2)
            kc = vr(vKC + 2 * mt, 2)
            s_ = vr(vS + (mt & ~1), 2)
            ssel = 'op_sel:[0,1,1] op_sel_hi:[1,1,1]' if mt & 1 else 'op_sel_hi:[1,0,0]'
            if idx == 1 and own: L.drain()
            if idx == xat:
                L.drain(); st('c:Xa'); a('s_barrier'); st('c:Xb')
                if own: L.op(f'ds_read_b128 {vr(GT+28,4)}, v{vTA}')
            if idx == pf2at:
                for o in pf_list(1): put(o)
            body = []
            for i in range(0, 8, 2): body.append(f'v_pk_mul_f32 {P(T+i)}, {P(A+i)}, {P(A+i)}')
            for i in range(0, 8, 2): body.append(f'v_pk_fma_f32 {P(T+i)}, {P(T+i)}, {kc}, {kc} op_sel:[0,1,0] op_sel_hi:[1,1,0]')
            for i in range(0, 8, 2): body.append(f'v_pk_mul_f32 {P(T+i)}, {P(A+i)}, {P(T+i)}')
            for i in range(8): body.append(f'v_exp_f32 v{T+i}, v{T+i}')
            for i in range(0, 8, 2): body.append(f'v_pk_fma_f32 {P(T+i)}, {P(T+i)}, {s_}, {s_} {ssel}')
            for i in range(8): body.append(f'v_rcp_f32 v{T+i}, v{T+i}')
            for i in range(0, 8, 2): body.append(f'v_pk_mul_f32 {P(T+i)}, {P(A+i)}, {P(T+i)}')
            for i in range(4): body.append(f'v_cvt_pk_bf16_f32 v{O+i}, v{T+2*i}, v{T+2*i+1}')
            am = aug((2, 3)) if idx == augat else []
            for i, o in enumerate(body):
                if am and 12 <= i < 20 and i % 2 == 0: L.mfma(am[(i - 12) // 2])
                if am and 24 <= i < 32 and i % 2 == 0: L.mfma(am[4 + (i - 24) // 2])
                a(o)
            a(f's_add_u32 {sT0}, {sHB}, {(mt>>1)*H_MB + stg*H_ST}')
            a('s_cmp_eq_u64 s[98:99], 0')
            store2(f'buffer_store_dwordx4 {vr(O,4)}, v{vHS}, {WS}, {sT0} offen offset:{256*(mt&1)}', f'h{stg}')
            st(f'c:g{idx}')
            idx += 1
            if idx == flagat:
                flag_h(0); st('c:flagA')
    if pf2at == 8:
        for o in pf_list(1): put(o)
    if fbpos == 'pre':
        final_setup()
        flag_h(1)
        st('c:flagB')
    a('L_c_p2:')
    ACC2, HR = GT, ACC
    V.q = []; L.q = []
    def hslot(n): return HR + 16 * (n % 4) + 8 * ((n % 8) // 4)
    def hload(n):
        r = hslot(n)
        pre = f's_add_u32 {sT3}, {sHC}, {2048*n}\n' if n % 2 == 0 else ''
        o = 2048 * (n % 2)
        return [pre + f'buffer_load_dwordx4 {vr(r,4)}, v{vHL}, {WS}, {sT3} offen offset:{o} sc1',
                f'buffer_load_dwordx4 {vr(r+4,4)}, v{vHL}, {WS}, {sT3} offen offset:{o+1024} sc1']
    cur_base = [0]
    def wreads(n):
        ad = unit_addr(n // 2) + 8192 * (n % 2)
        pre = []
        if not (0 <= ad - cur_base[0] <= 65535 - 8192):
            pre = rebase(ad - cur_base[0]); cur_base[0] = ad
        return pre + wreads_at(n, cur_base[0])
    pending = []
    for n in range(28):
        for ph, o in enumerate(hload(n)): pending.append((n, ph, o))
    def issue_h():
        n, ph, o = pending.pop(0)
        a(o); V.op((n, ph))
    a('s_waitcnt lgkmcnt(0)')
    a('s_barrier')
    st('c:seenA')
    for k in range(2 * ramp): issue_h()
    if fbpos == 'post':
        a(f's_cmp_ge_u32 {sJ}, 14\ns_cbranch_scc1 L_c_nfb')
        save = V.q
        V.q = ['h1'] + list(V.q)
        flag_h(1)
        V.q = save
        final_setup()
        a('L_c_nfb:')
    assert 11 - PD < sbat <= 18 - PD
    for n in range(28):
        fb = FR + 16 * (n % NS)
        hr = hslot(n)
        st(f'c:n{n}')
        fill = []
        m = n + PD
        if n == sbat:
            L.drain(); st('c:Za'); a('s_barrier'); st('c:Zb')
            for z in range(2): issue_h()
        if 8 <= m < 28: fill += wreads(m)
        if n == 27: fill += [f'v_xor_b32 v{HR+i}, {32*i}, v{vRW}' for i in range(1, 8)]
        per = (len(fill) + 2) // 3
        k = 0; i = 0
        for ph in range(2):
            for dl in range(2):
                d = ACC2 + 16 * dl
                c = '0' if (n == 0 and ph == 0) else vr(d, 16)
                if dl == 0:
                    vc = V.count((n, ph))
                    lc = L.count(set(range(fb, fb + 16))) if ph == 0 else None
                    w = ([f'vmcnt({vc})'] if vc is not None else []) + ([f'lgkmcnt({lc})'] if lc is not None else [])
                    if w: a('s_waitcnt ' + ' '.join(w))
                a(f'v_mfma_f32_32x32x16_bf16 {vr(d,16)}, {vr(fb+8*ph+4*dl,4)}, {vr(hr+4*ph,4)}, {c}')
                for o in fill[k:k+per]: put(o)
                k += per
                if i >= 1 and pending and pending[0][0] <= n - 1 + D and (i != 2 or pending[0][0] < n - 1 + D) and (pending[0][0] < 14 or n >= sbat):
                    issue_h()
                i += 1
    assert not pending
    st('c:p2end')
    a('s_nop 9')
    for dl in range(2):
        for g in range(4):
            i = 4 * dl + g
            a(f'ds_write_b128 v{vRW if i == 0 else HR + i}, {vr(ACC2+16*dl+4*g,4)}')
    a('s_waitcnt lgkmcnt(0)')
    a('L_final:')
    a('s_barrier')
    st('c:W4')
    R = 64
    a(f'''
    ds_read_b128 {vr(R,4)}, v{vFA0}
    ds_read_b128 {vr(R+8,4)}, v{vFA0} offset:16384
    ds_read_b128 {vr(R+4,4)}, v{vFA1}
    ds_read_b128 {vr(R+12,4)}, v{vFA1} offset:16384
    ''')
    for half in range(2):
        a(f's_waitcnt lgkmcnt({2 - 2*half})')
        rg = range(2 * half, 2 * half + 2)
        for i in rg: a(f'v_pk_add_f32 {vr(R+2*i,2)}, {vr(R+2*i,2)}, {vr(R+8+2*i,2)}')
        for i in rg: a(f'v_cvt_pk_bf16_f32 v{R+16+i}, v{R+2*i}, v{R+2*i+1}')
        for i in rg:
            a(f'v_lshlrev_b32 v{R+2*i}, 16, v{R+16+i}')
            a(f'v_and_b32 v{R+2*i+1}, {sMASK}, v{R+16+i}')
        for i in rg: a(f'v_pk_add_f32 {vr(R+2*i,2)}, {vr(R+2*i,2)}, {vr(vB2f+2*i,2)}')
        for i in rg: a(f'v_cvt_pk_bf16_f32 v{R+20+i}, v{R+2*i}, v{R+2*i+1}')
    a(f'buffer_store_dwordx4 {vr(R+20,4)}, v{vOUTO}, {OUT}, {sXOFF} offen {outaux}')
    if stamps:
        a('s_waitcnt vmcnt(0)')
        st('c:end')
        a(f's_cmp_eq_u32 {sWAVE}, {hst}\ns_cbranch_scc1 L_sth\ns_cmp_eq_u32 {sWAVE}, 6\ns_cbranch_scc1 L_sts\ns_cmp_lg_u32 {sWAVE}, {cst}\ns_cbranch_scc1 L_end')
        st_flush('c:'); a('s_branch L_end')
        a('L_sts:'); st_flush('s:'); a('s_branch L_end')
        a('L_sth:'); st_flush('h:')
    if padend:
        a(f'L_pad:\ns_memrealtime s[94:95]\ns_waitcnt lgkmcnt(0)\ns_sub_u32 s94, s94, s62\ns_cmp_lt_u32 s94, {padend}\ns_cbranch_scc1 L_pad')
    a('s_endpgm')
    body = a.text() + tail.text() + 'L_end:\n'
    return make_file([(KNAME, body, 256, 102, 256)], [(KNAME, 256, 512, 163840)])

ST_Q = ['c:start', 'c:end', 'c:B0@', 'c:kend@', 'c:g7@', 'c:seenA@', 'c:p2end@', 'c:end@']
if __name__ == '__main__':
    names = []
    def g(nm, **kw):
        open(nm + '.s', 'w').write(gen(**kw)); names.append(nm)
    g('k14')
    g('q14', stamps=ST_Q)
    print(' '.join(names))
```

```python
from gen14 import *
names = []
def g(nm, **kw):
    open(nm + '.s', 'w').write(gen(**kw)); names.append(nm)
g('o14')
g('o14_AB', wbat='AB')
g('o14_B1_0', wbat='B', wb1=True)
g('o14_B1_32', wbat='B', wb1=True, wbd=32)
g('o14_B1_44', wbat='B', wb1=True, wbd=44)
g('o14_A1', wbat='A', wb1=True)
print(' '.join(names))
```

```python
from gen14 import *
names = []
def g(nm, **kw):
    open(nm + '.s', 'w').write(gen(**kw)); names.append(nm)
g('o14_s0', wbat='B', wb1=True, outaux='sc1')
g('o14_s36', wbat='B', wb1=True, wbd=36, outaux='sc1')
g('o14_s44', wbat='B', wb1=True, wbd=44, outaux='sc1')
g('o14_pad', padend=1500)
print(' '.join(names))
```

```python
import sys, struct, re
from asmlib import *
from gen4 import LQ, VQ, f32, vr, regs_of, K1C, K3C

H_G, H_WM, H_MB, H_KH, H_ST = 524288, 229376, 114688, 57344, 28672
FLAG_BASE = 458752
WS_SIZE = 16 << 20
SLOT = 32768
XCH = 147456
XCH2 = XCH + 4096
RED = 49152
def unit_addr(u): return 147456 if u == 13 else ((u + 8) % 9) * 16384
def lines(s): return [l.strip() for l in s.strip().split('\n') if l.strip()]

def gen(stamps=None, rot='xj', force_slow=False, padend=0, outaux='nt', ramp=4, hst=4, cst=0, flagat=5,
        chk=(20, 12, 6, 6, 6, 6, 6, 6), lead=24, lead0=12, svc=(1, 3, 4), padat=None, touch=0, xat=3, sbat=8, npoll=2,
        wbat='', cs='smf2', recst=6, PD=4, wbd=0, wbj=(15,), cpf=0, leads=(12, 24, 24, 24, 24, 24, 16, 12, 16), spf=2, pf2at=6, fbpos='post', wrd=0, saat=8, wb1=False, laux='sc1', hpf=0, hts=None, gpf=0, gdel=0, cpe=0, wsoff=0):
    a = Asm(); tail = Asm()
    NST = 12; D = 8
    sWAVE, sG, sJ, sR, sC = 's3', 's4', 's5', 's6', 's7'
    X, W1, W2, WS, OUT, DBG, B1, B2 = 's[8:11]', 's[12:15]', 's[16:19]', 's[20:23]', 's[24:27]', 's[28:31]', 's[32:35]', 's[36:39]'
    sXCC, sHW = 's41', 's42'
    sT0, sT1, sT2, sT3 = 's43', 's44', 's45', 's46'
    sXOFF, sW1OFF, sW2A, sFLG, sHB, sW2B, sM0B, sKAP = 's47', 's48', 's49', 's50', 's51', 's52', 's53', 's54'
    sMASK, sONES, sSPIN = 's55', 's56', 's57'
    sWM, sWN, sEP, sHC = 's58', 's59', 's60', 's61'
    sSEL0, sSEL1, sSEL2 = 's40', 's12', 's13'
    KA = 80 if stamps else 64
    stamps = stamps or []
    assert len(stamps) <= 8
    SB = 64
    own = cs != 'smf4'
    def ka(i): return f's[{KA+2*i}:{KA+2*i+1}]'
    def st(name):
        if padat and name == padat[0]:
            lab = a.label('L_padp')
            a(f'{lab}:\ns_memrealtime s[92:93]\ns_waitcnt lgkmcnt(0)\ns_sub_u32 s92, s92, s62\ns_cmp_lt_u32 s92, {padat[1]}\ns_cbranch_scc1 {lab}')
        for suffix, ins in (('', 's_memrealtime'), ('@', 's_memtime')):
            if name + suffix in stamps:
                i = stamps.index(name + suffix); a(f'{ins} s[{SB+2*i}:{SB+2*i+1}]')
    def st_flush(pref):
        a('s_waitcnt lgkmcnt(0)\ns_load_dwordx2 s[90:91], s[0:1], 56\ns_waitcnt lgkmcnt(0)')
        stamp_setup(a, NST)
        a('v_mov_b32 v250, 0')
        for i, n in enumerate(stamps):
            if not n.startswith(pref): continue
            if n == 'c:start': a(f's_mov_b64 s[{SB+2*i}:{SB+2*i+1}], s[62:63]')
            if n.endswith('@'):
                a(f's_sub_u32 s{SB+2*i}, s{SB+2*i}, s96\ns_add_u32 s{SB+2*i}, s{SB+2*i}, s62\ns_addc_u32 s{SB+2*i+1}, s63, 0')
            a(f'v_mov_b32 v252, s{SB+2*i}\nv_mov_b32 v253, s{SB+2*i+1}\nglobal_store_dwordx2 v250, v[252:253], s[90:91] offset:{i*8}\ns_nop 1')

    vB2raw, vB2f, vFA0, vFA1, vOUTO = 2, 20, 28, 29, 30
    cpe_code = ''
    if cpe:
        cpe_code = f'''s_cmp_ge_u32 s2, {8*cpe}
        s_cbranch_scc1 L_nocpe
        s_getpc_b64 s[14:15]
        v_lshlrev_b32 v2, 7, v0
        v_cmp_gt_u32 vcc, L_end-{KNAME}, v2
        s_and_saveexec_b64 s[16:17], vcc
        s_cbranch_execz L_cpe1
        global_load_dword v255, v2, s[14:15]
        L_cpe1:
        s_mov_b64 exec, s[16:17]
        L_nocpe:'''
    a(f'''
    s_cmp_ge_u32 s2, 256
    s_cbranch_scc1 L_end
    s_load_dwordx16 s[{KA}:{KA+15}], s[0:1], 0
    s_memrealtime s[62:63]
    ''')
    if stamps: a('s_memtime s[96:97]')
    a(f'''
    {cpe_code}
    v_lshrrev_b32 v1, 6, v0
    v_and_b32 v0, 63, v0
    s_and_b32 {sT0}, s2, 7
    v_readfirstlane_b32 {sWAVE}, v1
    s_lshr_b32 {sT1}, s2, 3
    s_lshr_b32 {sT2}, {sT1}, 4
    s_lshl_b32 {sG}, {sT0}, 1
    s_add_u32 {sG}, {sG}, {sT2}
    s_and_b32 {sJ}, {sT1}, 15
    s_mov_b32 s10, 2097152
    s_mov_b32 s11, 0x20000
    s_cmp_lt_u32 {sWAVE}, 4
    s_cbranch_scc1 L_comp
    s_cmp_ge_u32 {sWAVE}, 6
    s_cbranch_scc1 L_serv
    ''')
    def common_setup():
        perm = list(range(16)); perm[14], perm[11] = 11, 14; perm[15], perm[3] = 3, 15
        lo = sum(perm[i] << (4 * i) for i in range(8)); hi = sum(perm[8 + i] << (4 * i) for i in range(8))
        return lines(f'''
        s_mov_b32 s36, {lo:#x}
        s_mov_b32 s37, {hi:#x}
        s_lshl_b32 {sC}, {sJ}, 2
        s_lshr_b64 s[36:37], s[36:37], {sC}
        s_bfe_u32 {sR}, s36, 0x10003
        s_and_b32 {sC}, s36, 7
        s_mov_b32 {sMASK}, 0xffff0000
        s_mov_b64 s[36:37], {ka(4)}
        s_mov_b32 s38, 1024
        s_mov_b32 s39, 0x20000
        s_mov_b64 s[24:25], {ka(5)}
        s_mov_b32 s26, 2097152
        s_mov_b32 s27, 0x20000
        ''')
    def ws_setup():
        return lines(f'''
        s_add_u32 s20, s{KA+14}, {wsoff}
        s_addc_u32 s21, s{KA+15}, 0
        s_mov_b32 s22, {WS_SIZE}
        s_mov_b32 s23, 0x20000
        s_getreg_b32 {sXCC}, hwreg(HW_REG_XCC_ID, 0, 3)
        s_lshl_b32 {sFLG}, {sG}, 19
        s_add_u32 {sFLG}, {sFLG}, {FLAG_BASE}
        ''')
    def b2_load():
        return f'''v_and_b32 v{vB2raw+4}, 7, v0
        v_lshlrev_b32 v{vB2raw+4}, 4, v{vB2raw+4}
        s_lshl_b32 {sT0}, {sC}, 7
        buffer_load_dwordx4 {vr(vB2raw,4)}, v{vB2raw+4}, {B2}, {sT0} offen'''
    def final_setup():
        for i in range(4):
            a(f'v_lshlrev_b32 v{vB2f+2*i}, 16, v{vB2raw+i}')
            a(f'v_and_b32 v{vB2f+2*i+1}, {sMASK}, v{vB2raw+i}')
        a(f'''
        v_lshrrev_b32 v{vFA1}, 3, v0
        s_lshl_b32 {sT0}, {sWAVE}, 3
        v_add_u32 v{vFA1}, {sT0}, v{vFA1}
        v_lshl_add_u32 v{vOUTO}, v{vFA1}, 10, v{vB2raw+4}
        v_and_b32 v{vFA0}, 7, v0
        v_lshlrev_b32 v{vFA0}, 1, v{vFA0}
        v_and_b32 v{vB2raw}, 15, v{vFA1}
        v_xor_b32 v{vFA0}, v{vFA0}, v{vB2raw}
        v_lshlrev_b32 v{vFA0}, 4, v{vFA0}
        v_lshl_add_u32 v{vFA0}, v{vFA1}, 8, v{vFA0}
        v_add_u32 v{vFA0}, {RED}, v{vFA0}
        v_xor_b32 v{vFA1}, 16, v{vFA0}
        s_lshl_b32 {sXOFF}, {sG}, 17
        s_lshl_b32 {sT1}, {sR}, 16
        s_add_u32 {sXOFF}, {sXOFF}, {sT1}
        s_lshl_b32 {sT1}, {sC}, 7
        s_add_u32 {sXOFF}, {sXOFF}, {sT1}
        ''')
    def spin_guard(lab):
        return f's_cmp_le_i32 {sSPIN}, 0\ns_cbranch_scc1 {lab}\ns_sub_u32 {sSPIN}, {sSPIN}, 1'

    vX, vW1, vW2 = 32, 36, 40
    if rot == 'none': a(f's_mov_b32 {sKAP}, 0')
    elif rot == 'x': a(f's_mov_b32 {sKAP}, {sT0}')
    elif rot == 'xj': a(f's_add_u32 {sKAP}, {sT0}, {sJ}\ns_and_b32 {sKAP}, {sKAP}, 7')
    a(f'''
    s_sub_u32 {sHW}, {sWAVE}, 4
    v_lshrrev_b32 v49, 4, v0
    v_and_b32 v51, 15, v0
    v_mul_u32_u24 v53, 3584, v49
    v_lshlrev_b32 v52, 1, v49
    v_xor_b32 v52, v52, v51
    v_lshl_add_u32 v{vW1}, v52, 4, v53
    v_add_u32 v{vW1+1}, {4*3584-1024}, v{vW1}
    v_xor_b32 v52, 8, v52
    v_lshl_add_u32 v52, v52, 4, v53
    v_add_u32 v{vW1+2}, {(4*3584-1024)*2}, v52
    v_add_u32 v{vW1+3}, {(4*3584-1024)*3}, v52
    s_mul_i32 {sW1OFF}, {sHW}, {32*3584}
    s_lshl_b32 {sT0}, {sJ}, 8
    s_add_u32 {sW1OFF}, {sW1OFF}, {sT0}
    s_lshl_b32 {sM0B}, {sHW}, 13
    s_mov_b32 s14, 1835008
    s_mov_b32 s15, 0x20000
    v_lshrrev_b32 v48, 3, v0
    v_and_b32 v50, 7, v0
    s_cmp_ge_u32 {sJ}, 14
    s_cbranch_scc1 L_lspare
    v_xor_b32 v52, v49, v50
    v_lshlrev_b32 v52, 4, v52
    v_lshl_add_u32 v{vX}, v48, 10, v52
    v_xor_b32 v{vX+1}, 64, v{vX}
    v_add_u32 v{vX+1}, {7*1024}, v{vX+1}
    v_add_u32 v{vX+2}, {14*1024}, v{vX}
    v_add_u32 v{vX+3}, {14*1024}, v{vX+1}
    s_lshl_b32 {sXOFF}, {sG}, 17
    s_lshl_b32 {sT0}, {sHW}, 16
    s_add_u32 {sXOFF}, {sXOFF}, {sT0}
    s_waitcnt lgkmcnt(0)
    s_mov_b64 s[12:13], {ka(1)}
    s_mov_b64 s[8:9], {ka(0)}
    ''')
    w2setup = common_setup() + lines(f'''
    s_mov_b64 s[16:17], {ka(3)}
    s_mov_b32 s18, 1835008
    s_mov_b32 s19, 0x20000
    v_and_b32 v52, 1, v49
    v_lshlrev_b32 v52, 2, v52
    v_xor_b32 v52, v52, v50
    v_lshlrev_b32 v52, 4, v52
    v_lshl_add_u32 v{vW2}, v48, 10, v52
    v_add_u32 v{vW2+1}, {7*1024}, v{vW2}
    v_add_u32 v{vW2+2}, {14*1024}, v{vW2}
    v_add_u32 v{vW2+3}, {21*1024}, v{vW2}
    s_lshl_b32 {sW2A}, {sHW}, 17
    s_lshl_b32 {sT2}, {sC}, 7
    s_add_u32 {sW2A}, {sW2A}, {sT2}
    ''') + (lines(f's_lshl_b32 {sT2}, {sR}, 15\ns_add_u32 {sW2A}, {sW2A}, {sT2}') if own else []) + [f's_xor_b32 {sW2B}, {sW2A}, 32768']
    def grp(pre, vb, srd, soff):
        return [(pre if i == 0 else '') + f'buffer_load_dwordx4 v{vb+i}, {srd}, {soff} offen offset:{1024*i} lds' for i in range(4)]
    def dma_stage_ops(s):
        slot = (s % 4) * SLOT
        g = grp(f's_mul_i32 {sT1}, {sKAP}, {64*3584}\ns_add_u32 m0, {sM0B}, {slot+16384}\ns_add_u32 {sT1}, {sT1}, {sW1OFF}\n', vW1, W1, sT1)
        g += grp(f's_add_u32 m0, {sM0B}, {slot+16384+4096}\ns_add_u32 {sT1}, {sT1}, {16*3584}\n', vW1, W1, sT1)
        g += grp(f's_lshl_b32 {sT0}, {sKAP}, 7\ns_add_u32 m0, {sM0B}, {slot}\ns_add_u32 {sT0}, {sT0}, {sXOFF}\n', vX, X, sT0)
        g += grp(f's_add_u32 {sKAP}, {sKAP}, 1\ns_and_b32 {sKAP}, {sKAP}, 7\ns_add_u32 m0, {sM0B}, {slot+4096}\ns_add_u32 {sT0}, {sT0}, 32768\n', vX, X, sT0)
        return g
    def w2_unit_ops(u):
        stg_, uu = divmod(u, 7)
        g = []
        for h in range(2):
            g += grp(f's_add_u32 m0, {sM0B}, {unit_addr(u)+4096*h}\ns_add_u32 {sT2}, {sW2B if stg_ else sW2A}, {256*uu*1024+65536*h}\n', vW2, W2, sT2)
        return g
    stream = []
    for s in range(8): stream += dma_stage_ops(s)
    for u in range(9): stream += w2_unit_ops(u)
    bar_at = {}
    for k in range(-1, 8):
        pos = 16 * (k + 2) + (leads[k + 1] if leads else lead0 if k == -1 else lead)
        lim = 16 * (k + 4) if k < 4 else 128 + 8 * (1 + 2 * (k - 4))
        if k >= 0: pos = min(pos, lim)
        bar_at[pos] = k
    for i, o in enumerate(stream):
        if i in bar_at:
            k = bar_at[i]
            st(f'h:pa{k+1}')
            a(f's_waitcnt vmcnt({i - 16 * (k + 2)})')
            st(f'h:pb{k+1}')
            a('s_barrier')
        a(o)
        if i == 19:
            for z in w2setup: a(z)
    a('s_branch L_lpost')
    a('L_lspare:')
    a('s_waitcnt lgkmcnt(0)')
    for z in w2setup: a(z)
    if gdel: a(f's_sleep {gdel}')
    if gpf:
        a(f'''
        v_lshlrev_b32 v46, 4, v0
        s_lshl_b32 {sT0}, {sG}, 1
        s_add_u32 {sT0}, {sT0}, {sJ}
        s_sub_u32 {sT0}, {sT0}, 14
        s_lshl_b32 {sT0}, {sT0}, 1
        s_add_u32 {sT0}, {sT0}, {sHW}
        s_mul_i32 {sT0}, {sT0}, 28672
        s_mov_b32 {sT1}, 7
        L_gpf:
        buffer_load_dwordx4 v[64:67], v46, {W2}, {sT0} offen
        buffer_load_dwordx4 v[68:71], v46, {W2}, {sT0} offen offset:1024
        buffer_load_dwordx4 v[72:75], v46, {W2}, {sT0} offen offset:2048
        buffer_load_dwordx4 v[76:79], v46, {W2}, {sT0} offen offset:3072
        s_add_u32 {sT0}, {sT0}, 4096
        s_sub_u32 {sT1}, {sT1}, 1
        s_cmp_lg_u32 {sT1}, 0
        s_cbranch_scc1 L_gpf
        ''')
    if spf:
        a(f'''
        v_lshlrev_b32 v46, 4, v0
        s_and_b32 {sT0}, {sG}, 1
        s_lshl_b32 {sT0}, {sT0}, 1
        s_add_u32 {sT0}, {sT0}, {sJ}
        s_sub_u32 {sT0}, {sT0}, 14
        s_lshl_b32 {sT0}, {sT0}, 1
        s_add_u32 {sT0}, {sT0}, {sHW}
        s_lshl_b32 {sT0}, {sT0}, 15
        s_mov_b32 {sT1}, {spf * 8}
        L_spf:
        buffer_load_dwordx4 v[64:67], v46, {W2}, {sT0} offen
        buffer_load_dwordx4 v[68:71], v46, {W2}, {sT0} offen offset:1024
        buffer_load_dwordx4 v[72:75], v46, {W2}, {sT0} offen offset:2048
        buffer_load_dwordx4 v[76:79], v46, {W2}, {sT0} offen offset:3072
        s_add_u32 {sT0}, {sT0}, 4096
        s_sub_u32 {sT1}, {sT1}, 1
        s_and_b32 {sT3}, {sT1}, 7
        s_cselect_b32 {sT3}, 0, {262144 - 32768}
        s_add_u32 {sT0}, {sT0}, {sT3}
        s_cmp_lg_u32 {sT1}, 0
        s_cbranch_scc1 L_spf
        ''')
    for u in range(9):
        for o in w2_unit_ops(u): a(o)
    a('s_waitcnt vmcnt(56)')
    a('s_barrier')
    a('L_lpost:')
    st('h:w9')
    a(b2_load())
    STG = 128
    def w2_reg_ops(u):
        stg_, uu = divmod(u, 7)
        g = []
        for h in range(2):
            for i in range(4):
                r = STG + 32 * (u - 11) + 16 * h + 4 * i
                pre = f's_add_u32 {sT2}, {sW2B if stg_ else sW2A}, {256*uu*1024+65536*h}\n' if i == 0 else ''
                g.append(pre + f'buffer_load_dwordx4 {vr(r,4)}, v{vW2+i}, {W2}, {sT2} offen offset:{1024*i}')
        return g
    def w2_write(u):
        for z in range(8):
            r = STG + 32 * (u - 11) + 4 * z
            if u == 13: a(f'ds_write_b128 v45, {vr(r,4)} offset:{1024*z}')
            else: a(f'ds_write_b128 v44, {vr(r,4)} offset:{unit_addr(u)+1024*z}')
    a('s_waitcnt vmcnt(41)')
    a('s_barrier')
    for u in (9, 10):
        for o in w2_unit_ops(u): a(o)
    for u in (11, 12, 13):
        for o in w2_reg_ops(u): a(o)
    st('h:w2issued')
    a(f'''
    v_lshlrev_b32 v44, 4, v0
    v_add_u32 v44, {sM0B}, v44
    v_add_u32 v45, {unit_addr(13)}, v44
    s_waitcnt vmcnt(40)
    ''')
    final_setup()
    a('s_barrier')
    for u in (11, 12, 13):
        a(f's_waitcnt vmcnt({8*(13-u)})')
        if wrd: a(f's_sleep {wrd}')
        w2_write(u)
    a('s_waitcnt lgkmcnt(0)')
    st('h:w2landed')
    a('s_barrier')
    a('s_branch L_final')

    a('L_serv:')
    ST, SA = 64, 80
    vEPA, vPOLL = 17, 12
    a(f'''
    s_sub_u32 {sHW}, {sWAVE}, 6
    v_lshrrev_b32 v52, 4, v0
    v_and_b32 v53, 15, v0
    v_lshlrev_b32 v53, 4, v53
    v_lshl_add_u32 v53, v52, 10, v53
    s_lshl_b32 {sT0}, {sG}, 17
    s_lshl_b32 {sT1}, {sJ}, 13
    s_add_u32 {sT3}, {sT0}, {sT1}
    s_lshl_b32 {sT1}, {sHW}, 12
    s_add_u32 {sT3}, {sT3}, {sT1}
    s_lshl_b32 {sT1}, {sG}, 4
    v_mov_b32 v{vEPA}, {sT1}
    s_mov_b32 s30, 256
    s_mov_b32 s31, 0x20000
    s_add_u32 {sT2}, {sJ}, {sHW}
    s_waitcnt lgkmcnt(0)
    s_mov_b64 s[8:9], {ka(0)}
    s_mov_b64 s[28:29], {ka(6)}
    s_cmp_lg_u32 {sT2}, 0
    s_cbranch_scc1 L_s_nolead
    s_lshl_b32 {sT1}, s62, 4
    s_or_b32 {sT1}, {sT1}, 8
    v_mov_b32 v54, {sT1}
    s_mov_b64 exec, 1
    buffer_store_dword v54, v{vEPA}, {DBG}, 0 offen sc1
    s_mov_b64 exec, -1
    L_s_nolead:
    ''')
    for i in range(4):
        a(f'buffer_load_dwordx4 {vr(ST+4*i,4)}, v53, {X}, {sT3} offen offset:{256*i}')
    for z in common_setup() + ws_setup(): a(z)
    a(f'''
    s_mov_b32 {sSPIN}, 0x40000
    s_lshl_b32 {sT0}, {sJ}, 6
    s_lshl_b32 {sT1}, {sHW}, 5
    s_add_u32 {sT0}, {sT0}, {sT1}
    s_add_u32 {sT0}, {sT0}, 1024
    v_lshlrev_b32 v55, 3, v52
    v_add_u32 v55, {sT0}, v55
    v_lshlrev_b32 v56, 4, v0
    s_add_u32 {sT3}, {sFLG}, 1024
    v_add_u32 v57, {XCH}, v56
    s_mov_b32 m0, {XCH}
    ''')
    def bars(k0, k1):
        if k1 <= k0: return
        l1 = a.label('L_sb')
        a(f's_cmp_ge_u32 {sJ}, 14\ns_cbranch_scc1 {l1}')
        for k in range(k0, k1):
            st(f's:a{k+1}'); a('s_barrier')
        a(f'{l1}:')
    for i in range(8): a(f'v_mov_b32 v{SA+i}, 0')
    bars(-1, 0)
    a('s_waitcnt vmcnt(0)')
    a(f'buffer_load_dword v{vPOLL}, v{vEPA}, {DBG}, 0 offen sc1')
    for i in range(4):
        for d in range(4):
            r = ST + 4 * i + d
            a(f'''
            v_lshlrev_b32 v58, 16, v{r}
            v_and_b32 v59, {sMASK}, v{r}
            v_add_f32 v{SA+(d&1)}, v{SA+(d&1)}, v58
            v_fmac_f32 v{SA+4+(d&1)}, v58, v58
            v_add_f32 v{SA+2+(d&1)}, v{SA+2+(d&1)}, v59
            v_fmac_f32 v{SA+6+(d&1)}, v59, v59
            ''')
        if i == 2: bars(0, 1)
    a(f'''
    v_add_f32 v{SA}, v{SA}, v{SA+1}
    v_add_f32 v{SA+2}, v{SA+2}, v{SA+3}
    v_add_f32 v{SA+4}, v{SA+4}, v{SA+5}
    v_add_f32 v{SA+6}, v{SA+6}, v{SA+7}
    v_add_f32 v{SA}, v{SA}, v{SA+2}
    v_add_f32 v{SA+4}, v{SA+4}, v{SA+6}
    s_nop 1
    ''')
    for mode in ('quad_perm:[1,0,3,2]', 'quad_perm:[2,3,0,1]', 'row_half_mirror', 'row_mirror'):
        a(f'''
        v_add_f32_dpp v{SA}, v{SA}, v{SA} {mode} row_mask:0xf bank_mask:0xf
        v_add_f32_dpp v{SA+4}, v{SA+4}, v{SA+4} {mode} row_mask:0xf bank_mask:0xf
        s_nop 1
        ''')
    a(f'''
    v_mul_f32 v{SA}, {f32(1.0/512)}, v{SA}
    v_mul_f32 v{SA+4}, {f32(1.0/512)}, v{SA+4}
    v_fma_f32 v{SA+4}, -v{SA}, v{SA}, v{SA+4}
    v_max_f32 v{SA+4}, 0, v{SA+4}
    v_cvt_pk_bf16_f32 v{SA+4}, v{SA+4}, v{SA+4}
    v_and_b32 v{SA+4}, {sMASK}, v{SA+4}
    v_add_f32 v{SA+4}, {f32(1e-5)}, v{SA+4}
    v_cvt_pk_bf16_f32 v{SA+4}, v{SA+4}, v{SA+4}
    v_and_b32 v{SA+4}, {sMASK}, v{SA+4}
    v_sqrt_f32 v{SA+4}, v{SA+4}
    s_nop 0
    v_cvt_pk_bf16_f32 v{SA}, -v{SA}, v{SA+4}
    ''')
    bars(1, svc[0] + 1)
    a(f'''
    L_s_ep:
    s_waitcnt vmcnt(0)
    v_readfirstlane_b32 {sEP}, v{vPOLL}
    s_cmp_lg_u32 {sEP}, 0
    s_cbranch_scc1 L_s_ep2
    {spin_guard('L_s_ep2')}
    s_sleep 2
    buffer_load_dword v{vPOLL}, v{vEPA}, {DBG}, 0 offen sc1
    s_branch L_s_ep
    L_s_ep2:
    s_or_b32 {sT0}, {sEP}, {sXCC}
    v_mov_b32 v{SA+1}, {sT0}
    s_mov_b32 exec_lo, 0x00010001
    s_mov_b32 exec_hi, 0x00010001
    buffer_store_dwordx2 {vr(SA,2)}, v55, {WS}, {sFLG} offen sc1
    s_mov_b64 exec, -1
    ''')
    st('s:pub')
    a(b2_load())
    if touch:
        a(f's_lshl_b32 {sT0}, {sG}, 17\ns_load_dword s48, {ka(5)}, {sT0}')
    a(f's_cmp_ge_u32 {sJ}, 14\ns_cbranch_scc1 L_s_g3')
    def sbar(k):
        st(f's:a{k+1}')
        a('s_barrier')
        if hts is not None and k in hts:
            z = hts.index(k)
            per = 4 // len(hts)
            lab = a.label('L_ht')
            a(f'''
            s_cmp_eq_u32 {sHW}, 0
            s_cbranch_scc1 {lab}
            v_lshrrev_b32 v58, 4, v0
            v_mul_u32_u24 v58, {H_ST}, v58
            v_and_b32 v59, 15, v0
            v_lshl_add_u32 v58, v59, 7, v58
            s_lshl_b32 {sT0}, {sG}, 19
            s_lshl_b32 {sT1}, {sJ}, 11
            s_add_u32 {sT0}, {sT0}, {sT1}
            ''')
            for y in range(per):
                a(f's_add_u32 {sT1}, {sT0}, {4*H_ST*(z*per+y)}')
                a(f'buffer_load_dword v60, v58, {WS}, {sT1} offen sc1')
            a(f'{lab}:')
    for k in range(svc[0] + 1, svc[1] + 1): sbar(k)
    a(f'''
    s_cmp_eq_u32 {sHW}, 1
    s_cbranch_scc1 L_s_g0
    buffer_load_dwordx4 v56, {WS}, {sT3} offen sc1 lds
    L_s_g0:
    ''')
    for k in range(svc[1] + 1, svc[2] + 1): sbar(k)
    a(f'''
    s_cmp_eq_u32 {sHW}, 1
    s_cbranch_scc1 L_s_g2
    L_s_g:
    s_waitcnt vmcnt(0)
    ds_read_b128 {vr(ST,4)}, v57
    s_waitcnt lgkmcnt(0)
    v_xor_b32 v{ST+1}, {sEP}, v{ST+1}
    v_xor_b32 v{ST+3}, {sEP}, v{ST+3}
    v_or_b32 v{ST+1}, v{ST+1}, v{ST+3}
    v_cmp_lt_u32 vcc, 7, v{ST+1}
    s_cbranch_vccz L_s_g2
    {spin_guard('L_s_g2')}
    s_sleep 4
    buffer_load_dwordx4 v56, {WS}, {sT3} offen sc1 lds
    s_branch L_s_g
    L_s_g2:
    ''')
    st('s:got')
    assert svc[2] + 1 <= recst - 1 + 0 or svc[2] + 1 <= recst - 1 or True
    for k in range(svc[2] + 1, 7): sbar(k)
    a('L_s_g3:')
    a('s_barrier')
    a('s_waitcnt vmcnt(0) lgkmcnt(0)')
    final_setup()
    a(f'''
    v_and_b32 v58, 15, v0
    v_min_u32 v58, 13, v58
    v_lshlrev_b32 v58, 2, v58
    v_and_b32 v59, 16, v0
    v_lshl_add_u32 v58, v59, 3, v58
    s_lshl_b32 {sT0}, {sR}, 8
    v_add_u32 v58, {sT0}, v58
    ''')
    def svc_poll(stage):
        l0, l1 = a.label('L_sp'), a.label('L_sp')
        a(f's_cmp_eq_u32 {sHW}, 1\ns_cbranch_scc1 {l1}')
        ld = lambda i: f'buffer_load_dword v{60+i}, v58, {WS}, {sFLG} offen offset:{64*stage} sc1'
        for i in range(npoll - 1):
            a(ld(i)); a('s_sleep 1')
        a(f'{l0}:')
        for i in range(npoll):
            a(f'{ld((i + npoll - 1) % npoll)}\ns_waitcnt vmcnt({npoll-1})\nv_cmp_ne_u32 vcc, {sEP}, v{60+i}\ns_cbranch_vccz {l1}\ns_sleep 1')
        a(f'{spin_guard(l1)}\ns_branch {l0}\n{l1}:')
    def wbcode(tag):
        if tag in wbat:
            a(f's_cmp_lg_u32 {sWAVE}, 7\ns_cbranch_scc1 L_nwb{tag}\ns_cmp_lg_u32 {sJ}, 15\ns_cbranch_scc1 L_nwb{tag}\n' + (f's_bitcmp1_b32 {sG}, 0\ns_cbranch_scc1 L_nwb{tag}\n' if wb1 else '') + (f's_sleep {wbd}\n' if wbd else '') + f'buffer_wbl2 sc1\nL_nwb{tag}:')
    a('s_barrier')
    svc_poll(0)
    st('s:seenA')
    a('s_barrier')
    wbcode('A')
    svc_poll(1)
    st('s:seenB')
    a('s_barrier')
    wbcode('B')
    a(f'''
    s_add_u32 {sT2}, {sJ}, {sHW}
    s_cmp_lg_u32 {sT2}, 0
    s_cbranch_scc1 L_final
    v_mov_b32 v54, 0
    s_mov_b64 exec, 1
    buffer_store_dword v54, v{vEPA}, {DBG}, 0 offen sc1
    s_mov_b64 exec, -1
    s_branch L_final
    ''')

    a('L_comp:')
    aB, aA, aW = 2, 4, 8
    vHS, vHL, vONE, vRW = 10, 11, 12, 16
    vFLAGA, vFLAGV, vRA, vTA = 17, 18, 19, 1
    vIDX = vFLAGV
    vKC, vS = 20, 28
    ACC, FR, GT = 32, 96, 224
    vBAUG, CS, vXA = GT + 8, GT + 16, GT + 7
    vBI = [GT + 5, GT + 6, GT + 7, 31]
    def aaug(t): return CS + 4 * t + 2 if (t < 2 or not own) else GT + 28 + 2 * (t - 2)
    tm, tq, tr, tc, t4, t5, t6, t7 = [GT + 8 + i for i in range(8)]
    a(f'''
    s_lshr_b32 {sWM}, {sWAVE}, 1
    s_and_b32 {sWN}, {sWAVE}, 1
    v_and_b32 v{tm}, 15, v0
    v_lshrrev_b32 v{tq}, 4, v0
    v_lshrrev_b32 v{t4}, 1, v{tm}
    v_xor_b32 v{t4}, v{t4}, v{tq}
    v_lshlrev_b32 v{t4}, 4, v{t4}
    v_lshl_add_u32 v{t4}, v{tm}, 7, v{t4}
    s_lshl_b32 {sT0}, {sWM}, 13
    v_add_u32 v{aB}, {sT0}, v{t4}
    v_xor_b32 v{aB+1}, 64, v{aB}
    v_lshrrev_b32 v{tr}, 2, v{tm}
    v_and_b32 v{tc}, 3, v{tm}
    v_and_b32 v{t5}, 1, v{tq}
    v_lshl_or_b32 v{t5}, v{t5}, 2, v{tr}
    v_lshl_add_u32 v{t6}, v{tq}, 3, v{tr}
    v_lshlrev_b32 v{t6}, 8, v{t6}
    v_lshl_add_u32 v{t6}, v{tc}, 3, v{t6}
    v_add_u32 v{t6}, 16384, v{t6}
    s_lshl_b32 {sT0}, {sWN}, 2
    ''')
    if own: a(f's_lshl_b32 {sT1}, {sWM}, 1\ns_or_b32 {sT0}, {sT0}, {sT1}')
    a(f'''
    v_xor_b32 v{t5}, {sT0}, v{t5}
    v_lshl_add_u32 v{aA}, v{t5}, 5, v{t6}
    v_xor_b32 v{aA+1}, 32, v{aA}
    v_xor_b32 v{aA+2}, 64, v{aA}
    v_xor_b32 v{aA+3}, 96, v{aA}
    s_mov_b32 {sONES}, 0x3f803f80
    v_mov_b32 v{vONE}, {sONES}
    v_mov_b32 v{vONE+1}, {sONES}
    v_mov_b32 v{vONE+2}, {sONES}
    v_mov_b32 v{vONE+3}, {sONES}
    v_and_b32 v{vIDX}, 1, v0
    v_mul_u32_u24 v{vIDX}, 0xaaaa, v{vIDX}
    v_add_u32 v{vIDX}, 0x4444, v{vIDX}
    v_lshl_or_b32 v{vIDX}, v{vIDX}, 16, v{vIDX}
    ''')
    NCS = 2 if own else 4
    for i in range(4 * NCS): a(f'v_mov_b32 v{CS+i}, 0')
    a('s_waitcnt lgkmcnt(0)')
    setup2 = common_setup() + ws_setup() + lines(f'''
    v_lshlrev_b32 v{vHL}, 4, v0
    v_lshrrev_b32 v{t4}, 5, v0
    v_lshl_add_u32 v{t6}, v{t4}, 2, v{tr}
    v_lshlrev_b32 v{t6}, 7, v{t6}
    v_lshl_add_u32 v{t6}, v{tc}, 3, v{t6}
    v_and_b32 v{t5}, 1, v{tq}
    v_lshl_add_u32 v{t6}, v{t5}, 5, v{t6}
    v_lshrrev_b32 v{t5}, 1, v{tr}
    v_lshl_add_u32 v{t6}, v{t5}, 6, v{t6}
    s_lshl_b32 {sT0}, {sWN}, 12
    s_add_u32 {sT0}, {sT0}, {unit_addr(0)}
    v_add_u32 v{aW}, {sT0}, v{t6}
    v_xor_b32 v{aW+1}, 64, v{aW}
    s_lshl_b32 {sHB}, {sG}, 19
    s_mul_i32 {sT0}, {sWN}, {H_KH}
    s_add_u32 {sHB}, {sHB}, {sT0}
    s_mul_i32 {sT0}, {sR}, {H_WM}
    s_add_u32 {sHC}, {sHB}, {sT0}
    s_mul_i32 {sT0}, {sWM}, {H_MB}
    s_add_u32 {sHC}, {sHC}, {sT0}
    v_and_b32 v{vRW}, 31, v0
    v_lshlrev_b32 v{vRW}, 8, v{vRW}
    v_xor_b32 v{t5}, v{t4}, v{tm}
    v_lshl_add_u32 v{vRW}, v{t5}, 4, v{vRW}
    s_lshl_b32 {sT0}, {sWN}, 14
    s_lshl_b32 {sT1}, {sWM}, 13
    s_add_u32 {sT0}, {sT0}, {sT1}
    s_add_u32 {sT0}, {sT0}, {RED}
    v_add_u32 v{vRW}, {sT0}, v{vRW}
    ''')
    bl = [(f'buffer_load_ushort v{vBI[t]}, v{t7}, {B1}, {sT0} offen offset:{32*t}', 'bias') for t in range(NCS)]
    assert own
    setup1 = lines(f'''
    s_mov_b64 s[32:33], {ka(2)}
    s_mov_b32 s34, 3584
    s_mov_b32 s35, 0x20000
    v_lshlrev_b32 v{t7}, 1, v{tm}
    s_lshl_b32 {sT0}, {sJ}, 8
    s_lshl_b32 {sT1}, {sWN}, 7
    s_add_u32 {sT0}, {sT0}, {sT1}
    ''') + (lines(f's_lshl_b32 {sT1}, {sWM}, 6\ns_add_u32 {sT0}, {sT0}, {sT1}') if own else []) + bl + lines(f'''
    v_lshlrev_b32 v{vHS}, 4, v{tm}
    v_lshl_add_u32 v{vHS}, v{tq}, 9, v{vHS}
    s_mul_i32 {sT0}, {sWM}, {H_WM}
    s_add_u32 {sHB}, {sHB}, {sT0}
    s_lshl_b32 {sT0}, {sJ}, 11
    s_add_u32 {sHB}, {sHB}, {sT0}
    s_lshl_b32 {sT0}, {sWAVE}, 7
    s_lshl_b32 {sT1}, {sJ}, 2
    s_add_u32 {sT0}, {sT0}, {sT1}
    v_mov_b32 v{vFLAGA}, {sT0}
    s_mov_b32 {sSEL0}, 0x01000100
    s_mov_b32 {sSEL1}, 0x07060302
    s_mov_b32 {sSEL2}, 0x05040302
    s_mov_b64 s[100:101], 0xffff
    v_lshlrev_b32 v{vRA}, 3, v{tm}
    s_lshl_b32 {sT0}, {sWM}, 9
    s_add_u32 {sT0}, {sT0}, {XCH}
    v_add_u32 v{vRA}, {sT0}, v{vRA}
    v_lshlrev_b32 v{vTA}, 6, v{tm}
    v_add_u32 v{vTA}, {XCH+4}, v{vTA}
    ''') + (lines(f'''
    s_lshl_b32 {sT0}, {sWAVE}, 10
    s_add_u32 {sT0}, {sT0}, {XCH2}
    v_add_u32 v{vXA}, {sT0}, v{vHL}
    ''') if own else [])
    V = VQ(a); L = LQ(a)
    def put(o):
        if callable(o): o()
        elif isinstance(o, tuple): a(o[0]); V.op(o[1])
        elif o.startswith('ds_'): L.op(o)
        else: a(o)
    NS = 8
    def wreads_at(n, base):
        ad = unit_addr(n // 2) + 8192 * (n % 2)
        fb = FR + 16 * (n % NS)
        return [f'ds_read_b64_tr_b16 {vr(fb+8*ph+4*dl+2*h,2)}, v{aW+dl} offset:{ad-base+1024*ph+2048*h}'
                for ph in range(2) for dl in range(2) for h in range(2)]
    def rebase(delta): return [f'v_add_u32 v{aW+dl}, {delta & 0xffffffff:#x}, v{aW+dl}' for dl in range(2)]
    def pf_list(b):
        if b == 0: return wreads_at(0, unit_addr(0)) + wreads_at(1, unit_addr(0)) + rebase(-unit_addr(0)) + wreads_at(2, 0) + wreads_at(3, 0)
        return sum((wreads_at(n, 0) for n in range(4, 8)), [])
    def code_pf():
        a(f'''
        s_cmp_ge_u32 {sWAVE}, 3
        s_cbranch_scc1 L_nocpf
        s_getpc_b64 s[14:15]
        L_pc:
        s_sub_u32 s14, s14, L_pc-{KNAME}
        s_subb_u32 s15, s15, 0
        s_lshl_b32 {sT0}, {sWAVE}, 13
        v_lshlrev_b32 v20, 7, v0
        v_add_u32 v20, {sT0}, v20
        v_min_u32 v20, L_end-{KNAME}, v20
        global_load_dword v21, v20, s[14:15]
        L_nocpf:
        ''')
    if cpf == 2: code_pf()
    a(f's_cmp_lt_u32 {sJ}, 14\ns_cbranch_scc1 L_c_reg')
    if cpf == 1: code_pf()
    for o in setup2: put(o)
    a(f'v_mov_b32 v{vFLAGA}, 0')
    if hpf:
        a(f'''
        v_lshlrev_b32 v20, 7, v0
        s_sub_u32 {sT0}, {sJ}, 14
        s_lshl_b32 {sT0}, {sT0}, 2
        s_add_u32 {sT0}, {sT0}, {sWAVE}
        s_mul_i32 {sT0}, {sT0}, {H_KH}
        s_lshl_b32 {sT1}, {sG}, 19
        s_add_u32 {sT0}, {sT0}, {sT1}
        s_sleep {hpf}
        ''')
        for z in range(7):
            a(f'buffer_load_dword v21, v20, {WS}, {sT0} offen sc1')
            a(f's_add_u32 {sT0}, {sT0}, 8192')
    a(b2_load())
    a('s_barrier')
    for o in pf_list(0): a(o)
    a('s_waitcnt vmcnt(0) lgkmcnt(0)')
    a('s_barrier')
    for o in pf_list(1): a(o)
    final_setup()
    a('s_branch L_c_p2')
    a('L_c_reg:')
    V.q = []; L.q = []
    deferred = setup2 + setup1
    def fB(s, ks, mt): return FR + 64 * (s & 1) + 16 * ks + 4 * mt
    def fA(s, ks, t): return FR + 64 * (s & 1) + 32 + 8 * t + 4 * ks
    def reads(s):
        so = (s & 1) * SLOT
        out = []
        for ks in range(2):
            rb = [f'ds_read_b128 {vr(fB(s,ks,mt),4)}, v{aB+ks} offset:{so+2048*mt}' for mt in range(4)]
            ra = [[f'ds_read_b64_tr_b16 {vr(fA(s,ks,t)+2*h,2)}, v{aA+t} offset:{so+8192*ks+1024*h}' for h in range(2)] for t in range(4)]
            out += ra[0] + rb + ra[1] + ra[2] + ra[3]
        return out
    def mfmas(s, c):
        out = []
        for ks in range(2):
            for t in range(4):
                if cs == 'ones' and t < 2:
                    out.append(f'v_mfma_f32_16x16x32_bf16 {vr(CS+4*t,4)}, {vr(vONE,4)}, {vr(fA(s,ks,t),4)}, {vr(CS+4*t,4)}')
                for mt in range(4):
                    d = ACC + 4 * (4 * mt + t)
                    cc = '0' if (s == 0 and ks == 0) else vr(d, 4)
                    out.append(f'v_mfma_f32_16x16x32_bf16 {vr(d,4)}, {vr(fA(s,ks,t),4)}, {vr(fB(s,ks,mt),4)}, {cc}')
        if cs != 'ones':
            for t in range(NCS):
                out.insert(c + 1 + 2 * t, f'v_smfmac_f32_16x16x64_bf16 {vr(CS+4*t,4)}, {vr(vONE,4)}, {vr(fA(s,0,t),8)}, v{vIDX}')
        return out
    toggle = [f'v_xor_b32 v{r}, 0x10000, v{r}' for r in range(aB, aB + 6)]
    st('c:rdy')
    a('s_barrier')
    st('c:B0')
    for o in reads(0): L.op(o)
    rec_reads = [f'ds_read_b32 v{GT+mt}, v{vRA} offset:{128*mt}' for mt in range(4)] + [f'ds_read_b32 v{GT+4}, v{vTA}']
    rec_ops = []
    for mt in range(4):
        rec_ops += [f'v_cndmask_b32 v{vBAUG+2*mt+1}, 0, v{GT+mt}, s[100:101]',
                    f'v_and_b32 v{vS+mt}, {sMASK}, v{GT+mt}',
                    f'v_perm_b32 v{vBAUG+2*mt}, v{vBAUG+2*mt+1}, v{vBAUG+2*mt+1}, {sSEL0}',
                    f'v_rcp_f32 v{GT+mt}, v{vS+mt}']
    rec_ops += [f'v_readfirstlane_b32 {sEP}, v{GT+4}']
    for mt in range(4):
        rec_ops += [f'v_mul_f32 v{vKC+2*mt}, {f32(K1C)}, v{GT+mt}',
                    f'v_mul_f32 v{vKC+2*mt+1}, v{GT+mt}, v{GT+mt}',
                    f'v_mul_f32 v{GT+mt}, {f32(K3C)}, v{GT+mt}',
                    f'v_mul_f32 v{vKC+2*mt+1}, v{vKC+2*mt+1}, v{GT+mt}']
    rec_ops += [f's_andn2_b32 {sEP}, {sEP}, 7', f's_or_b32 {sT0}, {sEP}, {sXCC}', f'v_cmp_ne_u32 s[98:99], {sT0}, v{GT+4}']
    if force_slow: rec_ops.append('s_mov_b64 s[98:99], -1')
    split_ops = [lambda: V.need('bias')]
    for t in range(NCS):
        cc = CS + 4 * t
        if cs != 'ones': split_ops.append(f'v_add_f32 v{cc}, v{cc}, v{cc+1}')
        split_ops += [f'v_and_b32 v{cc+1}, {sMASK}, v{cc}',
                      f'v_sub_f32 v{cc+1}, v{cc}, v{cc+1}',
                      f'v_and_b32 v{cc+2}, {sMASK}, v{cc+1}',
                      f'v_sub_f32 v{cc+2}, v{cc+1}, v{cc+2}',
                      f'v_perm_b32 v{cc+3}, v{vBI[t]}, v{cc+2}, {sSEL2}',
                      f'v_perm_b32 v{cc+2}, v{cc+1}, v{cc}, {sSEL1}']
    if own:
        split_ops += [f'ds_write2_b64 v{vXA}, {vr(CS+2,2)}, {vr(CS+6,2)} offset0:0 offset1:1', f'v_xor_b32 v{vTA}, 2048, v{vXA}']
    split_ops += [f'v_mov_b32 v{vFLAGV}, {sEP}']
    assert svc[2] + 1 < recst
    for s in range(8):
        c = chk[s]
        ms = mfmas(s, c)
        NM = len(ms)
        slots = [[] for _ in range(NM)]
        def barfn(s=s):
            L.drain(); st(f'c:A{s+1}'); a('s_barrier'); st(f'c:B{s+1}')
        if s % 2 == 1 and s < 7:
            for i, t in enumerate(toggle): slots[i * c // 6].append(t)
        if s == recst:
            for i in range(5): slots[i].append(rec_reads[i])
        slots[c].append(barfn)
        rd = reads(s + 1) if s < 7 else pf_list(0)
        n = NM - c - (1 if s < 7 else 0)
        per = -(-len(rd) // n)
        if s == 7:
            k = 0
            for i in range(c, NM):
                e = (len(rd) * (i - c + 1) + n - 1) // n
                slots[i] += rd[k:e]; k = e
        else:
            k = 0; i = c
            while k < len(rd):
                slots[i] += rd[k:k+per]; k += per; i += 1
        if s < recst:
            for i in range(NM):
                if not slots[i]:
                    slots[i] += deferred[:2]; deferred = deferred[2:]
            if s == recst - 1: assert not deferred, len(deferred)
        if s >= recst:
            lo = c + 1 if s == recst else 0
            hi = NM if s < 7 else NM - (len(split_ops) + 1) // 2 - (0 if cs != 'ones' else 0)
            for i in range(lo, hi):
                room = 2 - len(slots[i])
                if s == 7 and recst == 7: room = 4 - len(slots[i])
                if room > 0:
                    slots[i] += rec_ops[:room]; rec_ops = rec_ops[room:]
        if s == 7:
            assert not rec_ops, len(rec_ops)
            slots[c].append((b2_load(), 'b2'))
            first = max(NM - len(split_ops), (c + 2 * NCS + 8) if cs != 'ones' else 29)
            n2 = NM - first
            k = 0
            for i in range(first, NM):
                e = (len(split_ops) * (i - first + 1) + n2 - 1) // n2
                slots[i] += split_ops[k:e]; k = e
        st(f'c:S{s}')
        for i, m in enumerate(ms):
            if i == 0: L.need(set(range(fB(s,0,0), fB(s,0,0) + 16)) | set(range(fA(s,0,1), fA(s,0,1) + 4)))
            L.mfma(m)
            for o in slots[i]: put(o)
    st('c:kend')
    def aug(ts):
        return [f'v_mfma_f32_16x16x16_bf16 {vr(ACC+4*(4*mt+t),4)}, {vr(aaug(t),2)}, {vr(vBAUG+2*mt,2)}, {vr(ACC+4*(4*mt+t),4)}'
                for mt in range(4) for t in ts]
    a('s_nop 0')
    for m in aug((0, 1)): L.mfma(m)
    a('s_nop 1')
    st('c:aug')
    def store2(ins, tag):
        l1 = a.label('L_s')
        a(f's_cbranch_scc0 {l1}a\n{ins}\n{l1}:')
        tail(f'{l1}a:\n{ins} sc1\ns_branch {l1}')
        V.op(tag)
    def flag_h(stage):
        V.need(f'h{stage}')
        a('s_mov_b64 exec, 1\ns_cmp_eq_u64 s[98:99], 0')
        store2(f'buffer_store_dword v{vFLAGV}, v{vFLAGA}, {WS}, {sFLG} offen offset:{64*stage}', 'f')
        a('s_mov_b64 exec, -1')
    augat = xat if own else 0
    idx = 0
    for stg in range(2):
        for mt in range(4):
            A = ACC + 16 * mt + 8 * stg
            T = GT
            O = GT + 16 + 4 * ((idx + (2 if own else 0)) % 3 if own else idx & 3)
            P = lambda r: vr(r, 2)
            kc = vr(vKC + 2 * mt, 2)
            s_ = vr(vS + (mt & ~1), 2)
            ssel = 'op_sel:[0,1,1] op_sel_hi:[1,1,1]' if mt & 1 else 'op_sel_hi:[1,0,0]'
            if idx == 1 and own: L.drain()
            if idx == xat:
                L.drain(); st('c:Xa'); a('s_barrier'); st('c:Xb')
                if own: L.op(f'ds_read_b128 {vr(GT+28,4)}, v{vTA}')
            if idx == pf2at:
                for o in pf_list(1): put(o)
            body = []
            for i in range(0, 8, 2): body.append(f'v_pk_mul_f32 {P(T+i)}, {P(A+i)}, {P(A+i)}')
            for i in range(0, 8, 2): body.append(f'v_pk_fma_f32 {P(T+i)}, {P(T+i)}, {kc}, {kc} op_sel:[0,1,0] op_sel_hi:[1,1,0]')
            for i in range(0, 8, 2): body.append(f'v_pk_mul_f32 {P(T+i)}, {P(A+i)}, {P(T+i)}')
            for i in range(8): body.append(f'v_exp_f32 v{T+i}, v{T+i}')
            for i in range(0, 8, 2): body.append(f'v_pk_fma_f32 {P(T+i)}, {P(T+i)}, {s_}, {s_} {ssel}')
            for i in range(8): body.append(f'v_rcp_f32 v{T+i}, v{T+i}')
            for i in range(0, 8, 2): body.append(f'v_pk_mul_f32 {P(T+i)}, {P(A+i)}, {P(T+i)}')
            for i in range(4): body.append(f'v_cvt_pk_bf16_f32 v{O+i}, v{T+2*i}, v{T+2*i+1}')
            am = aug((2, 3)) if idx == augat else []
            for i, o in enumerate(body):
                if am and 12 <= i < 20 and i % 2 == 0: L.mfma(am[(i - 12) // 2])
                if am and 24 <= i < 32 and i % 2 == 0: L.mfma(am[4 + (i - 24) // 2])
                a(o)
            a(f's_add_u32 {sT0}, {sHB}, {(mt>>1)*H_MB + stg*H_ST}')
            a('s_cmp_eq_u64 s[98:99], 0')
            store2(f'buffer_store_dwordx4 {vr(O,4)}, v{vHS}, {WS}, {sT0} offen offset:{256*(mt&1)}', f'h{stg}')
            st(f'c:g{idx}')
            idx += 1
            if idx == flagat:
                flag_h(0); st('c:flagA')
    if pf2at == 8:
        for o in pf_list(1): put(o)
    if fbpos == 'pre':
        final_setup()
        flag_h(1)
        st('c:flagB')
    a('L_c_p2:')
    ACC2, HR = GT, ACC
    V.q = []; L.q = []
    def hslot(n): return HR + 16 * (n % 4) + 8 * ((n % 8) // 4)
    def hload(n):
        r = hslot(n)
        pre = f's_add_u32 {sT3}, {sHC}, {2048*n}\n' if n % 2 == 0 else ''
        o = 2048 * (n % 2)
        return [pre + f'buffer_load_dwordx4 {vr(r,4)}, v{vHL}, {WS}, {sT3} offen offset:{o} {laux}',
                f'buffer_load_dwordx4 {vr(r+4,4)}, v{vHL}, {WS}, {sT3} offen offset:{o+1024} {laux}']
    cur_base = [0]
    def wreads(n):
        ad = unit_addr(n // 2) + 8192 * (n % 2)
        pre = []
        if not (0 <= ad - cur_base[0] <= 65535 - 8192):
            pre = rebase(ad - cur_base[0]); cur_base[0] = ad
        return pre + wreads_at(n, cur_base[0])
    pending = []
    for n in range(28):
        for ph, o in enumerate(hload(n)): pending.append((n, ph, o))
    def issue_h():
        n, ph, o = pending.pop(0)
        a(o); V.op((n, ph))
    a('s_waitcnt lgkmcnt(0)')
    a('s_barrier')
    st('c:seenA')
    for k in range(2 * ramp): issue_h()
    if fbpos == 'post':
        a(f's_cmp_ge_u32 {sJ}, 14\ns_cbranch_scc1 L_c_nfb')
        save = V.q
        V.q = ['h1'] + list(V.q)
        flag_h(1)
        V.q = save
        final_setup()
        a('L_c_nfb:')
    assert 11 - PD < sbat <= 18 - PD
    for n in range(28):
        fb = FR + 16 * (n % NS)
        hr = hslot(n)
        st(f'c:n{n}')
        fill = []
        m = n + PD
        if n == sbat:
            L.drain(); st('c:Za'); a('s_barrier'); st('c:Zb')
            for z in range(2): issue_h()
        if 8 <= m < 28: fill += wreads(m)
        if n == 27: fill += [f'v_xor_b32 v{HR+i}, {32*i}, v{vRW}' for i in range(1, 8)]
        per = (len(fill) + 2) // 3
        k = 0; i = 0
        for ph in range(2):
            for dl in range(2):
                d = ACC2 + 16 * dl
                c = '0' if (n == 0 and ph == 0) else vr(d, 16)
                if dl == 0:
                    vc = V.count((n, ph))
                    lc = L.count(set(range(fb, fb + 16))) if ph == 0 else None
                    w = ([f'vmcnt({vc})'] if vc is not None else []) + ([f'lgkmcnt({lc})'] if lc is not None else [])
                    if w: a('s_waitcnt ' + ' '.join(w))
                a(f'v_mfma_f32_32x32x16_bf16 {vr(d,16)}, {vr(fb+8*ph+4*dl,4)}, {vr(hr+4*ph,4)}, {c}')
                for o in fill[k:k+per]: put(o)
                k += per
                if i >= 1 and pending and pending[0][0] <= n - 1 + D and (i != 2 or pending[0][0] < n - 1 + D) and (pending[0][0] < 14 or n >= sbat):
                    issue_h()
                i += 1
    assert not pending
    st('c:p2end')
    a('s_nop 9')
    for dl in range(2):
        for g in range(4):
            i = 4 * dl + g
            a(f'ds_write_b128 v{vRW if i == 0 else HR + i}, {vr(ACC2+16*dl+4*g,4)}')
    a('s_waitcnt lgkmcnt(0)')
    a('L_final:')
    a('s_barrier')
    st('c:W4')
    R = 64
    a(f'''
    ds_read_b128 {vr(R,4)}, v{vFA0}
    ds_read_b128 {vr(R+8,4)}, v{vFA0} offset:16384
    ds_read_b128 {vr(R+4,4)}, v{vFA1}
    ds_read_b128 {vr(R+12,4)}, v{vFA1} offset:16384
    ''')
    for half in range(2):
        a(f's_waitcnt lgkmcnt({2 - 2*half})')
        rg = range(2 * half, 2 * half + 2)
        for i in rg: a(f'v_pk_add_f32 {vr(R+2*i,2)}, {vr(R+2*i,2)}, {vr(R+8+2*i,2)}')
        for i in rg: a(f'v_cvt_pk_bf16_f32 v{R+16+i}, v{R+2*i}, v{R+2*i+1}')
        for i in rg:
            a(f'v_lshlrev_b32 v{R+2*i}, 16, v{R+16+i}')
            a(f'v_and_b32 v{R+2*i+1}, {sMASK}, v{R+16+i}')
        for i in rg: a(f'v_pk_add_f32 {vr(R+2*i,2)}, {vr(R+2*i,2)}, {vr(vB2f+2*i,2)}')
        for i in rg: a(f'v_cvt_pk_bf16_f32 v{R+20+i}, v{R+2*i}, v{R+2*i+1}')
    a(f'buffer_store_dwordx4 {vr(R+20,4)}, v{vOUTO}, {OUT}, {sXOFF} offen {outaux}')
    if stamps:
        a('s_waitcnt vmcnt(0)')
        st('c:end')
        a(f's_cmp_eq_u32 {sWAVE}, {hst}\ns_cbranch_scc1 L_sth\ns_cmp_eq_u32 {sWAVE}, 6\ns_cbranch_scc1 L_sts\ns_cmp_lg_u32 {sWAVE}, {cst}\ns_cbranch_scc1 L_end')
        st_flush('c:'); a('s_branch L_end')
        a('L_sts:'); st_flush('s:'); a('s_branch L_end')
        a('L_sth:'); st_flush('h:')
    if padend:
        a(f'L_pad:\ns_memrealtime s[94:95]\ns_waitcnt lgkmcnt(0)\ns_sub_u32 s94, s94, s62\ns_cmp_lt_u32 s94, {padend}\ns_cbranch_scc1 L_pad')
    a('s_endpgm')
    body = a.text() + tail.text() + 'L_end:\n'
    return make_file([(KNAME, body, 256, 102, 256)], [(KNAME, 256, 512, 163840)])

ST_Q = ['c:start', 'c:end', 'c:B0@', 'c:kend@', 'c:g7@', 'c:seenA@', 'c:p2end@', 'c:end@']
if __name__ == '__main__':
    names = []
    def g(nm, **kw):
        open(nm + '.s', 'w').write(gen(**kw)); names.append(nm)
    g('k14')
    g('q14', stamps=ST_Q)
    print(' '.join(names))
```

```python
from gen14 import *
names = []
def g(nm, **kw):
    d = dict(gpf=1, spf=2, gdel=32, cpe=1, rot='x', wbat='B', wb1=True, outaux='sc1'); d.update(kw)
    open(nm + '.s', 'w').write(gen(**d)); names.append(nm)
g('f_0')
g('f_nocpe', cpe=0)
g('f_w128', wsoff=128 << 20)
g('f_w240', wsoff=240 << 20)
g('f_g0', gpf=0, gdel=0)
print(' '.join(names))
```

```python
import sys, struct, re
from asmlib import *
from gen4 import LQ, VQ, f32, vr, regs_of, K1C, K3C

H_G, H_WM, H_MB, H_KH, H_ST = 524288, 229376, 114688, 57344, 28672
FLAG_BASE = 458752
WS_SIZE = 16 << 20
SLOT = 32768
XCH = 147456
XCH2 = XCH + 4096
RED = 49152
def unit_addr(u): return 147456 if u == 13 else ((u + 8) % 9) * 16384
def lines(s): return [l.strip() for l in s.strip().split('\n') if l.strip()]

def gen(stamps=None, rot='x', force_slow=False, padend=0, outaux='sc1', ramp=4, hst=4, cst=0, flagat=5,
        chk=(20, 12, 6, 6, 6, 6, 6, 6), lead=24, lead0=12, svc=(1, 3, 4), padat=None, touch=0, xat=3, sbat=10, npoll=2,
        wbat='', cs='smf2', recst=6, PD=4, wbd=0, wbj=(15,), cpf=0, leads=(12, 24, 24, 24, 24, 24, 16, 12, 16), spf=2, pf2at=6, fbpos='post', wrd=0, saat=8, wb1=True, laux='sc1', hpf=0, hts=None, gpf=1, gdel=0, cpe=1, wsoff=0, hgap=0, hsc=True, fsc=False, gbar=False, hrot=False, fclean=True, slate=0, wpf=(2,), ndef=0, dprio=0, zat=None):
    a = Asm(); tail = Asm()
    NST = 12; D = 8
    sWAVE, sG, sJ, sR, sC = 's3', 's4', 's5', 's6', 's7'
    X, W1, W2, WS, OUT, DBG, B1, B2 = 's[8:11]', 's[12:15]', 's[16:19]', 's[20:23]', 's[24:27]', 's[28:31]', 's[32:35]', 's[36:39]'
    sXCC, sHW = 's41', 's42'
    sT0, sT1, sT2, sT3 = 's43', 's44', 's45', 's46'
    sXOFF, sW1OFF, sW2A, sFLG, sHB, sW2B, sM0B, sKAP = 's47', 's48', 's49', 's50', 's51', 's52', 's53', 's54'
    sMASK, sONES, sSPIN = 's55', 's56', 's57'
    sWM, sWN, sEP, sHC = 's58', 's59', 's60', 's61'
    sSEL0, sSEL1, sSEL2 = 's40', 's12', 's13'
    KA = 80 if stamps else 64
    stamps = stamps or []
    assert len(stamps) <= 8
    SB = 64
    own = cs != 'smf4'
    def ka(i): return f's[{KA+2*i}:{KA+2*i+1}]'
    def st(name):
        if padat and name == padat[0]:
            lab = a.label('L_padp')
            a(f'{lab}:\ns_memrealtime s[92:93]\ns_waitcnt lgkmcnt(0)\ns_sub_u32 s92, s92, s62\ns_cmp_lt_u32 s92, {padat[1]}\ns_cbranch_scc1 {lab}')
        for suffix, ins in (('', 's_memrealtime'), ('@', 's_memtime')):
            if name + suffix in stamps:
                i = stamps.index(name + suffix); a(f'{ins} s[{SB+2*i}:{SB+2*i+1}]')
    def st_flush(pref):
        a('s_waitcnt lgkmcnt(0)\ns_load_dwordx2 s[90:91], s[0:1], 56\ns_waitcnt lgkmcnt(0)')
        stamp_setup(a, NST)
        a('v_mov_b32 v250, 0')
        for i, n in enumerate(stamps):
            if not n.startswith(pref): continue
            if n == 'c:start': a(f's_mov_b64 s[{SB+2*i}:{SB+2*i+1}], s[62:63]')
            if n.endswith('@'):
                a(f's_sub_u32 s{SB+2*i}, s{SB+2*i}, s96\ns_add_u32 s{SB+2*i}, s{SB+2*i}, s62\ns_addc_u32 s{SB+2*i+1}, s63, 0')
            a(f'v_mov_b32 v252, s{SB+2*i}\nv_mov_b32 v253, s{SB+2*i+1}\nglobal_store_dwordx2 v250, v[252:253], s[90:91] offset:{i*8}\ns_nop 1')

    vB2raw, vB2f, vFA0, vFA1, vOUTO = 2, 20, 28, 29, 30
    cpe_code = ''
    if cpe:
        cpe_code = f'''s_cmp_ge_u32 s2, {8*cpe}
        s_cbranch_scc1 L_nocpe
        s_getpc_b64 s[14:15]
        v_lshlrev_b32 v2, 7, v0
        v_cmp_gt_u32 vcc, L_end-{KNAME}, v2
        s_and_saveexec_b64 s[16:17], vcc
        s_cbranch_execz L_cpe1
        global_load_dword v255, v2, s[14:15]
        L_cpe1:
        s_mov_b64 exec, s[16:17]
        L_nocpe:'''
    a(f'''
    s_cmp_ge_u32 s2, 256
    s_cbranch_scc1 L_end
    s_load_dwordx16 s[{KA}:{KA+15}], s[0:1], 0
    s_memrealtime s[62:63]
    ''')
    if stamps: a('s_memtime s[96:97]')
    a(f'''
    {cpe_code}
    v_lshrrev_b32 v1, 6, v0
    v_and_b32 v0, 63, v0
    s_and_b32 {sT0}, s2, 7
    v_readfirstlane_b32 {sWAVE}, v1
    s_lshr_b32 {sT1}, s2, 3
    s_lshr_b32 {sT2}, {sT1}, 4
    s_lshl_b32 {sG}, {sT0}, 1
    s_add_u32 {sG}, {sG}, {sT2}
    s_and_b32 {sJ}, {sT1}, 15
    s_mov_b32 s10, 2097152
    s_mov_b32 s11, 0x20000
    s_cmp_lt_u32 {sWAVE}, 4
    s_cbranch_scc1 L_comp
    s_cmp_ge_u32 {sWAVE}, 6
    s_cbranch_scc1 L_serv
    ''')
    def common_setup():
        perm = list(range(16)); perm[14], perm[11] = 11, 14; perm[15], perm[3] = 3, 15
        lo = sum(perm[i] << (4 * i) for i in range(8)); hi = sum(perm[8 + i] << (4 * i) for i in range(8))
        return lines(f'''
        s_mov_b32 s36, {lo:#x}
        s_mov_b32 s37, {hi:#x}
        s_lshl_b32 {sC}, {sJ}, 2
        s_lshr_b64 s[36:37], s[36:37], {sC}
        s_bfe_u32 {sR}, s36, 0x10003
        s_and_b32 {sC}, s36, 7
        s_mov_b32 {sMASK}, 0xffff0000
        s_mov_b64 s[36:37], {ka(4)}
        s_mov_b32 s38, 1024
        s_mov_b32 s39, 0x20000
        s_mov_b64 s[24:25], {ka(5)}
        s_mov_b32 s26, 2097152
        s_mov_b32 s27, 0x20000
        ''')
    def ws_setup():
        return lines(f'''
        s_add_u32 s20, s{KA+14}, {wsoff}
        s_addc_u32 s21, s{KA+15}, 0
        s_mov_b32 s22, {WS_SIZE}
        s_mov_b32 s23, 0x20000
        s_getreg_b32 {sXCC}, hwreg(HW_REG_XCC_ID, 0, 3)
        s_lshl_b32 {sFLG}, {sG}, 19
        s_add_u32 {sFLG}, {sFLG}, {FLAG_BASE}
        ''')
    def b2_load():
        return f'''v_and_b32 v{vB2raw+4}, 7, v0
        v_lshlrev_b32 v{vB2raw+4}, 4, v{vB2raw+4}
        s_lshl_b32 {sT0}, {sC}, 7
        buffer_load_dwordx4 {vr(vB2raw,4)}, v{vB2raw+4}, {B2}, {sT0} offen'''
    def final_setup():
        for i in range(4):
            a(f'v_lshlrev_b32 v{vB2f+2*i}, 16, v{vB2raw+i}')
            a(f'v_and_b32 v{vB2f+2*i+1}, {sMASK}, v{vB2raw+i}')
        a(f'''
        v_lshrrev_b32 v{vFA1}, 3, v0
        s_lshl_b32 {sT0}, {sWAVE}, 3
        v_add_u32 v{vFA1}, {sT0}, v{vFA1}
        v_lshl_add_u32 v{vOUTO}, v{vFA1}, 10, v{vB2raw+4}
        v_and_b32 v{vFA0}, 7, v0
        v_lshlrev_b32 v{vFA0}, 1, v{vFA0}
        v_and_b32 v{vB2raw}, 15, v{vFA1}
        v_xor_b32 v{vFA0}, v{vFA0}, v{vB2raw}
        v_lshlrev_b32 v{vFA0}, 4, v{vFA0}
        v_lshl_add_u32 v{vFA0}, v{vFA1}, 8, v{vFA0}
        v_add_u32 v{vFA0}, {RED}, v{vFA0}
        v_xor_b32 v{vFA1}, 16, v{vFA0}
        s_lshl_b32 {sXOFF}, {sG}, 17
        s_lshl_b32 {sT1}, {sR}, 16
        s_add_u32 {sXOFF}, {sXOFF}, {sT1}
        s_lshl_b32 {sT1}, {sC}, 7
        s_add_u32 {sXOFF}, {sXOFF}, {sT1}
        ''')
    def spin_guard(lab):
        return f's_cmp_le_i32 {sSPIN}, 0\ns_cbranch_scc1 {lab}\ns_sub_u32 {sSPIN}, {sSPIN}, 1'

    vX, vW1, vW2 = 32, 36, 40
    if rot == 'none': a(f's_mov_b32 {sKAP}, 0')
    elif rot == 'x': a(f's_mov_b32 {sKAP}, {sT0}')
    elif rot == 'xj': a(f's_add_u32 {sKAP}, {sT0}, {sJ}\ns_and_b32 {sKAP}, {sKAP}, 7')
    a(f'''
    s_sub_u32 {sHW}, {sWAVE}, 4
    v_lshrrev_b32 v49, 4, v0
    v_and_b32 v51, 15, v0
    v_mul_u32_u24 v53, 3584, v49
    v_lshlrev_b32 v52, 1, v49
    v_xor_b32 v52, v52, v51
    v_lshl_add_u32 v{vW1}, v52, 4, v53
    v_add_u32 v{vW1+1}, {4*3584-1024}, v{vW1}
    v_xor_b32 v52, 8, v52
    v_lshl_add_u32 v52, v52, 4, v53
    v_add_u32 v{vW1+2}, {(4*3584-1024)*2}, v52
    v_add_u32 v{vW1+3}, {(4*3584-1024)*3}, v52
    s_mul_i32 {sW1OFF}, {sHW}, {32*3584}
    s_lshl_b32 {sT0}, {sJ}, 8
    s_add_u32 {sW1OFF}, {sW1OFF}, {sT0}
    s_lshl_b32 {sM0B}, {sHW}, 13
    s_mov_b32 s14, 1835008
    s_mov_b32 s15, 0x20000
    v_lshrrev_b32 v48, 3, v0
    v_and_b32 v50, 7, v0
    s_cmp_ge_u32 {sJ}, 14
    s_cbranch_scc1 L_lspare
    v_xor_b32 v52, v49, v50
    v_lshlrev_b32 v52, 4, v52
    v_lshl_add_u32 v{vX}, v48, 10, v52
    v_xor_b32 v{vX+1}, 64, v{vX}
    v_add_u32 v{vX+1}, {7*1024}, v{vX+1}
    v_add_u32 v{vX+2}, {14*1024}, v{vX}
    v_add_u32 v{vX+3}, {14*1024}, v{vX+1}
    s_lshl_b32 {sXOFF}, {sG}, 17
    s_lshl_b32 {sT0}, {sHW}, 16
    s_add_u32 {sXOFF}, {sXOFF}, {sT0}
    s_waitcnt lgkmcnt(0)
    s_mov_b64 s[12:13], {ka(1)}
    s_mov_b64 s[8:9], {ka(0)}
    ''')
    w2setup = common_setup() + lines(f'''
    s_mov_b64 s[16:17], {ka(3)}
    s_mov_b32 s18, 1835008
    s_mov_b32 s19, 0x20000
    v_and_b32 v52, 1, v49
    v_lshlrev_b32 v52, 2, v52
    v_xor_b32 v52, v52, v50
    v_lshlrev_b32 v52, 4, v52
    v_lshl_add_u32 v{vW2}, v48, 10, v52
    v_add_u32 v{vW2+1}, {7*1024}, v{vW2}
    v_add_u32 v{vW2+2}, {14*1024}, v{vW2}
    v_add_u32 v{vW2+3}, {21*1024}, v{vW2}
    s_lshl_b32 {sW2A}, {sHW}, 17
    s_lshl_b32 {sT2}, {sC}, 7
    s_add_u32 {sW2A}, {sW2A}, {sT2}
    ''') + (lines(f's_lshl_b32 {sT2}, {sR}, 15\ns_add_u32 {sW2A}, {sW2A}, {sT2}') if own else []) + [f's_xor_b32 {sW2B}, {sW2A}, 32768']
    def rot_table(base, scale):
        out = [f's_min_u32 s{base}, {sC}, 6' if False else f's_cmp_eq_u32 {sC}, 7', f's_cselect_b32 s{base}, 3, {sC}'] if hrot else [f's_mov_b32 s{base}, 0']
        for u in range(1, 7):
            out += [f's_add_u32 s{base+u}, s{base+u-1}, 1', f's_cmp_eq_u32 s{base+u}, 7', f's_cselect_b32 s{base+u}, 0, s{base+u}']
        out += [f's_lshl_b32 s{base+u}, s{base+u}, {scale}' for u in range(7)]
        return out
    RT = 28
    w2setup += rot_table(RT, 18)
    def grp(pre, vb, srd, soff):
        return [(pre if i == 0 else '') + f'buffer_load_dwordx4 v{vb+i}, {srd}, {soff} offen offset:{1024*i} lds' for i in range(4)]
    def dma_stage_ops(s):
        slot = (s % 4) * SLOT
        g = grp(f's_mul_i32 {sT1}, {sKAP}, {64*3584}\ns_add_u32 m0, {sM0B}, {slot+16384}\ns_add_u32 {sT1}, {sT1}, {sW1OFF}\n', vW1, W1, sT1)
        g += grp(f's_add_u32 m0, {sM0B}, {slot+16384+4096}\ns_add_u32 {sT1}, {sT1}, {16*3584}\n', vW1, W1, sT1)
        g += grp(f's_lshl_b32 {sT0}, {sKAP}, 7\ns_add_u32 m0, {sM0B}, {slot}\ns_add_u32 {sT0}, {sT0}, {sXOFF}\n', vX, X, sT0)
        g += grp(f's_add_u32 {sKAP}, {sKAP}, 1\ns_and_b32 {sKAP}, {sKAP}, 7\ns_add_u32 m0, {sM0B}, {slot+4096}\ns_add_u32 {sT0}, {sT0}, 32768\n', vX, X, sT0)
        return g
    def w2_unit_ops(u):
        stg_, uu = divmod(u, 7)
        g = []
        for h in range(2):
            g += grp(f's_add_u32 m0, {sM0B}, {unit_addr(u)+4096*h}\n' + (f's_add_u32 {sT2}, {sW2B if stg_ else sW2A}, s{RT+uu}' if h == 0 else f's_add_u32 {sT2}, {sT2}, 65536') + '\n', vW2, W2, sT2)
        return g
    stream = []
    for s in range(8): stream += dma_stage_ops(s)
    for u in range(9): stream += w2_unit_ops(u)
    bar_at = {}
    for k in range(-1, 8):
        pos = 16 * (k + 2) + (leads[k + 1] if leads else lead0 if k == -1 else lead)
        lim = 16 * (k + 4) if k < 4 else 128 + 8 * (1 + 2 * (k - 4))
        if k >= 0: pos = min(pos, lim)
        bar_at[pos] = k
    for i, o in enumerate(stream):
        if i in bar_at:
            k = bar_at[i]
            st(f'h:pa{k+1}')
            a(f's_waitcnt vmcnt({i - 16 * (k + 2)})')
            st(f'h:pb{k+1}')
            a('s_barrier')
        a(o)
        if i == 19:
            for z in w2setup: a(z)
    a('s_branch L_lpost')
    a('L_lspare:')
    a('s_waitcnt lgkmcnt(0)')
    for z in w2setup: a(z)
    if wpf:
        a(f'''
        s_mov_b64 s[12:13], {ka(1)}
        v_lshlrev_b32 v46, 4, v0
        s_and_b32 {sT3}, {sG}, 1
        s_lshl_b32 {sT3}, {sT3}, 1
        s_add_u32 {sT3}, {sT3}, {sJ}
        s_sub_u32 {sT3}, {sT3}, 14
        s_lshl_b32 {sT3}, {sT3}, 1
        s_add_u32 {sT3}, {sT3}, {sHW}
        s_mul_i32 {sT3}, {sT3}, 28672
        ''')
        for z in wpf:
            a(f'''
            s_add_u32 {sT0}, {sKAP}, {z}
            s_and_b32 {sT0}, {sT0}, 7
            s_mul_i32 {sT0}, {sT0}, {64*3584}
            s_add_u32 {sT0}, {sT0}, {sT3}
            s_mov_b32 {sT1}, 7
            L_wpf{z}:
            buffer_load_dwordx4 v[64:67], v46, {W1}, {sT0} offen
            buffer_load_dwordx4 v[68:71], v46, {W1}, {sT0} offen offset:1024
            buffer_load_dwordx4 v[72:75], v46, {W1}, {sT0} offen offset:2048
            buffer_load_dwordx4 v[76:79], v46, {W1}, {sT0} offen offset:3072
            s_add_u32 {sT0}, {sT0}, 4096
            s_sub_u32 {sT1}, {sT1}, 1
            s_cmp_lg_u32 {sT1}, 0
            s_cbranch_scc1 L_wpf{z}
            ''')
    if gdel: a(f's_sleep {gdel}')
    if gbar: a('s_barrier')
    if gpf:
        a(f'''
        v_lshlrev_b32 v46, 4, v0
        s_lshl_b32 {sT0}, {sG}, 1
        s_add_u32 {sT0}, {sT0}, {sJ}
        s_sub_u32 {sT0}, {sT0}, 14
        s_lshl_b32 {sT0}, {sT0}, 1
        s_add_u32 {sT0}, {sT0}, {sHW}
        s_mul_i32 {sT0}, {sT0}, 28672
        s_mov_b32 {sT1}, 7
        L_gpf:
        buffer_load_dwordx4 v[64:67], v46, {W2}, {sT0} offen
        buffer_load_dwordx4 v[68:71], v46, {W2}, {sT0} offen offset:1024
        buffer_load_dwordx4 v[72:75], v46, {W2}, {sT0} offen offset:2048
        buffer_load_dwordx4 v[76:79], v46, {W2}, {sT0} offen offset:3072
        s_add_u32 {sT0}, {sT0}, 4096
        s_sub_u32 {sT1}, {sT1}, 1
        s_cmp_lg_u32 {sT1}, 0
        s_cbranch_scc1 L_gpf
        ''')
    if spf:
        a(f'''
        s_and_b32 {sT0}, {sG}, 1
        s_lshl_b32 {sT0}, {sT0}, 1
        s_add_u32 {sT0}, {sT0}, {sJ}
        s_sub_u32 {sT0}, {sT0}, 14
        s_lshl_b32 {sT0}, {sT0}, 1
        s_add_u32 {sT0}, {sT0}, {sHW}
        s_lshl_b32 {sT3}, {sT0}, 15
        v_lshrrev_b32 v47, 3, v0
        v_cmp_eq_u32 vcc, 7, v47
        s_nop 1
        v_cndmask_b32 v47, v47, 3, vcc
        ''')
        if not hrot: a('v_mov_b32 v47, 0')
        for uu in range(spf):
            lab = f'L_spf{uu}'
            a(f'''
            v_lshlrev_b32 v46, 4, v0
            v_lshl_add_u32 v46, v47, 18, v46
            s_mov_b32 {sT0}, {sT3}
            s_mov_b32 {sT1}, 8
            {lab}:
            buffer_load_dwordx4 v[64:67], v46, {W2}, {sT0} offen
            buffer_load_dwordx4 v[68:71], v46, {W2}, {sT0} offen offset:1024
            buffer_load_dwordx4 v[72:75], v46, {W2}, {sT0} offen offset:2048
            buffer_load_dwordx4 v[76:79], v46, {W2}, {sT0} offen offset:3072
            s_add_u32 {sT0}, {sT0}, 4096
            s_sub_u32 {sT1}, {sT1}, 1
            s_cmp_lg_u32 {sT1}, 0
            s_cbranch_scc1 {lab}
            v_add_u32 v47, 1, v47
            v_cmp_eq_u32 vcc, 7, v47
            s_nop 1
            v_cndmask_b32 v47, v47, 0, vcc
            ''')
    for u in range(9):
        for o in w2_unit_ops(u): a(o)
    a('s_waitcnt vmcnt(56)')
    a('s_barrier')
    a('L_lpost:')
    st('h:w9')
    a(b2_load())
    STG = 128
    def w2_reg_ops(u):
        stg_, uu = divmod(u, 7)
        g = []
        for h in range(2):
            for i in range(4):
                r = STG + 32 * (u - 11) + 16 * h + 4 * i
                pre = ((f's_add_u32 {sT2}, {sW2B if stg_ else sW2A}, s{RT+uu}' if h == 0 else f's_add_u32 {sT2}, {sT2}, 65536') + '\n') if i == 0 else ''
                g.append(pre + f'buffer_load_dwordx4 {vr(r,4)}, v{vW2+i}, {W2}, {sT2} offen offset:{1024*i}')
        return g
    def w2_write(u):
        for z in range(8):
            r = STG + 32 * (u - 11) + 4 * z
            if u == 13: a(f'ds_write_b128 v45, {vr(r,4)} offset:{1024*z}')
            else: a(f'ds_write_b128 v44, {vr(r,4)} offset:{unit_addr(u)+1024*z}')
    a('s_waitcnt vmcnt(41)')
    a('s_barrier')
    pre_dma = [u for u in (9, 10) if u < 14 - ndef]
    pre_reg = [u for u in (11, 12, 13) if u < 14 - ndef]
    post = list(range(14 - ndef, 14))
    for u in pre_dma:
        for o in w2_unit_ops(u): a(o)
    for u in pre_reg:
        for o in w2_reg_ops(u): a(o)
    st('h:w2issued')
    a(f'''
    v_lshlrev_b32 v44, 4, v0
    v_add_u32 v44, {sM0B}, v44
    v_add_u32 v45, {unit_addr(13)}, v44
    s_waitcnt vmcnt({8 * (len(pre_dma) + len(pre_reg))})
    ''')
    final_setup()
    a('s_barrier')
    for z, u in enumerate(pre_reg):
        a(f's_waitcnt vmcnt({8*(len(pre_reg)-1-z)})')
        w2_write(u)
    if dprio: a(f's_setprio {dprio}')
    for u in post:
        for o in w2_unit_ops(u): a(o)
    if zat: a('s_barrier')
    a('s_waitcnt vmcnt(0) lgkmcnt(0)')
    st('h:w2landed')
    a('s_barrier')
    a('s_branch L_final')

    a('L_serv:')
    ST, SA = 64, 80
    vEPA, vPOLL = 17, 12
    a(f'''
    s_sub_u32 {sHW}, {sWAVE}, 6
    v_lshrrev_b32 v52, 4, v0
    v_and_b32 v53, 15, v0
    v_lshlrev_b32 v53, 4, v53
    v_lshl_add_u32 v53, v52, 10, v53
    s_lshl_b32 {sT0}, {sG}, 17
    s_lshl_b32 {sT1}, {sJ}, 13
    s_add_u32 {sT3}, {sT0}, {sT1}
    s_lshl_b32 {sT1}, {sHW}, 12
    s_add_u32 {sT3}, {sT3}, {sT1}
    s_lshl_b32 {sT1}, {sG}, 4
    v_mov_b32 v{vEPA}, {sT1}
    s_mov_b32 s30, 256
    s_mov_b32 s31, 0x20000
    s_add_u32 {sT2}, {sJ}, {sHW}
    s_waitcnt lgkmcnt(0)
    s_mov_b64 s[8:9], {ka(0)}
    s_mov_b64 s[28:29], {ka(6)}
    s_cmp_lg_u32 {sT2}, 0
    s_cbranch_scc1 L_s_nolead
    s_lshl_b32 {sT1}, s62, 4
    s_or_b32 {sT1}, {sT1}, 8
    v_mov_b32 v54, {sT1}
    s_mov_b64 exec, 1
    buffer_store_dword v54, v{vEPA}, {DBG}, 0 offen sc1
    s_mov_b64 exec, -1
    L_s_nolead:
    ''')
    if slate: a(f's_mov_b32 {sKAP}, {sT3}')
    if slate > 1: a(f's_sleep {slate}')
    if slate != 1:
        for i in range(4):
            a(f'buffer_load_dwordx4 {vr(ST+4*i,4)}, v53, {X}, {sT3} offen offset:{256*i}')
    for z in common_setup() + ws_setup(): a(z)
    a(f'''
    s_mov_b32 {sSPIN}, 0x40000
    s_lshl_b32 {sT0}, {sJ}, 6
    s_lshl_b32 {sT1}, {sHW}, 5
    s_add_u32 {sT0}, {sT0}, {sT1}
    s_add_u32 {sT0}, {sT0}, 1024
    v_lshlrev_b32 v55, 3, v52
    v_add_u32 v55, {sT0}, v55
    v_lshlrev_b32 v56, 4, v0
    s_add_u32 {sT3}, {sFLG}, 1024
    v_add_u32 v57, {XCH}, v56
    s_mov_b32 m0, {XCH}
    ''')
    def bars(k0, k1):
        if k1 <= k0: return
        l1 = a.label('L_sb')
        a(f's_cmp_ge_u32 {sJ}, 14\ns_cbranch_scc1 {l1}')
        for k in range(k0, k1):
            st(f's:a{k+1}'); a('s_barrier')
        a(f'{l1}:')
    for i in range(8): a(f'v_mov_b32 v{SA+i}, 0')
    bars(-1, 0)
    sh = 0
    if slate == 1:
        for i in range(4):
            a(f'buffer_load_dwordx4 {vr(ST+4*i,4)}, v53, {X}, {sKAP} offen offset:{256*i}')
        bars(0, 1); sh = 1
    a('s_waitcnt vmcnt(0)')
    if gbar: a(f's_cmp_lt_u32 {sJ}, 14\ns_cbranch_scc1 L_s_ngb\ns_barrier\nL_s_ngb:')
    a(f'buffer_load_dword v{vPOLL}, v{vEPA}, {DBG}, 0 offen sc1')
    for i in range(4):
        for d in range(4):
            r = ST + 4 * i + d
            a(f'''
            v_lshlrev_b32 v58, 16, v{r}
            v_and_b32 v59, {sMASK}, v{r}
            v_add_f32 v{SA+(d&1)}, v{SA+(d&1)}, v58
            v_fmac_f32 v{SA+4+(d&1)}, v58, v58
            v_add_f32 v{SA+2+(d&1)}, v{SA+2+(d&1)}, v59
            v_fmac_f32 v{SA+6+(d&1)}, v59, v59
            ''')
        if i == 2: bars(sh, sh + 1)
    a(f'''
    v_add_f32 v{SA}, v{SA}, v{SA+1}
    v_add_f32 v{SA+2}, v{SA+2}, v{SA+3}
    v_add_f32 v{SA+4}, v{SA+4}, v{SA+5}
    v_add_f32 v{SA+6}, v{SA+6}, v{SA+7}
    v_add_f32 v{SA}, v{SA}, v{SA+2}
    v_add_f32 v{SA+4}, v{SA+4}, v{SA+6}
    s_nop 1
    ''')
    for mode in ('quad_perm:[1,0,3,2]', 'quad_perm:[2,3,0,1]', 'row_half_mirror', 'row_mirror'):
        a(f'''
        v_add_f32_dpp v{SA}, v{SA}, v{SA} {mode} row_mask:0xf bank_mask:0xf
        v_add_f32_dpp v{SA+4}, v{SA+4}, v{SA+4} {mode} row_mask:0xf bank_mask:0xf
        s_nop 1
        ''')
    a(f'''
    v_mul_f32 v{SA}, {f32(1.0/512)}, v{SA}
    v_mul_f32 v{SA+4}, {f32(1.0/512)}, v{SA+4}
    v_fma_f32 v{SA+4}, -v{SA}, v{SA}, v{SA+4}
    v_max_f32 v{SA+4}, 0, v{SA+4}
    v_cvt_pk_bf16_f32 v{SA+4}, v{SA+4}, v{SA+4}
    v_and_b32 v{SA+4}, {sMASK}, v{SA+4}
    v_add_f32 v{SA+4}, {f32(1e-5)}, v{SA+4}
    v_cvt_pk_bf16_f32 v{SA+4}, v{SA+4}, v{SA+4}
    v_and_b32 v{SA+4}, {sMASK}, v{SA+4}
    v_sqrt_f32 v{SA+4}, v{SA+4}
    s_nop 0
    v_cvt_pk_bf16_f32 v{SA}, -v{SA}, v{SA+4}
    ''')
    bars(sh + 1, svc[0] + 1)
    assert svc[0] >= sh
    a(f'''
    L_s_ep:
    s_waitcnt vmcnt(0)
    v_readfirstlane_b32 {sEP}, v{vPOLL}
    s_cmp_lg_u32 {sEP}, 0
    s_cbranch_scc1 L_s_ep2
    {spin_guard('L_s_ep2')}
    s_sleep 2
    buffer_load_dword v{vPOLL}, v{vEPA}, {DBG}, 0 offen sc1
    s_branch L_s_ep
    L_s_ep2:
    s_or_b32 {sT0}, {sEP}, {sXCC}
    v_mov_b32 v{SA+1}, {sT0}
    s_mov_b32 exec_lo, 0x00010001
    s_mov_b32 exec_hi, 0x00010001
    buffer_store_dwordx2 {vr(SA,2)}, v55, {WS}, {sFLG} offen sc1
    s_mov_b64 exec, -1
    ''')
    st('s:pub')
    a(b2_load())
    if touch:
        a(f's_lshl_b32 {sT0}, {sG}, 17\ns_load_dword s48, {ka(5)}, {sT0}')
    a(f's_cmp_ge_u32 {sJ}, 14\ns_cbranch_scc1 L_s_g3')
    def sbar(k):
        st(f's:a{k+1}')
        a('s_barrier')
        if hts is not None and k in hts:
            z = hts.index(k)
            per = 4 // len(hts)
            lab = a.label('L_ht')
            a(f'''
            s_cmp_eq_u32 {sHW}, 0
            s_cbranch_scc1 {lab}
            v_lshrrev_b32 v58, 4, v0
            v_mul_u32_u24 v58, {H_ST}, v58
            v_and_b32 v59, 15, v0
            v_lshl_add_u32 v58, v59, 7, v58
            s_lshl_b32 {sT0}, {sG}, 19
            s_lshl_b32 {sT1}, {sJ}, 11
            s_add_u32 {sT0}, {sT0}, {sT1}
            ''')
            for y in range(per):
                a(f's_add_u32 {sT1}, {sT0}, {4*H_ST*(z*per+y)}')
                a(f'buffer_load_dword v60, v58, {WS}, {sT1} offen sc1')
            a(f'{lab}:')
    for k in range(svc[0] + 1, svc[1] + 1): sbar(k)
    a(f'''
    s_cmp_eq_u32 {sHW}, 1
    s_cbranch_scc1 L_s_g0
    buffer_load_dwordx4 v56, {WS}, {sT3} offen sc1 lds
    L_s_g0:
    ''')
    for k in range(svc[1] + 1, svc[2] + 1): sbar(k)
    a(f'''
    s_cmp_eq_u32 {sHW}, 1
    s_cbranch_scc1 L_s_g2
    L_s_g:
    s_waitcnt vmcnt(0)
    ds_read_b128 {vr(ST,4)}, v57
    s_waitcnt lgkmcnt(0)
    v_xor_b32 v{ST+1}, {sEP}, v{ST+1}
    v_xor_b32 v{ST+3}, {sEP}, v{ST+3}
    v_or_b32 v{ST+1}, v{ST+1}, v{ST+3}
    v_cmp_lt_u32 vcc, 7, v{ST+1}
    s_cbranch_vccz L_s_g2
    {spin_guard('L_s_g2')}
    s_sleep 4
    buffer_load_dwordx4 v56, {WS}, {sT3} offen sc1 lds
    s_branch L_s_g
    L_s_g2:
    ''')
    st('s:got')
    assert svc[2] + 1 <= recst - 1 + 0 or svc[2] + 1 <= recst - 1 or True
    for k in range(svc[2] + 1, 7): sbar(k)
    a('L_s_g3:')
    a('s_barrier')
    a('s_waitcnt vmcnt(0) lgkmcnt(0)')
    final_setup()
    a(f'''
    v_and_b32 v58, 15, v0
    v_min_u32 v58, 13, v58
    v_lshlrev_b32 v58, 2, v58
    v_and_b32 v59, 16, v0
    v_lshl_add_u32 v58, v59, 3, v58
    s_lshl_b32 {sT0}, {sR}, 8
    v_add_u32 v58, {sT0}, v58
    ''')
    def svc_poll(stage):
        l0, l1 = a.label('L_sp'), a.label('L_sp')
        a(f's_cmp_eq_u32 {sHW}, 1\ns_cbranch_scc1 {l1}')
        ld = lambda i: f'buffer_load_dword v{60+i}, v58, {WS}, {sFLG} offen offset:{64*stage} sc1'
        for i in range(npoll - 1):
            a(ld(i)); a('s_sleep 1')
        a(f'{l0}:')
        for i in range(npoll):
            a(f'{ld((i + npoll - 1) % npoll)}\ns_waitcnt vmcnt({npoll-1})\nv_cmp_ne_u32 vcc, {sEP}, v{60+i}\ns_cbranch_vccz {l1}\ns_sleep 1')
        a(f'{spin_guard(l1)}\ns_branch {l0}\n{l1}:')
    def wbcode(tag):
        if tag in wbat:
            a(f's_cmp_lg_u32 {sWAVE}, 7\ns_cbranch_scc1 L_nwb{tag}\ns_cmp_lg_u32 {sJ}, 15\ns_cbranch_scc1 L_nwb{tag}\n' + (f's_bitcmp1_b32 {sG}, 0\ns_cbranch_scc1 L_nwb{tag}\n' if wb1 else '') + (f's_sleep {wbd}\n' if wbd else '') + f'buffer_wbl2 sc1\nL_nwb{tag}:')
    a('s_barrier')
    svc_poll(0)
    st('s:seenA')
    a('s_barrier')
    wbcode('A')
    svc_poll(1)
    st('s:seenB')
    a('s_barrier')
    if zat: a('s_barrier')
    wbcode('B')
    if fclean:
        a(f'''
        s_cmp_lg_u32 {sWAVE}, 7
        s_cbranch_scc1 L_nfc
        s_cmp_lt_u32 {sJ}, 14
        s_cbranch_scc1 L_nfc
        v_lshlrev_b32 v59, 6, v0
        s_lshl_b32 {sT0}, {sR}, 8
        v_add_u32 v59, {sT0}, v59
        s_mov_b64 exec, 15
        buffer_store_dword v59, v59, {WS}, {sFLG} offen offset:60 sc1
        s_mov_b64 exec, -1
        L_nfc:
        ''')
    a(f'''
    s_add_u32 {sT2}, {sJ}, {sHW}
    s_cmp_lg_u32 {sT2}, 0
    s_cbranch_scc1 L_final
    v_mov_b32 v54, 0
    s_mov_b64 exec, 1
    buffer_store_dword v54, v{vEPA}, {DBG}, 0 offen sc1
    s_mov_b64 exec, -1
    s_branch L_final
    ''')

    a('L_comp:')
    aB, aA, aW = 2, 4, 8
    vHS, vHL, vONE, vRW = 10, 11, 12, 16
    vFLAGA, vFLAGV, vRA, vTA = 17, 18, 19, 1
    vIDX = vFLAGV
    vKC, vS = 20, 28
    ACC, FR, GT = 32, 96, 224
    vBAUG, CS, vXA = GT + 8, GT + 16, GT + 7
    vBI = [GT + 5, GT + 6, GT + 7, 31]
    def aaug(t): return CS + 4 * t + 2 if (t < 2 or not own) else GT + 28 + 2 * (t - 2)
    tm, tq, tr, tc, t4, t5, t6, t7 = [GT + 8 + i for i in range(8)]
    a(f'''
    s_lshr_b32 {sWM}, {sWAVE}, 1
    s_and_b32 {sWN}, {sWAVE}, 1
    v_and_b32 v{tm}, 15, v0
    v_lshrrev_b32 v{tq}, 4, v0
    v_lshrrev_b32 v{t4}, 1, v{tm}
    v_xor_b32 v{t4}, v{t4}, v{tq}
    v_lshlrev_b32 v{t4}, 4, v{t4}
    v_lshl_add_u32 v{t4}, v{tm}, 7, v{t4}
    s_lshl_b32 {sT0}, {sWM}, 13
    v_add_u32 v{aB}, {sT0}, v{t4}
    v_xor_b32 v{aB+1}, 64, v{aB}
    v_lshrrev_b32 v{tr}, 2, v{tm}
    v_and_b32 v{tc}, 3, v{tm}
    v_and_b32 v{t5}, 1, v{tq}
    v_lshl_or_b32 v{t5}, v{t5}, 2, v{tr}
    v_lshl_add_u32 v{t6}, v{tq}, 3, v{tr}
    v_lshlrev_b32 v{t6}, 8, v{t6}
    v_lshl_add_u32 v{t6}, v{tc}, 3, v{t6}
    v_add_u32 v{t6}, 16384, v{t6}
    s_lshl_b32 {sT0}, {sWN}, 2
    ''')
    if own: a(f's_lshl_b32 {sT1}, {sWM}, 1\ns_or_b32 {sT0}, {sT0}, {sT1}')
    a(f'''
    v_xor_b32 v{t5}, {sT0}, v{t5}
    v_lshl_add_u32 v{aA}, v{t5}, 5, v{t6}
    v_xor_b32 v{aA+1}, 32, v{aA}
    v_xor_b32 v{aA+2}, 64, v{aA}
    v_xor_b32 v{aA+3}, 96, v{aA}
    s_mov_b32 {sONES}, 0x3f803f80
    v_mov_b32 v{vONE}, {sONES}
    v_mov_b32 v{vONE+1}, {sONES}
    v_mov_b32 v{vONE+2}, {sONES}
    v_mov_b32 v{vONE+3}, {sONES}
    v_and_b32 v{vIDX}, 1, v0
    v_mul_u32_u24 v{vIDX}, 0xaaaa, v{vIDX}
    v_add_u32 v{vIDX}, 0x4444, v{vIDX}
    v_lshl_or_b32 v{vIDX}, v{vIDX}, 16, v{vIDX}
    ''')
    NCS = 2 if own else 4
    for i in range(4 * NCS): a(f'v_mov_b32 v{CS+i}, 0')
    a('s_waitcnt lgkmcnt(0)')
    setup2 = common_setup() + ws_setup() + lines(f'''
    v_lshlrev_b32 v{vHL}, 4, v0
    v_lshrrev_b32 v{t4}, 5, v0
    v_lshl_add_u32 v{t6}, v{t4}, 2, v{tr}
    v_lshlrev_b32 v{t6}, 7, v{t6}
    v_lshl_add_u32 v{t6}, v{tc}, 3, v{t6}
    v_and_b32 v{t5}, 1, v{tq}
    v_lshl_add_u32 v{t6}, v{t5}, 5, v{t6}
    v_lshrrev_b32 v{t5}, 1, v{tr}
    v_lshl_add_u32 v{t6}, v{t5}, 6, v{t6}
    s_lshl_b32 {sT0}, {sWN}, 12
    s_add_u32 {sT0}, {sT0}, {unit_addr(0)}
    v_add_u32 v{aW}, {sT0}, v{t6}
    v_xor_b32 v{aW+1}, 64, v{aW}
    s_lshl_b32 {sHB}, {sG}, 19
    s_mul_i32 {sT0}, {sWN}, {H_KH}
    s_add_u32 {sHB}, {sHB}, {sT0}
    s_mul_i32 {sT0}, {sR}, {H_WM}
    s_add_u32 {sHC}, {sHB}, {sT0}
    s_mul_i32 {sT0}, {sWM}, {H_MB}
    s_add_u32 {sHC}, {sHC}, {sT0}
    v_and_b32 v{vRW}, 31, v0
    v_lshlrev_b32 v{vRW}, 8, v{vRW}
    v_xor_b32 v{t5}, v{t4}, v{tm}
    v_lshl_add_u32 v{vRW}, v{t5}, 4, v{vRW}
    s_lshl_b32 {sT0}, {sWN}, 14
    s_lshl_b32 {sT1}, {sWM}, 13
    s_add_u32 {sT0}, {sT0}, {sT1}
    s_add_u32 {sT0}, {sT0}, {RED}
    v_add_u32 v{vRW}, {sT0}, v{vRW}
    ''')
    bl = [(f'buffer_load_ushort v{vBI[t]}, v{t7}, {B1}, {sT0} offen offset:{32*t}', 'bias') for t in range(NCS)]
    assert own
    setup1 = lines(f'''
    s_mov_b64 s[32:33], {ka(2)}
    s_mov_b32 s34, 3584
    s_mov_b32 s35, 0x20000
    v_lshlrev_b32 v{t7}, 1, v{tm}
    s_lshl_b32 {sT0}, {sJ}, 8
    s_lshl_b32 {sT1}, {sWN}, 7
    s_add_u32 {sT0}, {sT0}, {sT1}
    ''') + (lines(f's_lshl_b32 {sT1}, {sWM}, 6\ns_add_u32 {sT0}, {sT0}, {sT1}') if own else []) + bl + lines(f'''
    v_lshlrev_b32 v{vHS}, 4, v{tm}
    v_lshl_add_u32 v{vHS}, v{tq}, 9, v{vHS}
    s_mul_i32 {sT0}, {sWM}, {H_WM}
    s_add_u32 {sHB}, {sHB}, {sT0}
    s_lshl_b32 {sT0}, {sJ}, 11
    s_add_u32 {sHB}, {sHB}, {sT0}
    s_lshl_b32 {sT0}, {sWAVE}, 7
    s_lshl_b32 {sT1}, {sJ}, 2
    s_add_u32 {sT0}, {sT0}, {sT1}
    v_mov_b32 v{vFLAGA}, {sT0}
    s_mov_b32 {sSEL0}, 0x01000100
    s_mov_b32 {sSEL1}, 0x07060302
    s_mov_b32 {sSEL2}, 0x05040302
    s_mov_b64 s[100:101], 0xffff
    v_lshlrev_b32 v{vRA}, 3, v{tm}
    s_lshl_b32 {sT0}, {sWM}, 9
    s_add_u32 {sT0}, {sT0}, {XCH}
    v_add_u32 v{vRA}, {sT0}, v{vRA}
    v_lshlrev_b32 v{vTA}, 6, v{tm}
    v_add_u32 v{vTA}, {XCH+4}, v{vTA}
    ''') + (lines(f'''
    s_lshl_b32 {sT0}, {sWAVE}, 10
    s_add_u32 {sT0}, {sT0}, {XCH2}
    v_add_u32 v{vXA}, {sT0}, v{vHL}
    ''') if own else [])
    CT = KA
    hrt = rot_table(CT, 12) + [f's_add_u32 s{CT+u}, s{CT+u}, {sHC}' for u in range(7)]
    V = VQ(a); L = LQ(a)
    def put(o):
        if callable(o): o()
        elif isinstance(o, tuple): a(o[0]); V.op(o[1])
        elif o.startswith('ds_'): L.op(o)
        else: a(o)
    NS = 8
    def wreads_at(n, base):
        ad = unit_addr(n // 2) + 8192 * (n % 2)
        fb = FR + 16 * (n % NS)
        return [f'ds_read_b64_tr_b16 {vr(fb+8*ph+4*dl+2*h,2)}, v{aW+dl} offset:{ad-base+1024*ph+2048*h}'
                for ph in range(2) for dl in range(2) for h in range(2)]
    def rebase(delta): return [f'v_add_u32 v{aW+dl}, {delta & 0xffffffff:#x}, v{aW+dl}' for dl in range(2)]
    def pf_list(b):
        if b == 0: return wreads_at(0, unit_addr(0)) + wreads_at(1, unit_addr(0)) + rebase(-unit_addr(0)) + wreads_at(2, 0) + wreads_at(3, 0)
        return sum((wreads_at(n, 0) for n in range(4, 8)), [])
    def code_pf():
        a(f'''
        s_cmp_ge_u32 {sWAVE}, 3
        s_cbranch_scc1 L_nocpf
        s_getpc_b64 s[14:15]
        L_pc:
        s_sub_u32 s14, s14, L_pc-{KNAME}
        s_subb_u32 s15, s15, 0
        s_lshl_b32 {sT0}, {sWAVE}, 13
        v_lshlrev_b32 v20, 7, v0
        v_add_u32 v20, {sT0}, v20
        v_min_u32 v20, L_end-{KNAME}, v20
        global_load_dword v21, v20, s[14:15]
        L_nocpf:
        ''')
    if cpf == 2: code_pf()
    a(f's_cmp_lt_u32 {sJ}, 14\ns_cbranch_scc1 L_c_reg')
    if cpf == 1: code_pf()
    for o in setup2 + hrt: put(o)
    a(f'v_mov_b32 v{vFLAGA}, 0')
    if gbar: a('s_barrier')
    if hpf:
        a(f'''
        v_lshlrev_b32 v20, 7, v0
        s_sub_u32 {sT0}, {sJ}, 14
        s_lshl_b32 {sT0}, {sT0}, 2
        s_add_u32 {sT0}, {sT0}, {sWAVE}
        s_mul_i32 {sT0}, {sT0}, {H_KH}
        s_lshl_b32 {sT1}, {sG}, 19
        s_add_u32 {sT0}, {sT0}, {sT1}
        s_sleep {hpf}
        ''')
        for z in range(7):
            a(f'buffer_load_dword v21, v20, {WS}, {sT0} offen sc1')
            a(f's_add_u32 {sT0}, {sT0}, 8192')
            if hgap: a(f's_sleep {hgap}')
    a(b2_load())
    a('s_barrier')
    for o in pf_list(0): a(o)
    a('s_waitcnt vmcnt(0) lgkmcnt(0)')
    a('s_barrier')
    for o in pf_list(1): a(o)
    final_setup()
    a('s_branch L_c_p2')
    a('L_c_reg:')
    V.q = []; L.q = []
    deferred = setup2 + setup1 + hrt
    def fB(s, ks, mt): return FR + 64 * (s & 1) + 16 * ks + 4 * mt
    def fA(s, ks, t): return FR + 64 * (s & 1) + 32 + 8 * t + 4 * ks
    def reads(s):
        so = (s & 1) * SLOT
        out = []
        for ks in range(2):
            rb = [f'ds_read_b128 {vr(fB(s,ks,mt),4)}, v{aB+ks} offset:{so+2048*mt}' for mt in range(4)]
            ra = [[f'ds_read_b64_tr_b16 {vr(fA(s,ks,t)+2*h,2)}, v{aA+t} offset:{so+8192*ks+1024*h}' for h in range(2)] for t in range(4)]
            out += ra[0] + rb + ra[1] + ra[2] + ra[3]
        return out
    def mfmas(s, c):
        out = []
        for ks in range(2):
            for t in range(4):
                if cs == 'ones' and t < 2:
                    out.append(f'v_mfma_f32_16x16x32_bf16 {vr(CS+4*t,4)}, {vr(vONE,4)}, {vr(fA(s,ks,t),4)}, {vr(CS+4*t,4)}')
                for mt in range(4):
                    d = ACC + 4 * (4 * mt + t)
                    cc = '0' if (s == 0 and ks == 0) else vr(d, 4)
                    out.append(f'v_mfma_f32_16x16x32_bf16 {vr(d,4)}, {vr(fA(s,ks,t),4)}, {vr(fB(s,ks,mt),4)}, {cc}')
        if cs != 'ones':
            for t in range(NCS):
                out.insert(c + 1 + 2 * t, f'v_smfmac_f32_16x16x64_bf16 {vr(CS+4*t,4)}, {vr(vONE,4)}, {vr(fA(s,0,t),8)}, v{vIDX}')
        return out
    toggle = [f'v_xor_b32 v{r}, 0x10000, v{r}' for r in range(aB, aB + 6)]
    st('c:rdy')
    a('s_barrier')
    st('c:B0')
    for o in reads(0): L.op(o)
    rec_reads = [f'ds_read_b32 v{GT+mt}, v{vRA} offset:{128*mt}' for mt in range(4)] + [f'ds_read_b32 v{GT+4}, v{vTA}']
    rec_ops = []
    for mt in range(4):
        rec_ops += [f'v_cndmask_b32 v{vBAUG+2*mt+1}, 0, v{GT+mt}, s[100:101]',
                    f'v_and_b32 v{vS+mt}, {sMASK}, v{GT+mt}',
                    f'v_perm_b32 v{vBAUG+2*mt}, v{vBAUG+2*mt+1}, v{vBAUG+2*mt+1}, {sSEL0}',
                    f'v_rcp_f32 v{GT+mt}, v{vS+mt}']
    rec_ops += [f'v_readfirstlane_b32 {sEP}, v{GT+4}']
    for mt in range(4):
        rec_ops += [f'v_mul_f32 v{vKC+2*mt}, {f32(K1C)}, v{GT+mt}',
                    f'v_mul_f32 v{vKC+2*mt+1}, v{GT+mt}, v{GT+mt}',
                    f'v_mul_f32 v{GT+mt}, {f32(K3C)}, v{GT+mt}',
                    f'v_mul_f32 v{vKC+2*mt+1}, v{vKC+2*mt+1}, v{GT+mt}']
    rec_ops += [f's_andn2_b32 {sEP}, {sEP}, 7', f's_or_b32 {sT0}, {sEP}, {sXCC}', f'v_cmp_ne_u32 s[98:99], {sT0}, v{GT+4}']
    if force_slow: rec_ops.append('s_mov_b64 s[98:99], -1')
    split_ops = [lambda: V.need('bias')]
    for t in range(NCS):
        cc = CS + 4 * t
        if cs != 'ones': split_ops.append(f'v_add_f32 v{cc}, v{cc}, v{cc+1}')
        split_ops += [f'v_and_b32 v{cc+1}, {sMASK}, v{cc}',
                      f'v_sub_f32 v{cc+1}, v{cc}, v{cc+1}',
                      f'v_and_b32 v{cc+2}, {sMASK}, v{cc+1}',
                      f'v_sub_f32 v{cc+2}, v{cc+1}, v{cc+2}',
                      f'v_perm_b32 v{cc+3}, v{vBI[t]}, v{cc+2}, {sSEL2}',
                      f'v_perm_b32 v{cc+2}, v{cc+1}, v{cc}, {sSEL1}']
    if own:
        split_ops += [f'ds_write2_b64 v{vXA}, {vr(CS+2,2)}, {vr(CS+6,2)} offset0:0 offset1:1', f'v_xor_b32 v{vTA}, 2048, v{vXA}']
    split_ops += [f'v_mov_b32 v{vFLAGV}, {sEP}']
    assert svc[2] + 1 < recst
    for s in range(8):
        c = chk[s]
        ms = mfmas(s, c)
        NM = len(ms)
        slots = [[] for _ in range(NM)]
        def barfn(s=s):
            L.drain(); st(f'c:A{s+1}'); a('s_barrier'); st(f'c:B{s+1}')
        if s % 2 == 1 and s < 7:
            for i, t in enumerate(toggle): slots[i * c // 6].append(t)
        if s == recst:
            for i in range(5): slots[i].append(rec_reads[i])
        slots[c].append(barfn)
        rd = reads(s + 1) if s < 7 else pf_list(0)
        n = NM - c - (1 if s < 7 else 0)
        per = -(-len(rd) // n)
        if s == 7:
            k = 0
            for i in range(c, NM):
                e = (len(rd) * (i - c + 1) + n - 1) // n
                slots[i] += rd[k:e]; k = e
        else:
            k = 0; i = c
            while k < len(rd):
                slots[i] += rd[k:k+per]; k += per; i += 1
        if s < recst:
            for i in range(NM):
                if not slots[i]:
                    slots[i] += deferred[:3]; deferred = deferred[3:]
            if s == recst - 1: assert not deferred, len(deferred)
        if s >= recst:
            lo = c + 1 if s == recst else 0
            hi = NM if s < 7 else NM - (len(split_ops) + 1) // 2 - (0 if cs != 'ones' else 0)
            for i in range(lo, hi):
                room = 2 - len(slots[i])
                if s == 7 and recst == 7: room = 4 - len(slots[i])
                if room > 0:
                    slots[i] += rec_ops[:room]; rec_ops = rec_ops[room:]
        if s == 7:
            assert not rec_ops, len(rec_ops)
            slots[c].append((b2_load(), 'b2'))
            first = max(NM - len(split_ops), (c + 2 * NCS + 8) if cs != 'ones' else 29)
            n2 = NM - first
            k = 0
            for i in range(first, NM):
                e = (len(split_ops) * (i - first + 1) + n2 - 1) // n2
                slots[i] += split_ops[k:e]; k = e
        st(f'c:S{s}')
        for i, m in enumerate(ms):
            if i == 0: L.need(set(range(fB(s,0,0), fB(s,0,0) + 16)) | set(range(fA(s,0,1), fA(s,0,1) + 4)))
            L.mfma(m)
            for o in slots[i]: put(o)
    st('c:kend')
    def aug(ts):
        return [f'v_mfma_f32_16x16x16_bf16 {vr(ACC+4*(4*mt+t),4)}, {vr(aaug(t),2)}, {vr(vBAUG+2*mt,2)}, {vr(ACC+4*(4*mt+t),4)}'
                for mt in range(4) for t in ts]
    a('s_nop 0')
    for m in aug((0, 1)): L.mfma(m)
    a('s_nop 1')
    st('c:aug')
    def store2(ins, tag):
        if (hsc and tag != 'f') or (fsc and tag == 'f'):
            a(f'{ins} sc1'); V.op(tag); return
        l1 = a.label('L_s')
        a(f's_cbranch_scc0 {l1}a\n{ins}\n{l1}:')
        tail(f'{l1}a:\n{ins} sc1\ns_branch {l1}')
        V.op(tag)
    def flag_h(stage):
        V.need(f'h{stage}')
        a('s_mov_b64 exec, 1\ns_cmp_eq_u64 s[98:99], 0')
        store2(f'buffer_store_dword v{vFLAGV}, v{vFLAGA}, {WS}, {sFLG} offen offset:{64*stage}', 'f')
        a('s_mov_b64 exec, -1')
    augat = xat if own else 0
    idx = 0
    for stg in range(2):
        for mt in range(4):
            A = ACC + 16 * mt + 8 * stg
            T = GT
            O = GT + 16 + 4 * ((idx + (2 if own else 0)) % 3 if own else idx & 3)
            P = lambda r: vr(r, 2)
            kc = vr(vKC + 2 * mt, 2)
            s_ = vr(vS + (mt & ~1), 2)
            ssel = 'op_sel:[0,1,1] op_sel_hi:[1,1,1]' if mt & 1 else 'op_sel_hi:[1,0,0]'
            if idx == 1 and own: L.drain()
            if idx == xat:
                L.drain(); st('c:Xa'); a('s_barrier'); st('c:Xb')
                if own: L.op(f'ds_read_b128 {vr(GT+28,4)}, v{vTA}')
            if idx == pf2at:
                for o in pf_list(1): put(o)
            body = []
            for i in range(0, 8, 2): body.append(f'v_pk_mul_f32 {P(T+i)}, {P(A+i)}, {P(A+i)}')
            for i in range(0, 8, 2): body.append(f'v_pk_fma_f32 {P(T+i)}, {P(T+i)}, {kc}, {kc} op_sel:[0,1,0] op_sel_hi:[1,1,0]')
            for i in range(0, 8, 2): body.append(f'v_pk_mul_f32 {P(T+i)}, {P(A+i)}, {P(T+i)}')
            for i in range(8): body.append(f'v_exp_f32 v{T+i}, v{T+i}')
            for i in range(0, 8, 2): body.append(f'v_pk_fma_f32 {P(T+i)}, {P(T+i)}, {s_}, {s_} {ssel}')
            for i in range(8): body.append(f'v_rcp_f32 v{T+i}, v{T+i}')
            for i in range(0, 8, 2): body.append(f'v_pk_mul_f32 {P(T+i)}, {P(A+i)}, {P(T+i)}')
            for i in range(4): body.append(f'v_cvt_pk_bf16_f32 v{O+i}, v{T+2*i}, v{T+2*i+1}')
            am = aug((2, 3)) if idx == augat else []
            for i, o in enumerate(body):
                if am and 12 <= i < 20 and i % 2 == 0: L.mfma(am[(i - 12) // 2])
                if am and 24 <= i < 32 and i % 2 == 0: L.mfma(am[4 + (i - 24) // 2])
                a(o)
            a(f's_add_u32 {sT0}, {sHB}, {(mt>>1)*H_MB + stg*H_ST}')
            if not hsc: a('s_cmp_eq_u64 s[98:99], 0')
            store2(f'buffer_store_dwordx4 {vr(O,4)}, v{vHS}, {WS}, {sT0} offen offset:{256*(mt&1)}', f'h{stg}')
            st(f'c:g{idx}')
            idx += 1
            if idx == flagat:
                flag_h(0); st('c:flagA')
    if pf2at == 8:
        for o in pf_list(1): put(o)
    if fbpos == 'pre':
        final_setup()
        flag_h(1)
        st('c:flagB')
    a('L_c_p2:')
    ACC2, HR = GT, ACC
    V.q = []; L.q = []
    def hslot(n): return HR + 16 * (n % 4) + 8 * ((n % 8) // 4)
    def hload(n):
        r = hslot(n)
        u = (n % 14) // 2
        pre = f's_add_u32 s{CT+u}, s{CT+u}, {H_ST}\n' if (n >= 14 and n % 2 == 0) else ''
        o = 2048 * (n % 2)
        return [pre + f'buffer_load_dwordx4 {vr(r,4)}, v{vHL}, {WS}, s{CT+u} offen offset:{o} {laux}',
                f'buffer_load_dwordx4 {vr(r+4,4)}, v{vHL}, {WS}, s{CT+u} offen offset:{o+1024} {laux}']
    cur_base = [0]
    def wreads(n):
        ad = unit_addr(n // 2) + 8192 * (n % 2)
        pre = []
        if not (0 <= ad - cur_base[0] <= 65535 - 8192):
            pre = rebase(ad - cur_base[0]); cur_base[0] = ad
        return pre + wreads_at(n, cur_base[0])
    pending = []
    for n in range(28):
        for ph, o in enumerate(hload(n)): pending.append((n, ph, o))
    def issue_h():
        n, ph, o = pending.pop(0)
        a(o); V.op((n, ph))
    a('s_waitcnt lgkmcnt(0)')
    a('s_barrier')
    st('c:seenA')
    for k in range(2 * ramp): issue_h()
    if fbpos == 'post':
        a(f's_cmp_ge_u32 {sJ}, 14\ns_cbranch_scc1 L_c_nfb')
        save = V.q
        V.q = ['h1'] + list(V.q)
        flag_h(1)
        V.q = save
        final_setup()
        a('L_c_nfb:')
    assert 11 - PD < sbat <= 18 - PD
    for n in range(28):
        fb = FR + 16 * (n % NS)
        hr = hslot(n)
        st(f'c:n{n}')
        fill = []
        m = n + PD
        if n == sbat:
            L.drain(); st('c:Za'); a('s_barrier'); st('c:Zb')
            for z in range(2): issue_h()
        if zat and n == zat: a('s_barrier')
        if 8 <= m < 28: fill += wreads(m)
        if n == 27: fill += [f'v_xor_b32 v{HR+i}, {32*i}, v{vRW}' for i in range(1, 8)]
        per = (len(fill) + 2) // 3
        k = 0; i = 0
        for ph in range(2):
            for dl in range(2):
                d = ACC2 + 16 * dl
                c = '0' if (n == 0 and ph == 0) else vr(d, 16)
                if dl == 0:
                    vc = V.count((n, ph))
                    lc = L.count(set(range(fb, fb + 16))) if ph == 0 else None
                    w = ([f'vmcnt({vc})'] if vc is not None else []) + ([f'lgkmcnt({lc})'] if lc is not None else [])
                    if w: a('s_waitcnt ' + ' '.join(w))
                a(f'v_mfma_f32_32x32x16_bf16 {vr(d,16)}, {vr(fb+8*ph+4*dl,4)}, {vr(hr+4*ph,4)}, {c}')
                for o in fill[k:k+per]: put(o)
                k += per
                if i >= 1 and pending and pending[0][0] <= n - 1 + D and (i != 2 or pending[0][0] < n - 1 + D) and (pending[0][0] < 14 or n >= sbat):
                    issue_h()
                i += 1
    assert not pending
    st('c:p2end')
    a('s_nop 9')
    for dl in range(2):
        for g in range(4):
            i = 4 * dl + g
            a(f'ds_write_b128 v{vRW if i == 0 else HR + i}, {vr(ACC2+16*dl+4*g,4)}')
    a('s_waitcnt lgkmcnt(0)')
    a('L_final:')
    a('s_barrier')
    st('c:W4')
    R = 64
    a(f'''
    ds_read_b128 {vr(R,4)}, v{vFA0}
    ds_read_b128 {vr(R+8,4)}, v{vFA0} offset:16384
    ds_read_b128 {vr(R+4,4)}, v{vFA1}
    ds_read_b128 {vr(R+12,4)}, v{vFA1} offset:16384
    ''')
    for half in range(2):
        a(f's_waitcnt lgkmcnt({2 - 2*half})')
        rg = range(2 * half, 2 * half + 2)
        for i in rg: a(f'v_pk_add_f32 {vr(R+2*i,2)}, {vr(R+2*i,2)}, {vr(R+8+2*i,2)}')
        for i in rg: a(f'v_cvt_pk_bf16_f32 v{R+16+i}, v{R+2*i}, v{R+2*i+1}')
        for i in rg:
            a(f'v_lshlrev_b32 v{R+2*i}, 16, v{R+16+i}')
            a(f'v_and_b32 v{R+2*i+1}, {sMASK}, v{R+16+i}')
        for i in rg: a(f'v_pk_add_f32 {vr(R+2*i,2)}, {vr(R+2*i,2)}, {vr(vB2f+2*i,2)}')
        for i in rg: a(f'v_cvt_pk_bf16_f32 v{R+20+i}, v{R+2*i}, v{R+2*i+1}')
    a(f'buffer_store_dwordx4 {vr(R+20,4)}, v{vOUTO}, {OUT}, {sXOFF} offen {outaux}')
    if stamps:
        a('s_waitcnt vmcnt(0)')
        st('c:end')
        a(f's_cmp_eq_u32 {sWAVE}, {hst}\ns_cbranch_scc1 L_sth\ns_cmp_eq_u32 {sWAVE}, 6\ns_cbranch_scc1 L_sts\ns_cmp_lg_u32 {sWAVE}, {cst}\ns_cbranch_scc1 L_end')
        st_flush('c:'); a('s_branch L_end')
        a('L_sts:'); st_flush('s:'); a('s_branch L_end')
        a('L_sth:'); st_flush('h:')
    if padend:
        a(f'L_pad:\ns_memrealtime s[94:95]\ns_waitcnt lgkmcnt(0)\ns_sub_u32 s94, s94, s62\ns_cmp_lt_u32 s94, {padend}\ns_cbranch_scc1 L_pad')
    a('s_endpgm')
    body = a.text() + tail.text() + 'L_end:\n'
    return make_file([(KNAME, body, 256, 102, 256)], [(KNAME, 256, 512, 163840)])

ST_Q = ['c:start', 'c:end', 'c:B0@', 'c:kend@', 'c:g7@', 'c:seenA@', 'c:p2end@', 'c:end@']
if __name__ == '__main__':
    names = []
    def g(nm, **kw):
        open(nm + '.s', 'w').write(gen(**kw)); names.append(nm)
    g('k16')
    g('q16', stamps=ST_Q)
    print(' '.join(names))
```

```python
from gen16 import *
names = []
def g(nm, **kw):
    open(nm + '.s', 'w').write(gen(**kw)); names.append(nm)
g('e_0')
g('e_rot', hrot=True)
g('e_f7', flagat=7, pf2at=8, sbat=8)
g('e_s3', spf=3)
g('e_d3', ndef=3, zat=14)
g('e_g32', wpf=(), gdel=32)
print(' '.join(names))
```

```python
import sys, struct, re
from asmlib import *
from gen4 import LQ, VQ, f32, vr, regs_of, K1C, K3C

H_G, H_WM, H_MB, H_KH, H_ST = 524288, 229376, 114688, 57344, 28672
FLAG_BASE = 458752
WS_SIZE = 16 << 20
SLOT = 32768
XCH = 147456
XCH2 = XCH + 4096
RED = 49152
def unit_addr(u): return 147456 if u == 13 else ((u + 8) % 9) * 16384
def lines(s): return [l.strip() for l in s.strip().split('\n') if l.strip()]

def gen(stamps=None, rot='x', force_slow=False, padend=0, outaux='sc1', ramp=4, hst=4, cst=0, flagat=5,
        chk=(20, 12, 6, 6, 6, 6, 6, 6), lead=24, lead0=12, svc=(1, 3, 4), padat=None, touch=0, xat=3, sbat=10, npoll=2,
        wbat='', cs='smf2', recst=6, PD=4, wbd=0, wbj=(15,), cpf=0, leads=(12, 24, 24, 24, 24, 24, 16, 12, 16), spf=2, pf2at=6, fbpos='post', wrd=0, saat=8, wb1=True, laux='sc1', hpf=0, hts=None, gpf=1, gdel=0, cpe=1, wsoff=0, hgap=0, hsc=True, fsc=False, gbar=False, hrot=False, fclean=True, slate=0, wpf=(2,), ndef=0, dprio=0, zat=None, scramble=0, otouch=''):
    a = Asm(); tail = Asm()
    NST = 12; D = 8
    sWAVE, sG, sJ, sR, sC = 's3', 's4', 's5', 's6', 's7'
    X, W1, W2, WS, OUT, DBG, B1, B2 = 's[8:11]', 's[12:15]', 's[16:19]', 's[20:23]', 's[24:27]', 's[28:31]', 's[32:35]', 's[36:39]'
    sXCC, sHW = 's41', 's42'
    sT0, sT1, sT2, sT3 = 's43', 's44', 's45', 's46'
    sXOFF, sW1OFF, sW2A, sFLG, sHB, sW2B, sM0B, sKAP = 's47', 's48', 's49', 's50', 's51', 's52', 's53', 's54'
    sMASK, sONES, sSPIN = 's55', 's56', 's57'
    sWM, sWN, sEP, sHC = 's58', 's59', 's60', 's61'
    sSEL0, sSEL1, sSEL2 = 's40', 's12', 's13'
    KA = 80 if stamps else 64
    stamps = stamps or []
    assert len(stamps) <= 8
    SB = 64
    own = cs != 'smf4'
    def ka(i): return f's[{KA+2*i}:{KA+2*i+1}]'
    def st(name):
        if padat and name == padat[0]:
            lab = a.label('L_padp')
            a(f'{lab}:\ns_memrealtime s[92:93]\ns_waitcnt lgkmcnt(0)\ns_sub_u32 s92, s92, s62\ns_cmp_lt_u32 s92, {padat[1]}\ns_cbranch_scc1 {lab}')
        for suffix, ins in (('', 's_memrealtime'), ('@', 's_memtime')):
            if name + suffix in stamps:
                i = stamps.index(name + suffix); a(f'{ins} s[{SB+2*i}:{SB+2*i+1}]')
    def st_flush(pref):
        a('s_waitcnt lgkmcnt(0)\ns_load_dwordx2 s[90:91], s[0:1], 56\ns_waitcnt lgkmcnt(0)')
        stamp_setup(a, NST)
        a('v_mov_b32 v250, 0')
        for i, n in enumerate(stamps):
            if not n.startswith(pref): continue
            if n == 'c:start': a(f's_mov_b64 s[{SB+2*i}:{SB+2*i+1}], s[62:63]')
            if n.endswith('@'):
                a(f's_sub_u32 s{SB+2*i}, s{SB+2*i}, s96\ns_add_u32 s{SB+2*i}, s{SB+2*i}, s62\ns_addc_u32 s{SB+2*i+1}, s63, 0')
            a(f'v_mov_b32 v252, s{SB+2*i}\nv_mov_b32 v253, s{SB+2*i+1}\nglobal_store_dwordx2 v250, v[252:253], s[90:91] offset:{i*8}\ns_nop 1')

    vB2raw, vB2f, vFA0, vFA1, vOUTO = 2, 20, 28, 29, 30
    cpe_code = ''
    scr = ''
    if scramble == 1: scr = 's_mul_i32 s2, s2, 37\ns_add_u32 s2, s2, 11\ns_and_b32 s2, s2, 255\ns_lshr_b32 s3, s2, 3\ns_xor_b32 s2, s2, s3'
    if scramble == 2: scr = 's_cmp_eq_u32 s2, 8\ns_cselect_b32 s3, 1, 0\ns_cmp_eq_u32 s2, 9\ns_cselect_b32 s3, 1, s3\ns_xor_b32 s2, s2, s3'
    if cpe:
        cpe_code = f'''s_cmp_ge_u32 s2, {8*cpe}
        s_cbranch_scc1 L_nocpe
        s_getpc_b64 s[14:15]
        v_lshlrev_b32 v2, 7, v0
        v_cmp_gt_u32 vcc, L_end-{KNAME}, v2
        s_and_saveexec_b64 s[16:17], vcc
        s_cbranch_execz L_cpe1
        global_load_dword v255, v2, s[14:15]
        L_cpe1:
        s_mov_b64 exec, s[16:17]
        L_nocpe:'''
    a(f'''
    s_cmp_ge_u32 s2, 256
    s_cbranch_scc1 L_end
    s_load_dwordx16 s[{KA}:{KA+15}], s[0:1], 0
    {scr}
    s_memrealtime s[62:63]
    ''')
    if stamps: a('s_memtime s[96:97]')
    a(f'''
    {cpe_code}
    v_lshrrev_b32 v1, 6, v0
    v_and_b32 v0, 63, v0
    s_and_b32 {sT0}, s2, 7
    v_readfirstlane_b32 {sWAVE}, v1
    s_lshr_b32 {sT1}, s2, 3
    s_lshr_b32 {sT2}, {sT1}, 4
    s_lshl_b32 {sG}, {sT0}, 1
    s_add_u32 {sG}, {sG}, {sT2}
    s_and_b32 {sJ}, {sT1}, 15
    s_mov_b32 s10, 2097152
    s_mov_b32 s11, 0x20000
    s_cmp_lt_u32 {sWAVE}, 4
    s_cbranch_scc1 L_comp
    s_cmp_ge_u32 {sWAVE}, 6
    s_cbranch_scc1 L_serv
    ''')
    def common_setup():
        perm = list(range(16)); perm[14], perm[11] = 11, 14; perm[15], perm[3] = 3, 15
        lo = sum(perm[i] << (4 * i) for i in range(8)); hi = sum(perm[8 + i] << (4 * i) for i in range(8))
        return lines(f'''
        s_mov_b32 s36, {lo:#x}
        s_mov_b32 s37, {hi:#x}
        s_lshl_b32 {sC}, {sJ}, 2
        s_lshr_b64 s[36:37], s[36:37], {sC}
        s_bfe_u32 {sR}, s36, 0x10003
        s_and_b32 {sC}, s36, 7
        s_mov_b32 {sMASK}, 0xffff0000
        s_mov_b64 s[36:37], {ka(4)}
        s_mov_b32 s38, 1024
        s_mov_b32 s39, 0x20000
        s_mov_b64 s[24:25], {ka(5)}
        s_mov_b32 s26, 2097152
        s_mov_b32 s27, 0x20000
        ''')
    def ws_setup():
        return lines(f'''
        s_add_u32 s20, s{KA+14}, {wsoff}
        s_addc_u32 s21, s{KA+15}, 0
        s_mov_b32 s22, {WS_SIZE}
        s_mov_b32 s23, 0x20000
        s_getreg_b32 {sXCC}, hwreg(HW_REG_XCC_ID, 0, 3)
        s_lshl_b32 {sFLG}, {sG}, 19
        s_add_u32 {sFLG}, {sFLG}, {FLAG_BASE}
        ''')
    def b2_load():
        return f'''v_and_b32 v{vB2raw+4}, 7, v0
        v_lshlrev_b32 v{vB2raw+4}, 4, v{vB2raw+4}
        s_lshl_b32 {sT0}, {sC}, 7
        buffer_load_dwordx4 {vr(vB2raw,4)}, v{vB2raw+4}, {B2}, {sT0} offen'''
    def final_setup():
        for i in range(4):
            a(f'v_lshlrev_b32 v{vB2f+2*i}, 16, v{vB2raw+i}')
            a(f'v_and_b32 v{vB2f+2*i+1}, {sMASK}, v{vB2raw+i}')
        a(f'''
        v_lshrrev_b32 v{vFA1}, 3, v0
        s_lshl_b32 {sT0}, {sWAVE}, 3
        v_add_u32 v{vFA1}, {sT0}, v{vFA1}
        v_lshl_add_u32 v{vOUTO}, v{vFA1}, 10, v{vB2raw+4}
        v_and_b32 v{vFA0}, 7, v0
        v_lshlrev_b32 v{vFA0}, 1, v{vFA0}
        v_and_b32 v{vB2raw}, 15, v{vFA1}
        v_xor_b32 v{vFA0}, v{vFA0}, v{vB2raw}
        v_lshlrev_b32 v{vFA0}, 4, v{vFA0}
        v_lshl_add_u32 v{vFA0}, v{vFA1}, 8, v{vFA0}
        v_add_u32 v{vFA0}, {RED}, v{vFA0}
        v_xor_b32 v{vFA1}, 16, v{vFA0}
        s_lshl_b32 {sXOFF}, {sG}, 17
        s_lshl_b32 {sT1}, {sR}, 16
        s_add_u32 {sXOFF}, {sXOFF}, {sT1}
        s_lshl_b32 {sT1}, {sC}, 7
        s_add_u32 {sXOFF}, {sXOFF}, {sT1}
        ''')
    def spin_guard(lab):
        return f's_cmp_le_i32 {sSPIN}, 0\ns_cbranch_scc1 {lab}\ns_sub_u32 {sSPIN}, {sSPIN}, 1'

    vX, vW1, vW2 = 32, 36, 40
    if rot == 'none': a(f's_mov_b32 {sKAP}, 0')
    elif rot == 'x': a(f's_mov_b32 {sKAP}, {sT0}')
    elif rot == 'xj': a(f's_add_u32 {sKAP}, {sT0}, {sJ}\ns_and_b32 {sKAP}, {sKAP}, 7')
    a(f'''
    s_sub_u32 {sHW}, {sWAVE}, 4
    v_lshrrev_b32 v49, 4, v0
    v_and_b32 v51, 15, v0
    v_mul_u32_u24 v53, 3584, v49
    v_lshlrev_b32 v52, 1, v49
    v_xor_b32 v52, v52, v51
    v_lshl_add_u32 v{vW1}, v52, 4, v53
    v_add_u32 v{vW1+1}, {4*3584-1024}, v{vW1}
    v_xor_b32 v52, 8, v52
    v_lshl_add_u32 v52, v52, 4, v53
    v_add_u32 v{vW1+2}, {(4*3584-1024)*2}, v52
    v_add_u32 v{vW1+3}, {(4*3584-1024)*3}, v52
    s_mul_i32 {sW1OFF}, {sHW}, {32*3584}
    s_lshl_b32 {sT0}, {sJ}, 8
    s_add_u32 {sW1OFF}, {sW1OFF}, {sT0}
    s_lshl_b32 {sM0B}, {sHW}, 13
    s_mov_b32 s14, 1835008
    s_mov_b32 s15, 0x20000
    v_lshrrev_b32 v48, 3, v0
    v_and_b32 v50, 7, v0
    s_cmp_ge_u32 {sJ}, 14
    s_cbranch_scc1 L_lspare
    v_xor_b32 v52, v49, v50
    v_lshlrev_b32 v52, 4, v52
    v_lshl_add_u32 v{vX}, v48, 10, v52
    v_xor_b32 v{vX+1}, 64, v{vX}
    v_add_u32 v{vX+1}, {7*1024}, v{vX+1}
    v_add_u32 v{vX+2}, {14*1024}, v{vX}
    v_add_u32 v{vX+3}, {14*1024}, v{vX+1}
    s_lshl_b32 {sXOFF}, {sG}, 17
    s_lshl_b32 {sT0}, {sHW}, 16
    s_add_u32 {sXOFF}, {sXOFF}, {sT0}
    s_waitcnt lgkmcnt(0)
    s_mov_b64 s[12:13], {ka(1)}
    s_mov_b64 s[8:9], {ka(0)}
    ''')
    w2setup = common_setup() + lines(f'''
    s_mov_b64 s[16:17], {ka(3)}
    s_mov_b32 s18, 1835008
    s_mov_b32 s19, 0x20000
    v_and_b32 v52, 1, v49
    v_lshlrev_b32 v52, 2, v52
    v_xor_b32 v52, v52, v50
    v_lshlrev_b32 v52, 4, v52
    v_lshl_add_u32 v{vW2}, v48, 10, v52
    v_add_u32 v{vW2+1}, {7*1024}, v{vW2}
    v_add_u32 v{vW2+2}, {14*1024}, v{vW2}
    v_add_u32 v{vW2+3}, {21*1024}, v{vW2}
    s_lshl_b32 {sW2A}, {sHW}, 17
    s_lshl_b32 {sT2}, {sC}, 7
    s_add_u32 {sW2A}, {sW2A}, {sT2}
    ''') + (lines(f's_lshl_b32 {sT2}, {sR}, 15\ns_add_u32 {sW2A}, {sW2A}, {sT2}') if own else []) + [f's_xor_b32 {sW2B}, {sW2A}, 32768']
    def rot_table(base, scale):
        out = [f's_min_u32 s{base}, {sC}, 6' if False else f's_cmp_eq_u32 {sC}, 7', f's_cselect_b32 s{base}, 3, {sC}'] if hrot else [f's_mov_b32 s{base}, 0']
        for u in range(1, 7):
            out += [f's_add_u32 s{base+u}, s{base+u-1}, 1', f's_cmp_eq_u32 s{base+u}, 7', f's_cselect_b32 s{base+u}, 0, s{base+u}']
        out += [f's_lshl_b32 s{base+u}, s{base+u}, {scale}' for u in range(7)]
        return out
    RT = 28
    w2setup += rot_table(RT, 18)
    def grp(pre, vb, srd, soff):
        return [(pre if i == 0 else '') + f'buffer_load_dwordx4 v{vb+i}, {srd}, {soff} offen offset:{1024*i} lds' for i in range(4)]
    def dma_stage_ops(s):
        slot = (s % 4) * SLOT
        g = grp(f's_mul_i32 {sT1}, {sKAP}, {64*3584}\ns_add_u32 m0, {sM0B}, {slot+16384}\ns_add_u32 {sT1}, {sT1}, {sW1OFF}\n', vW1, W1, sT1)
        g += grp(f's_add_u32 m0, {sM0B}, {slot+16384+4096}\ns_add_u32 {sT1}, {sT1}, {16*3584}\n', vW1, W1, sT1)
        g += grp(f's_lshl_b32 {sT0}, {sKAP}, 7\ns_add_u32 m0, {sM0B}, {slot}\ns_add_u32 {sT0}, {sT0}, {sXOFF}\n', vX, X, sT0)
        g += grp(f's_add_u32 {sKAP}, {sKAP}, 1\ns_and_b32 {sKAP}, {sKAP}, 7\ns_add_u32 m0, {sM0B}, {slot+4096}\ns_add_u32 {sT0}, {sT0}, 32768\n', vX, X, sT0)
        return g
    def w2_unit_ops(u):
        stg_, uu = divmod(u, 7)
        g = []
        for h in range(2):
            g += grp(f's_add_u32 m0, {sM0B}, {unit_addr(u)+4096*h}\n' + (f's_add_u32 {sT2}, {sW2B if stg_ else sW2A}, s{RT+uu}' if h == 0 else f's_add_u32 {sT2}, {sT2}, 65536') + '\n', vW2, W2, sT2)
        return g
    stream = []
    for s in range(8): stream += dma_stage_ops(s)
    for u in range(9): stream += w2_unit_ops(u)
    bar_at = {}
    for k in range(-1, 8):
        pos = 16 * (k + 2) + (leads[k + 1] if leads else lead0 if k == -1 else lead)
        lim = 16 * (k + 4) if k < 4 else 128 + 8 * (1 + 2 * (k - 4))
        if k >= 0: pos = min(pos, lim)
        bar_at[pos] = k
    for i, o in enumerate(stream):
        if i in bar_at:
            k = bar_at[i]
            st(f'h:pa{k+1}')
            a(f's_waitcnt vmcnt({i - 16 * (k + 2)})')
            st(f'h:pb{k+1}')
            a('s_barrier')
        a(o)
        if i == 19:
            for z in w2setup: a(z)
    a('s_branch L_lpost')
    a('L_lspare:')
    a('s_waitcnt lgkmcnt(0)')
    for z in w2setup: a(z)
    if wpf:
        a(f'''
        s_mov_b64 s[12:13], {ka(1)}
        v_lshlrev_b32 v46, 4, v0
        s_and_b32 {sT3}, {sG}, 1
        s_lshl_b32 {sT3}, {sT3}, 1
        s_add_u32 {sT3}, {sT3}, {sJ}
        s_sub_u32 {sT3}, {sT3}, 14
        s_lshl_b32 {sT3}, {sT3}, 1
        s_add_u32 {sT3}, {sT3}, {sHW}
        s_mul_i32 {sT3}, {sT3}, 28672
        ''')
        for z in wpf:
            a(f'''
            s_add_u32 {sT0}, {sKAP}, {z}
            s_and_b32 {sT0}, {sT0}, 7
            s_mul_i32 {sT0}, {sT0}, {64*3584}
            s_add_u32 {sT0}, {sT0}, {sT3}
            s_mov_b32 {sT1}, 7
            L_wpf{z}:
            buffer_load_dwordx4 v[64:67], v46, {W1}, {sT0} offen
            buffer_load_dwordx4 v[68:71], v46, {W1}, {sT0} offen offset:1024
            buffer_load_dwordx4 v[72:75], v46, {W1}, {sT0} offen offset:2048
            buffer_load_dwordx4 v[76:79], v46, {W1}, {sT0} offen offset:3072
            s_add_u32 {sT0}, {sT0}, 4096
            s_sub_u32 {sT1}, {sT1}, 1
            s_cmp_lg_u32 {sT1}, 0
            s_cbranch_scc1 L_wpf{z}
            ''')
    if gdel: a(f's_sleep {gdel}')
    if gbar: a('s_barrier')
    if gpf:
        a(f'''
        v_lshlrev_b32 v46, 4, v0
        s_lshl_b32 {sT0}, {sG}, 1
        s_add_u32 {sT0}, {sT0}, {sJ}
        s_sub_u32 {sT0}, {sT0}, 14
        s_lshl_b32 {sT0}, {sT0}, 1
        s_add_u32 {sT0}, {sT0}, {sHW}
        s_mul_i32 {sT0}, {sT0}, 28672
        s_mov_b32 {sT1}, 7
        L_gpf:
        buffer_load_dwordx4 v[64:67], v46, {W2}, {sT0} offen
        buffer_load_dwordx4 v[68:71], v46, {W2}, {sT0} offen offset:1024
        buffer_load_dwordx4 v[72:75], v46, {W2}, {sT0} offen offset:2048
        buffer_load_dwordx4 v[76:79], v46, {W2}, {sT0} offen offset:3072
        s_add_u32 {sT0}, {sT0}, 4096
        s_sub_u32 {sT1}, {sT1}, 1
        s_cmp_lg_u32 {sT1}, 0
        s_cbranch_scc1 L_gpf
        ''')
    if spf:
        a(f'''
        s_and_b32 {sT0}, {sG}, 1
        s_lshl_b32 {sT0}, {sT0}, 1
        s_add_u32 {sT0}, {sT0}, {sJ}
        s_sub_u32 {sT0}, {sT0}, 14
        s_lshl_b32 {sT0}, {sT0}, 1
        s_add_u32 {sT0}, {sT0}, {sHW}
        s_lshl_b32 {sT3}, {sT0}, 15
        v_lshrrev_b32 v47, 3, v0
        v_cmp_eq_u32 vcc, 7, v47
        s_nop 1
        v_cndmask_b32 v47, v47, 3, vcc
        ''')
        if not hrot: a('v_mov_b32 v47, 0')
        for uu in range(spf):
            lab = f'L_spf{uu}'
            a(f'''
            v_lshlrev_b32 v46, 4, v0
            v_lshl_add_u32 v46, v47, 18, v46
            s_mov_b32 {sT0}, {sT3}
            s_mov_b32 {sT1}, 8
            {lab}:
            buffer_load_dwordx4 v[64:67], v46, {W2}, {sT0} offen
            buffer_load_dwordx4 v[68:71], v46, {W2}, {sT0} offen offset:1024
            buffer_load_dwordx4 v[72:75], v46, {W2}, {sT0} offen offset:2048
            buffer_load_dwordx4 v[76:79], v46, {W2}, {sT0} offen offset:3072
            s_add_u32 {sT0}, {sT0}, 4096
            s_sub_u32 {sT1}, {sT1}, 1
            s_cmp_lg_u32 {sT1}, 0
            s_cbranch_scc1 {lab}
            v_add_u32 v47, 1, v47
            v_cmp_eq_u32 vcc, 7, v47
            s_nop 1
            v_cndmask_b32 v47, v47, 0, vcc
            ''')
    for u in range(9):
        for o in w2_unit_ops(u): a(o)
    a('s_waitcnt vmcnt(56)')
    a('s_barrier')
    a('L_lpost:')
    st('h:w9')
    a(b2_load())
    STG = 128
    def w2_reg_ops(u):
        stg_, uu = divmod(u, 7)
        g = []
        for h in range(2):
            for i in range(4):
                r = STG + 32 * (u - 11) + 16 * h + 4 * i
                pre = ((f's_add_u32 {sT2}, {sW2B if stg_ else sW2A}, s{RT+uu}' if h == 0 else f's_add_u32 {sT2}, {sT2}, 65536') + '\n') if i == 0 else ''
                g.append(pre + f'buffer_load_dwordx4 {vr(r,4)}, v{vW2+i}, {W2}, {sT2} offen offset:{1024*i}')
        return g
    def w2_write(u):
        for z in range(8):
            r = STG + 32 * (u - 11) + 4 * z
            if u == 13: a(f'ds_write_b128 v45, {vr(r,4)} offset:{1024*z}')
            else: a(f'ds_write_b128 v44, {vr(r,4)} offset:{unit_addr(u)+1024*z}')
    a('s_waitcnt vmcnt(41)')
    a('s_barrier')
    pre_dma = [u for u in (9, 10) if u < 14 - ndef]
    pre_reg = [u for u in (11, 12, 13) if u < 14 - ndef]
    post = list(range(14 - ndef, 14))
    for u in pre_dma:
        for o in w2_unit_ops(u): a(o)
    for u in pre_reg:
        for o in w2_reg_ops(u): a(o)
    st('h:w2issued')
    a(f'''
    v_lshlrev_b32 v44, 4, v0
    v_add_u32 v44, {sM0B}, v44
    v_add_u32 v45, {unit_addr(13)}, v44
    s_waitcnt vmcnt({8 * (len(pre_dma) + len(pre_reg))})
    ''')
    final_setup()
    a('s_barrier')
    for z, u in enumerate(pre_reg):
        a(f's_waitcnt vmcnt({8*(len(pre_reg)-1-z)})')
        w2_write(u)
    if dprio: a(f's_setprio {dprio}')
    for u in post:
        for o in w2_unit_ops(u): a(o)
    if zat: a('s_barrier')
    a('s_waitcnt vmcnt(0) lgkmcnt(0)')
    st('h:w2landed')
    a('s_barrier')
    a('s_branch L_final')

    a('L_serv:')
    ST, SA = 64, 80
    vEPA, vPOLL = 17, 12
    a(f'''
    s_sub_u32 {sHW}, {sWAVE}, 6
    v_lshrrev_b32 v52, 4, v0
    v_and_b32 v53, 15, v0
    v_lshlrev_b32 v53, 4, v53
    v_lshl_add_u32 v53, v52, 10, v53
    s_lshl_b32 {sT0}, {sG}, 17
    s_lshl_b32 {sT1}, {sJ}, 13
    s_add_u32 {sT3}, {sT0}, {sT1}
    s_lshl_b32 {sT1}, {sHW}, 12
    s_add_u32 {sT3}, {sT3}, {sT1}
    s_lshl_b32 {sT1}, {sG}, 4
    v_mov_b32 v{vEPA}, {sT1}
    s_mov_b32 s30, 256
    s_mov_b32 s31, 0x20000
    s_add_u32 {sT2}, {sJ}, {sHW}
    s_waitcnt lgkmcnt(0)
    s_mov_b64 s[8:9], {ka(0)}
    s_mov_b64 s[28:29], {ka(6)}
    s_cmp_lg_u32 {sT2}, 0
    s_cbranch_scc1 L_s_nolead
    s_lshl_b32 {sT1}, s62, 4
    s_or_b32 {sT1}, {sT1}, 8
    v_mov_b32 v54, {sT1}
    s_mov_b64 exec, 1
    buffer_store_dword v54, v{vEPA}, {DBG}, 0 offen sc1
    s_mov_b64 exec, -1
    L_s_nolead:
    ''')
    if slate: a(f's_mov_b32 {sKAP}, {sT3}')
    if slate > 1: a(f's_sleep {slate}')
    if slate != 1:
        for i in range(4):
            a(f'buffer_load_dwordx4 {vr(ST+4*i,4)}, v53, {X}, {sT3} offen offset:{256*i}')
    for z in common_setup() + ws_setup(): a(z)
    a(f'''
    s_mov_b32 {sSPIN}, 0x40000
    s_lshl_b32 {sT0}, {sJ}, 6
    s_lshl_b32 {sT1}, {sHW}, 5
    s_add_u32 {sT0}, {sT0}, {sT1}
    s_add_u32 {sT0}, {sT0}, 1024
    v_lshlrev_b32 v55, 3, v52
    v_add_u32 v55, {sT0}, v55
    v_lshlrev_b32 v56, 4, v0
    s_add_u32 {sT3}, {sFLG}, 1024
    v_add_u32 v57, {XCH}, v56
    s_mov_b32 m0, {XCH}
    ''')
    def bars(k0, k1):
        if k1 <= k0: return
        l1 = a.label('L_sb')
        a(f's_cmp_ge_u32 {sJ}, 14\ns_cbranch_scc1 {l1}')
        for k in range(k0, k1):
            st(f's:a{k+1}'); a('s_barrier')
        a(f'{l1}:')
    for i in range(8): a(f'v_mov_b32 v{SA+i}, 0')
    bars(-1, 0)
    sh = 0
    if slate == 1:
        for i in range(4):
            a(f'buffer_load_dwordx4 {vr(ST+4*i,4)}, v53, {X}, {sKAP} offen offset:{256*i}')
        bars(0, 1); sh = 1
    a('s_waitcnt vmcnt(0)')
    if gbar: a(f's_cmp_lt_u32 {sJ}, 14\ns_cbranch_scc1 L_s_ngb\ns_barrier\nL_s_ngb:')
    a(f'buffer_load_dword v{vPOLL}, v{vEPA}, {DBG}, 0 offen sc1')
    for i in range(4):
        for d in range(4):
            r = ST + 4 * i + d
            a(f'''
            v_lshlrev_b32 v58, 16, v{r}
            v_and_b32 v59, {sMASK}, v{r}
            v_add_f32 v{SA+(d&1)}, v{SA+(d&1)}, v58
            v_fmac_f32 v{SA+4+(d&1)}, v58, v58
            v_add_f32 v{SA+2+(d&1)}, v{SA+2+(d&1)}, v59
            v_fmac_f32 v{SA+6+(d&1)}, v59, v59
            ''')
        if i == 2: bars(sh, sh + 1)
    a(f'''
    v_add_f32 v{SA}, v{SA}, v{SA+1}
    v_add_f32 v{SA+2}, v{SA+2}, v{SA+3}
    v_add_f32 v{SA+4}, v{SA+4}, v{SA+5}
    v_add_f32 v{SA+6}, v{SA+6}, v{SA+7}
    v_add_f32 v{SA}, v{SA}, v{SA+2}
    v_add_f32 v{SA+4}, v{SA+4}, v{SA+6}
    s_nop 1
    ''')
    for mode in ('quad_perm:[1,0,3,2]', 'quad_perm:[2,3,0,1]', 'row_half_mirror', 'row_mirror'):
        a(f'''
        v_add_f32_dpp v{SA}, v{SA}, v{SA} {mode} row_mask:0xf bank_mask:0xf
        v_add_f32_dpp v{SA+4}, v{SA+4}, v{SA+4} {mode} row_mask:0xf bank_mask:0xf
        s_nop 1
        ''')
    a(f'''
    v_mul_f32 v{SA}, {f32(1.0/512)}, v{SA}
    v_mul_f32 v{SA+4}, {f32(1.0/512)}, v{SA+4}
    v_fma_f32 v{SA+4}, -v{SA}, v{SA}, v{SA+4}
    v_max_f32 v{SA+4}, 0, v{SA+4}
    v_cvt_pk_bf16_f32 v{SA+4}, v{SA+4}, v{SA+4}
    v_and_b32 v{SA+4}, {sMASK}, v{SA+4}
    v_add_f32 v{SA+4}, {f32(1e-5)}, v{SA+4}
    v_cvt_pk_bf16_f32 v{SA+4}, v{SA+4}, v{SA+4}
    v_and_b32 v{SA+4}, {sMASK}, v{SA+4}
    v_sqrt_f32 v{SA+4}, v{SA+4}
    s_nop 0
    v_cvt_pk_bf16_f32 v{SA}, -v{SA}, v{SA+4}
    ''')
    bars(sh + 1, svc[0] + 1)
    assert svc[0] >= sh
    a(f'''
    L_s_ep:
    s_waitcnt vmcnt(0)
    v_readfirstlane_b32 {sEP}, v{vPOLL}
    s_cmp_lg_u32 {sEP}, 0
    s_cbranch_scc1 L_s_ep2
    {spin_guard('L_s_ep2')}
    s_sleep 2
    buffer_load_dword v{vPOLL}, v{vEPA}, {DBG}, 0 offen sc1
    s_branch L_s_ep
    L_s_ep2:
    s_or_b32 {sT0}, {sEP}, {sXCC}
    v_mov_b32 v{SA+1}, {sT0}
    s_mov_b32 exec_lo, 0x00010001
    s_mov_b32 exec_hi, 0x00010001
    buffer_store_dwordx2 {vr(SA,2)}, v55, {WS}, {sFLG} offen sc1
    s_mov_b64 exec, -1
    ''')
    st('s:pub')
    a(b2_load())
    if touch:
        a(f's_lshl_b32 {sT0}, {sG}, 17\ns_load_dword s48, {ka(5)}, {sT0}')
    a(f's_cmp_ge_u32 {sJ}, 14\ns_cbranch_scc1 L_s_g3')
    def sbar(k):
        st(f's:a{k+1}')
        a('s_barrier')
        if hts is not None and k in hts:
            z = hts.index(k)
            per = 4 // len(hts)
            lab = a.label('L_ht')
            a(f'''
            s_cmp_eq_u32 {sHW}, 0
            s_cbranch_scc1 {lab}
            v_lshrrev_b32 v58, 4, v0
            v_mul_u32_u24 v58, {H_ST}, v58
            v_and_b32 v59, 15, v0
            v_lshl_add_u32 v58, v59, 7, v58
            s_lshl_b32 {sT0}, {sG}, 19
            s_lshl_b32 {sT1}, {sJ}, 11
            s_add_u32 {sT0}, {sT0}, {sT1}
            ''')
            for y in range(per):
                a(f's_add_u32 {sT1}, {sT0}, {4*H_ST*(z*per+y)}')
                a(f'buffer_load_dword v60, v58, {WS}, {sT1} offen sc1')
            a(f'{lab}:')
    for k in range(svc[0] + 1, svc[1] + 1): sbar(k)
    a(f'''
    s_cmp_eq_u32 {sHW}, 1
    s_cbranch_scc1 L_s_g0
    buffer_load_dwordx4 v56, {WS}, {sT3} offen sc1 lds
    L_s_g0:
    ''')
    for k in range(svc[1] + 1, svc[2] + 1): sbar(k)
    a(f'''
    s_cmp_eq_u32 {sHW}, 1
    s_cbranch_scc1 L_s_g2
    L_s_g:
    s_waitcnt vmcnt(0)
    ds_read_b128 {vr(ST,4)}, v57
    s_waitcnt lgkmcnt(0)
    v_xor_b32 v{ST+1}, {sEP}, v{ST+1}
    v_xor_b32 v{ST+3}, {sEP}, v{ST+3}
    v_or_b32 v{ST+1}, v{ST+1}, v{ST+3}
    v_cmp_lt_u32 vcc, 7, v{ST+1}
    s_cbranch_vccz L_s_g2
    {spin_guard('L_s_g2')}
    s_sleep 4
    buffer_load_dwordx4 v56, {WS}, {sT3} offen sc1 lds
    s_branch L_s_g
    L_s_g2:
    ''')
    st('s:got')
    assert svc[2] + 1 <= recst - 1 + 0 or svc[2] + 1 <= recst - 1 or True
    for k in range(svc[2] + 1, 7): sbar(k)
    a('L_s_g3:')
    a('s_barrier')
    a('s_waitcnt vmcnt(0) lgkmcnt(0)')
    final_setup()
    a(f'''
    v_and_b32 v58, 15, v0
    v_min_u32 v58, 13, v58
    v_lshlrev_b32 v58, 2, v58
    v_and_b32 v59, 16, v0
    v_lshl_add_u32 v58, v59, 3, v58
    s_lshl_b32 {sT0}, {sR}, 8
    v_add_u32 v58, {sT0}, v58
    ''')
    def svc_poll(stage):
        l0, l1 = a.label('L_sp'), a.label('L_sp')
        a(f's_cmp_eq_u32 {sHW}, 1\ns_cbranch_scc1 {l1}')
        ld = lambda i: f'buffer_load_dword v{60+i}, v58, {WS}, {sFLG} offen offset:{64*stage} sc1'
        for i in range(npoll - 1):
            a(ld(i)); a('s_sleep 1')
        a(f'{l0}:')
        for i in range(npoll):
            a(f'{ld((i + npoll - 1) % npoll)}\ns_waitcnt vmcnt({npoll-1})\nv_cmp_ne_u32 vcc, {sEP}, v{60+i}\ns_cbranch_vccz {l1}\ns_sleep 1')
        a(f'{spin_guard(l1)}\ns_branch {l0}\n{l1}:')
    def wbcode(tag):
        if tag in wbat:
            a(f's_cmp_lg_u32 {sWAVE}, 7\ns_cbranch_scc1 L_nwb{tag}\ns_cmp_lg_u32 {sJ}, 15\ns_cbranch_scc1 L_nwb{tag}\n' + (f's_bitcmp1_b32 {sG}, 0\ns_cbranch_scc1 L_nwb{tag}\n' if wb1 else '') + (f's_sleep {wbd}\n' if wbd else '') + f'buffer_wbl2 sc1\nL_nwb{tag}:')
    if 's' in otouch:
        a(f'''
        s_cmp_lg_u32 {sWAVE}, 7
        s_cbranch_scc1 L_nots
        s_cmp_lt_u32 {sJ}, 14
        s_cbranch_scc1 L_nots
        s_mov_b64 exec, 1
        buffer_load_dword v63, v{vOUTO}, {OUT}, {sXOFF} offen sc1
        s_mov_b64 exec, -1
        L_nots:
        ''')
    a('s_barrier')
    if 'x' in otouch:
        a(f'''
        s_cmp_lg_u32 {sWAVE}, 7
        s_cbranch_scc1 L_notx
        
        s_mov_b64 exec, 1
        buffer_load_dword v63, v{vOUTO}, {OUT}, {sXOFF} offen sc1
        s_mov_b64 exec, -1
        L_notx:
        ''')
    svc_poll(0)
    st('s:seenA')
    a('s_barrier')
    wbcode('A')
    svc_poll(1)
    st('s:seenB')
    a('s_barrier')
    if zat: a('s_barrier')
    wbcode('B')
    if 'b' in otouch:
        a(f'''
        s_cmp_lg_u32 {sWAVE}, 7
        s_cbranch_scc1 L_notb
        
        s_mov_b64 exec, 1
        buffer_load_dword v63, v{vOUTO}, {OUT}, {sXOFF} offen sc1
        s_mov_b64 exec, -1
        L_notb:
        ''')
    if fclean:
        a(f'''
        s_cmp_lg_u32 {sWAVE}, 7
        s_cbranch_scc1 L_nfc
        s_cmp_lt_u32 {sJ}, 14
        s_cbranch_scc1 L_nfc
        v_lshlrev_b32 v59, 6, v0
        s_lshl_b32 {sT0}, {sR}, 8
        v_add_u32 v59, {sT0}, v59
        s_mov_b64 exec, 15
        buffer_store_dword v59, v59, {WS}, {sFLG} offen offset:60 sc1
        s_mov_b64 exec, -1
        L_nfc:
        ''')
    a(f'''
    s_add_u32 {sT2}, {sJ}, {sHW}
    s_cmp_lg_u32 {sT2}, 0
    s_cbranch_scc1 L_final
    v_mov_b32 v54, 0
    s_mov_b64 exec, 1
    buffer_store_dword v54, v{vEPA}, {DBG}, 0 offen sc1
    s_mov_b64 exec, -1
    s_branch L_final
    ''')

    a('L_comp:')
    aB, aA, aW = 2, 4, 8
    vHS, vHL, vONE, vRW = 10, 11, 12, 16
    vFLAGA, vFLAGV, vRA, vTA = 17, 18, 19, 1
    vIDX = vFLAGV
    vKC, vS = 20, 28
    ACC, FR, GT = 32, 96, 224
    vBAUG, CS, vXA = GT + 8, GT + 16, GT + 7
    vBI = [GT + 5, GT + 6, GT + 7, 31]
    def aaug(t): return CS + 4 * t + 2 if (t < 2 or not own) else GT + 28 + 2 * (t - 2)
    tm, tq, tr, tc, t4, t5, t6, t7 = [GT + 8 + i for i in range(8)]
    a(f'''
    s_lshr_b32 {sWM}, {sWAVE}, 1
    s_and_b32 {sWN}, {sWAVE}, 1
    v_and_b32 v{tm}, 15, v0
    v_lshrrev_b32 v{tq}, 4, v0
    v_lshrrev_b32 v{t4}, 1, v{tm}
    v_xor_b32 v{t4}, v{t4}, v{tq}
    v_lshlrev_b32 v{t4}, 4, v{t4}
    v_lshl_add_u32 v{t4}, v{tm}, 7, v{t4}
    s_lshl_b32 {sT0}, {sWM}, 13
    v_add_u32 v{aB}, {sT0}, v{t4}
    v_xor_b32 v{aB+1}, 64, v{aB}
    v_lshrrev_b32 v{tr}, 2, v{tm}
    v_and_b32 v{tc}, 3, v{tm}
    v_and_b32 v{t5}, 1, v{tq}
    v_lshl_or_b32 v{t5}, v{t5}, 2, v{tr}
    v_lshl_add_u32 v{t6}, v{tq}, 3, v{tr}
    v_lshlrev_b32 v{t6}, 8, v{t6}
    v_lshl_add_u32 v{t6}, v{tc}, 3, v{t6}
    v_add_u32 v{t6}, 16384, v{t6}
    s_lshl_b32 {sT0}, {sWN}, 2
    ''')
    if own: a(f's_lshl_b32 {sT1}, {sWM}, 1\ns_or_b32 {sT0}, {sT0}, {sT1}')
    a(f'''
    v_xor_b32 v{t5}, {sT0}, v{t5}
    v_lshl_add_u32 v{aA}, v{t5}, 5, v{t6}
    v_xor_b32 v{aA+1}, 32, v{aA}
    v_xor_b32 v{aA+2}, 64, v{aA}
    v_xor_b32 v{aA+3}, 96, v{aA}
    s_mov_b32 {sONES}, 0x3f803f80
    v_mov_b32 v{vONE}, {sONES}
    v_mov_b32 v{vONE+1}, {sONES}
    v_mov_b32 v{vONE+2}, {sONES}
    v_mov_b32 v{vONE+3}, {sONES}
    v_and_b32 v{vIDX}, 1, v0
    v_mul_u32_u24 v{vIDX}, 0xaaaa, v{vIDX}
    v_add_u32 v{vIDX}, 0x4444, v{vIDX}
    v_lshl_or_b32 v{vIDX}, v{vIDX}, 16, v{vIDX}
    ''')
    NCS = 2 if own else 4
    for i in range(4 * NCS): a(f'v_mov_b32 v{CS+i}, 0')
    a('s_waitcnt lgkmcnt(0)')
    setup2 = common_setup() + ws_setup() + lines(f'''
    v_lshlrev_b32 v{vHL}, 4, v0
    v_lshrrev_b32 v{t4}, 5, v0
    v_lshl_add_u32 v{t6}, v{t4}, 2, v{tr}
    v_lshlrev_b32 v{t6}, 7, v{t6}
    v_lshl_add_u32 v{t6}, v{tc}, 3, v{t6}
    v_and_b32 v{t5}, 1, v{tq}
    v_lshl_add_u32 v{t6}, v{t5}, 5, v{t6}
    v_lshrrev_b32 v{t5}, 1, v{tr}
    v_lshl_add_u32 v{t6}, v{t5}, 6, v{t6}
    s_lshl_b32 {sT0}, {sWN}, 12
    s_add_u32 {sT0}, {sT0}, {unit_addr(0)}
    v_add_u32 v{aW}, {sT0}, v{t6}
    v_xor_b32 v{aW+1}, 64, v{aW}
    s_lshl_b32 {sHB}, {sG}, 19
    s_mul_i32 {sT0}, {sWN}, {H_KH}
    s_add_u32 {sHB}, {sHB}, {sT0}
    s_mul_i32 {sT0}, {sR}, {H_WM}
    s_add_u32 {sHC}, {sHB}, {sT0}
    s_mul_i32 {sT0}, {sWM}, {H_MB}
    s_add_u32 {sHC}, {sHC}, {sT0}
    v_and_b32 v{vRW}, 31, v0
    v_lshlrev_b32 v{vRW}, 8, v{vRW}
    v_xor_b32 v{t5}, v{t4}, v{tm}
    v_lshl_add_u32 v{vRW}, v{t5}, 4, v{vRW}
    s_lshl_b32 {sT0}, {sWN}, 14
    s_lshl_b32 {sT1}, {sWM}, 13
    s_add_u32 {sT0}, {sT0}, {sT1}
    s_add_u32 {sT0}, {sT0}, {RED}
    v_add_u32 v{vRW}, {sT0}, v{vRW}
    ''')
    bl = [(f'buffer_load_ushort v{vBI[t]}, v{t7}, {B1}, {sT0} offen offset:{32*t}', 'bias') for t in range(NCS)]
    assert own
    setup1 = lines(f'''
    s_mov_b64 s[32:33], {ka(2)}
    s_mov_b32 s34, 3584
    s_mov_b32 s35, 0x20000
    v_lshlrev_b32 v{t7}, 1, v{tm}
    s_lshl_b32 {sT0}, {sJ}, 8
    s_lshl_b32 {sT1}, {sWN}, 7
    s_add_u32 {sT0}, {sT0}, {sT1}
    ''') + (lines(f's_lshl_b32 {sT1}, {sWM}, 6\ns_add_u32 {sT0}, {sT0}, {sT1}') if own else []) + bl + lines(f'''
    v_lshlrev_b32 v{vHS}, 4, v{tm}
    v_lshl_add_u32 v{vHS}, v{tq}, 9, v{vHS}
    s_mul_i32 {sT0}, {sWM}, {H_WM}
    s_add_u32 {sHB}, {sHB}, {sT0}
    s_lshl_b32 {sT0}, {sJ}, 11
    s_add_u32 {sHB}, {sHB}, {sT0}
    s_lshl_b32 {sT0}, {sWAVE}, 7
    s_lshl_b32 {sT1}, {sJ}, 2
    s_add_u32 {sT0}, {sT0}, {sT1}
    v_mov_b32 v{vFLAGA}, {sT0}
    s_mov_b32 {sSEL0}, 0x01000100
    s_mov_b32 {sSEL1}, 0x07060302
    s_mov_b32 {sSEL2}, 0x05040302
    s_mov_b64 s[100:101], 0xffff
    v_lshlrev_b32 v{vRA}, 3, v{tm}
    s_lshl_b32 {sT0}, {sWM}, 9
    s_add_u32 {sT0}, {sT0}, {XCH}
    v_add_u32 v{vRA}, {sT0}, v{vRA}
    v_lshlrev_b32 v{vTA}, 6, v{tm}
    v_add_u32 v{vTA}, {XCH+4}, v{vTA}
    ''') + (lines(f'''
    s_lshl_b32 {sT0}, {sWAVE}, 10
    s_add_u32 {sT0}, {sT0}, {XCH2}
    v_add_u32 v{vXA}, {sT0}, v{vHL}
    ''') if own else [])
    CT = KA
    hrt = rot_table(CT, 12) + [f's_add_u32 s{CT+u}, s{CT+u}, {sHC}' for u in range(7)]
    V = VQ(a); L = LQ(a)
    def put(o):
        if callable(o): o()
        elif isinstance(o, tuple): a(o[0]); V.op(o[1])
        elif o.startswith('ds_'): L.op(o)
        else: a(o)
    NS = 8
    def wreads_at(n, base):
        ad = unit_addr(n // 2) + 8192 * (n % 2)
        fb = FR + 16 * (n % NS)
        return [f'ds_read_b64_tr_b16 {vr(fb+8*ph+4*dl+2*h,2)}, v{aW+dl} offset:{ad-base+1024*ph+2048*h}'
                for ph in range(2) for dl in range(2) for h in range(2)]
    def rebase(delta): return [f'v_add_u32 v{aW+dl}, {delta & 0xffffffff:#x}, v{aW+dl}' for dl in range(2)]
    def pf_list(b):
        if b == 0: return wreads_at(0, unit_addr(0)) + wreads_at(1, unit_addr(0)) + rebase(-unit_addr(0)) + wreads_at(2, 0) + wreads_at(3, 0)
        return sum((wreads_at(n, 0) for n in range(4, 8)), [])
    def code_pf():
        a(f'''
        s_cmp_ge_u32 {sWAVE}, 3
        s_cbranch_scc1 L_nocpf
        s_getpc_b64 s[14:15]
        L_pc:
        s_sub_u32 s14, s14, L_pc-{KNAME}
        s_subb_u32 s15, s15, 0
        s_lshl_b32 {sT0}, {sWAVE}, 13
        v_lshlrev_b32 v20, 7, v0
        v_add_u32 v20, {sT0}, v20
        v_min_u32 v20, L_end-{KNAME}, v20
        global_load_dword v21, v20, s[14:15]
        L_nocpf:
        ''')
    if cpf == 2: code_pf()
    a(f's_cmp_lt_u32 {sJ}, 14\ns_cbranch_scc1 L_c_reg')
    if cpf == 1: code_pf()
    for o in setup2 + hrt: put(o)
    a(f'v_mov_b32 v{vFLAGA}, 0')
    if gbar: a('s_barrier')
    if hpf:
        a(f'''
        v_lshlrev_b32 v20, 7, v0
        s_sub_u32 {sT0}, {sJ}, 14
        s_lshl_b32 {sT0}, {sT0}, 2
        s_add_u32 {sT0}, {sT0}, {sWAVE}
        s_mul_i32 {sT0}, {sT0}, {H_KH}
        s_lshl_b32 {sT1}, {sG}, 19
        s_add_u32 {sT0}, {sT0}, {sT1}
        s_sleep {hpf}
        ''')
        for z in range(7):
            a(f'buffer_load_dword v21, v20, {WS}, {sT0} offen sc1')
            a(f's_add_u32 {sT0}, {sT0}, 8192')
            if hgap: a(f's_sleep {hgap}')
    a(b2_load())
    a('s_barrier')
    for o in pf_list(0): a(o)
    a('s_waitcnt vmcnt(0) lgkmcnt(0)')
    a('s_barrier')
    for o in pf_list(1): a(o)
    final_setup()
    a('s_branch L_c_p2')
    a('L_c_reg:')
    V.q = []; L.q = []
    deferred = setup2 + setup1 + hrt
    def fB(s, ks, mt): return FR + 64 * (s & 1) + 16 * ks + 4 * mt
    def fA(s, ks, t): return FR + 64 * (s & 1) + 32 + 8 * t + 4 * ks
    def reads(s):
        so = (s & 1) * SLOT
        out = []
        for ks in range(2):
            rb = [f'ds_read_b128 {vr(fB(s,ks,mt),4)}, v{aB+ks} offset:{so+2048*mt}' for mt in range(4)]
            ra = [[f'ds_read_b64_tr_b16 {vr(fA(s,ks,t)+2*h,2)}, v{aA+t} offset:{so+8192*ks+1024*h}' for h in range(2)] for t in range(4)]
            out += ra[0] + rb + ra[1] + ra[2] + ra[3]
        return out
    def mfmas(s, c):
        out = []
        for ks in range(2):
            for t in range(4):
                if cs == 'ones' and t < 2:
                    out.append(f'v_mfma_f32_16x16x32_bf16 {vr(CS+4*t,4)}, {vr(vONE,4)}, {vr(fA(s,ks,t),4)}, {vr(CS+4*t,4)}')
                for mt in range(4):
                    d = ACC + 4 * (4 * mt + t)
                    cc = '0' if (s == 0 and ks == 0) else vr(d, 4)
                    out.append(f'v_mfma_f32_16x16x32_bf16 {vr(d,4)}, {vr(fA(s,ks,t),4)}, {vr(fB(s,ks,mt),4)}, {cc}')
        if cs != 'ones':
            for t in range(NCS):
                out.insert(c + 1 + 2 * t, f'v_smfmac_f32_16x16x64_bf16 {vr(CS+4*t,4)}, {vr(vONE,4)}, {vr(fA(s,0,t),8)}, v{vIDX}')
        return out
    toggle = [f'v_xor_b32 v{r}, 0x10000, v{r}' for r in range(aB, aB + 6)]
    st('c:rdy')
    a('s_barrier')
    st('c:B0')
    for o in reads(0): L.op(o)
    rec_reads = [f'ds_read_b32 v{GT+mt}, v{vRA} offset:{128*mt}' for mt in range(4)] + [f'ds_read_b32 v{GT+4}, v{vTA}']
    rec_ops = []
    for mt in range(4):
        rec_ops += [f'v_cndmask_b32 v{vBAUG+2*mt+1}, 0, v{GT+mt}, s[100:101]',
                    f'v_and_b32 v{vS+mt}, {sMASK}, v{GT+mt}',
                    f'v_perm_b32 v{vBAUG+2*mt}, v{vBAUG+2*mt+1}, v{vBAUG+2*mt+1}, {sSEL0}',
                    f'v_rcp_f32 v{GT+mt}, v{vS+mt}']
    rec_ops += [f'v_readfirstlane_b32 {sEP}, v{GT+4}']
    for mt in range(4):
        rec_ops += [f'v_mul_f32 v{vKC+2*mt}, {f32(K1C)}, v{GT+mt}',
                    f'v_mul_f32 v{vKC+2*mt+1}, v{GT+mt}, v{GT+mt}',
                    f'v_mul_f32 v{GT+mt}, {f32(K3C)}, v{GT+mt}',
                    f'v_mul_f32 v{vKC+2*mt+1}, v{vKC+2*mt+1}, v{GT+mt}']
    rec_ops += [f's_andn2_b32 {sEP}, {sEP}, 7', f's_or_b32 {sT0}, {sEP}, {sXCC}', f'v_cmp_ne_u32 s[98:99], {sT0}, v{GT+4}']
    if force_slow: rec_ops.append('s_mov_b64 s[98:99], -1')
    split_ops = [lambda: V.need('bias')]
    for t in range(NCS):
        cc = CS + 4 * t
        if cs != 'ones': split_ops.append(f'v_add_f32 v{cc}, v{cc}, v{cc+1}')
        split_ops += [f'v_and_b32 v{cc+1}, {sMASK}, v{cc}',
                      f'v_sub_f32 v{cc+1}, v{cc}, v{cc+1}',
                      f'v_and_b32 v{cc+2}, {sMASK}, v{cc+1}',
                      f'v_sub_f32 v{cc+2}, v{cc+1}, v{cc+2}',
                      f'v_perm_b32 v{cc+3}, v{vBI[t]}, v{cc+2}, {sSEL2}',
                      f'v_perm_b32 v{cc+2}, v{cc+1}, v{cc}, {sSEL1}']
    if own:
        split_ops += [f'ds_write2_b64 v{vXA}, {vr(CS+2,2)}, {vr(CS+6,2)} offset0:0 offset1:1', f'v_xor_b32 v{vTA}, 2048, v{vXA}']
    split_ops += [f'v_mov_b32 v{vFLAGV}, {sEP}']
    assert svc[2] + 1 < recst
    for s in range(8):
        c = chk[s]
        ms = mfmas(s, c)
        NM = len(ms)
        slots = [[] for _ in range(NM)]
        def barfn(s=s):
            L.drain(); st(f'c:A{s+1}'); a('s_barrier'); st(f'c:B{s+1}')
        if s % 2 == 1 and s < 7:
            for i, t in enumerate(toggle): slots[i * c // 6].append(t)
        if s == recst:
            for i in range(5): slots[i].append(rec_reads[i])
        slots[c].append(barfn)
        rd = reads(s + 1) if s < 7 else pf_list(0)
        n = NM - c - (1 if s < 7 else 0)
        per = -(-len(rd) // n)
        if s == 7:
            k = 0
            for i in range(c, NM):
                e = (len(rd) * (i - c + 1) + n - 1) // n
                slots[i] += rd[k:e]; k = e
        else:
            k = 0; i = c
            while k < len(rd):
                slots[i] += rd[k:k+per]; k += per; i += 1
        if s < recst:
            for i in range(NM):
                if not slots[i]:
                    slots[i] += deferred[:3]; deferred = deferred[3:]
            if s == recst - 1: assert not deferred, len(deferred)
        if s >= recst:
            lo = c + 1 if s == recst else 0
            hi = NM if s < 7 else NM - (len(split_ops) + 1) // 2 - (0 if cs != 'ones' else 0)
            for i in range(lo, hi):
                room = 2 - len(slots[i])
                if s == 7 and recst == 7: room = 4 - len(slots[i])
                if room > 0:
                    slots[i] += rec_ops[:room]; rec_ops = rec_ops[room:]
        if s == 7:
            assert not rec_ops, len(rec_ops)
            slots[c].append((b2_load(), 'b2'))
            first = max(NM - len(split_ops), (c + 2 * NCS + 8) if cs != 'ones' else 29)
            n2 = NM - first
            k = 0
            for i in range(first, NM):
                e = (len(split_ops) * (i - first + 1) + n2 - 1) // n2
                slots[i] += split_ops[k:e]; k = e
        st(f'c:S{s}')
        for i, m in enumerate(ms):
            if i == 0: L.need(set(range(fB(s,0,0), fB(s,0,0) + 16)) | set(range(fA(s,0,1), fA(s,0,1) + 4)))
            L.mfma(m)
            for o in slots[i]: put(o)
    st('c:kend')
    def aug(ts):
        return [f'v_mfma_f32_16x16x16_bf16 {vr(ACC+4*(4*mt+t),4)}, {vr(aaug(t),2)}, {vr(vBAUG+2*mt,2)}, {vr(ACC+4*(4*mt+t),4)}'
                for mt in range(4) for t in ts]
    a('s_nop 0')
    for m in aug((0, 1)): L.mfma(m)
    a('s_nop 1')
    st('c:aug')
    def store2(ins, tag):
        if (hsc and tag != 'f') or (fsc and tag == 'f'):
            a(f'{ins} sc1'); V.op(tag); return
        l1 = a.label('L_s')
        a(f's_cbranch_scc0 {l1}a\n{ins}\n{l1}:')
        tail(f'{l1}a:\n{ins} sc1\ns_branch {l1}')
        V.op(tag)
    def flag_h(stage):
        V.need(f'h{stage}')
        a('s_mov_b64 exec, 1\ns_cmp_eq_u64 s[98:99], 0')
        store2(f'buffer_store_dword v{vFLAGV}, v{vFLAGA}, {WS}, {sFLG} offen offset:{64*stage}', 'f')
        a('s_mov_b64 exec, -1')
    augat = xat if own else 0
    idx = 0
    for stg in range(2):
        for mt in range(4):
            A = ACC + 16 * mt + 8 * stg
            T = GT
            O = GT + 16 + 4 * ((idx + (2 if own else 0)) % 3 if own else idx & 3)
            P = lambda r: vr(r, 2)
            kc = vr(vKC + 2 * mt, 2)
            s_ = vr(vS + (mt & ~1), 2)
            ssel = 'op_sel:[0,1,1] op_sel_hi:[1,1,1]' if mt & 1 else 'op_sel_hi:[1,0,0]'
            if idx == 1 and own: L.drain()
            if idx == xat:
                L.drain(); st('c:Xa'); a('s_barrier'); st('c:Xb')
                if own: L.op(f'ds_read_b128 {vr(GT+28,4)}, v{vTA}')
                if xat == 4:
                    if pf2at == 4:
                        for o in pf_list(1): put(o)
                    for m in aug((2, 3)): L.mfma(m)
                    a('s_nop 1')
            if idx == pf2at and not (xat == 4 and pf2at == 4):
                for o in pf_list(1): put(o)
            body = []
            for i in range(0, 8, 2): body.append(f'v_pk_mul_f32 {P(T+i)}, {P(A+i)}, {P(A+i)}')
            for i in range(0, 8, 2): body.append(f'v_pk_fma_f32 {P(T+i)}, {P(T+i)}, {kc}, {kc} op_sel:[0,1,0] op_sel_hi:[1,1,0]')
            for i in range(0, 8, 2): body.append(f'v_pk_mul_f32 {P(T+i)}, {P(A+i)}, {P(T+i)}')
            for i in range(8): body.append(f'v_exp_f32 v{T+i}, v{T+i}')
            for i in range(0, 8, 2): body.append(f'v_pk_fma_f32 {P(T+i)}, {P(T+i)}, {s_}, {s_} {ssel}')
            for i in range(8): body.append(f'v_rcp_f32 v{T+i}, v{T+i}')
            for i in range(0, 8, 2): body.append(f'v_pk_mul_f32 {P(T+i)}, {P(A+i)}, {P(T+i)}')
            for i in range(4): body.append(f'v_cvt_pk_bf16_f32 v{O+i}, v{T+2*i}, v{T+2*i+1}')
            am = aug((2, 3)) if (idx == augat and xat < 4) else []
            for i, o in enumerate(body):
                if am and 12 <= i < 20 and i % 2 == 0: L.mfma(am[(i - 12) // 2])
                if am and 24 <= i < 32 and i % 2 == 0: L.mfma(am[4 + (i - 24) // 2])
                a(o)
            a(f's_add_u32 {sT0}, {sHB}, {(mt>>1)*H_MB + stg*H_ST}')
            if not hsc: a('s_cmp_eq_u64 s[98:99], 0')
            store2(f'buffer_store_dwordx4 {vr(O,4)}, v{vHS}, {WS}, {sT0} offen offset:{256*(mt&1)}', f'h{stg}')
            st(f'c:g{idx}')
            idx += 1
            if idx == flagat:
                flag_h(0); st('c:flagA')
    if pf2at == 8:
        for o in pf_list(1): put(o)
    if fbpos == 'pre':
        final_setup()
        flag_h(1)
        st('c:flagB')
    a('L_c_p2:')
    ACC2, HR = GT, ACC
    V.q = []; L.q = []
    def hslot(n): return HR + 16 * (n % 4) + 8 * ((n % 8) // 4)
    def hload(n):
        r = hslot(n)
        u = (n % 14) // 2
        pre = f's_add_u32 s{CT+u}, s{CT+u}, {H_ST}\n' if (n >= 14 and n % 2 == 0) else ''
        o = 2048 * (n % 2)
        return [pre + f'buffer_load_dwordx4 {vr(r,4)}, v{vHL}, {WS}, s{CT+u} offen offset:{o} {laux}',
                f'buffer_load_dwordx4 {vr(r+4,4)}, v{vHL}, {WS}, s{CT+u} offen offset:{o+1024} {laux}']
    cur_base = [0]
    def wreads(n):
        ad = unit_addr(n // 2) + 8192 * (n % 2)
        pre = []
        if not (0 <= ad - cur_base[0] <= 65535 - 8192):
            pre = rebase(ad - cur_base[0]); cur_base[0] = ad
        return pre + wreads_at(n, cur_base[0])
    pending = []
    for n in range(28):
        for ph, o in enumerate(hload(n)): pending.append((n, ph, o))
    def issue_h():
        n, ph, o = pending.pop(0)
        a(o); V.op((n, ph))
    a('s_waitcnt lgkmcnt(0)')
    a('s_barrier')
    st('c:seenA')
    for k in range(2 * ramp): issue_h()
    if fbpos == 'post':
        a(f's_cmp_ge_u32 {sJ}, 14\ns_cbranch_scc1 L_c_nfb')
        save = V.q
        V.q = ['h1'] + list(V.q)
        flag_h(1)
        V.q = save
        final_setup()
        a('L_c_nfb:')
    assert 11 - PD < sbat <= 18 - PD
    for n in range(28):
        fb = FR + 16 * (n % NS)
        hr = hslot(n)
        st(f'c:n{n}')
        fill = []
        m = n + PD
        if n == sbat:
            L.drain(); st('c:Za'); a('s_barrier'); st('c:Zb')
            for z in range(2): issue_h()
        if zat and n == zat: a('s_barrier')
        if 8 <= m < 28: fill += wreads(m)
        if n == 27: fill += [f'v_xor_b32 v{HR+i}, {32*i}, v{vRW}' for i in range(1, 8)]
        per = (len(fill) + 2) // 3
        k = 0; i = 0
        for ph in range(2):
            for dl in range(2):
                d = ACC2 + 16 * dl
                c = '0' if (n == 0 and ph == 0) else vr(d, 16)
                if dl == 0:
                    vc = V.count((n, ph))
                    lc = L.count(set(range(fb, fb + 16))) if ph == 0 else None
                    w = ([f'vmcnt({vc})'] if vc is not None else []) + ([f'lgkmcnt({lc})'] if lc is not None else [])
                    if w: a('s_waitcnt ' + ' '.join(w))
                a(f'v_mfma_f32_32x32x16_bf16 {vr(d,16)}, {vr(fb+8*ph+4*dl,4)}, {vr(hr+4*ph,4)}, {c}')
                for o in fill[k:k+per]: put(o)
                k += per
                if i >= 1 and pending and pending[0][0] <= n - 1 + D and (i != 2 or pending[0][0] < n - 1 + D) and (pending[0][0] < 14 or n >= sbat):
                    issue_h()
                i += 1
    assert not pending
    st('c:p2end')
    a('s_nop 9')
    for dl in range(2):
        for g in range(4):
            i = 4 * dl + g
            a(f'ds_write_b128 v{vRW if i == 0 else HR + i}, {vr(ACC2+16*dl+4*g,4)}')
    a('s_waitcnt lgkmcnt(0)')
    a('L_final:')
    a('s_barrier')
    st('c:W4')
    R = 64
    a(f'''
    ds_read_b128 {vr(R,4)}, v{vFA0}
    ds_read_b128 {vr(R+8,4)}, v{vFA0} offset:16384
    ds_read_b128 {vr(R+4,4)}, v{vFA1}
    ds_read_b128 {vr(R+12,4)}, v{vFA1} offset:16384
    ''')
    for half in range(2):
        a(f's_waitcnt lgkmcnt({2 - 2*half})')
        rg = range(2 * half, 2 * half + 2)
        for i in rg: a(f'v_pk_add_f32 {vr(R+2*i,2)}, {vr(R+2*i,2)}, {vr(R+8+2*i,2)}')
        for i in rg: a(f'v_cvt_pk_bf16_f32 v{R+16+i}, v{R+2*i}, v{R+2*i+1}')
        for i in rg:
            a(f'v_lshlrev_b32 v{R+2*i}, 16, v{R+16+i}')
            a(f'v_and_b32 v{R+2*i+1}, {sMASK}, v{R+16+i}')
        for i in rg: a(f'v_pk_add_f32 {vr(R+2*i,2)}, {vr(R+2*i,2)}, {vr(vB2f+2*i,2)}')
        for i in rg: a(f'v_cvt_pk_bf16_f32 v{R+20+i}, v{R+2*i}, v{R+2*i+1}')
    a(f'buffer_store_dwordx4 {vr(R+20,4)}, v{vOUTO}, {OUT}, {sXOFF} offen {outaux}')
    if stamps:
        a('s_waitcnt vmcnt(0)')
        st('c:end')
        a(f's_cmp_eq_u32 {sWAVE}, {hst}\ns_cbranch_scc1 L_sth\ns_cmp_eq_u32 {sWAVE}, 6\ns_cbranch_scc1 L_sts\ns_cmp_lg_u32 {sWAVE}, {cst}\ns_cbranch_scc1 L_end')
        st_flush('c:'); a('s_branch L_end')
        a('L_sts:'); st_flush('s:'); a('s_branch L_end')
        a('L_sth:'); st_flush('h:')
    if padend:
        a(f'L_pad:\ns_memrealtime s[94:95]\ns_waitcnt lgkmcnt(0)\ns_sub_u32 s94, s94, s62\ns_cmp_lt_u32 s94, {padend}\ns_cbranch_scc1 L_pad')
    a('s_endpgm')
    body = a.text() + tail.text() + 'L_end:\n'
    return make_file([(KNAME, body, 256, 102, 256)], [(KNAME, 256, 512, 163840)])

ST_Q = ['c:start', 'c:end', 'c:B0@', 'c:kend@', 'c:g7@', 'c:seenA@', 'c:p2end@', 'c:end@']
if __name__ == '__main__':
    names = []
    def g(nm, **kw):
        open(nm + '.s', 'w').write(gen(**kw)); names.append(nm)
    g('k16')
    g('q16', stamps=ST_Q)
    print(' '.join(names))
```

```python
from gen16 import *
names = []
def g(nm, **kw):
    open(nm + '.s', 'w').write(gen(**kw)); names.append(nm)
g('g_0')
g('g_s', otouch='s')
g('g_sb', otouch='sb')
g('g_sx', otouch='sx')
g('g_x4', xat=4, pf2at=4)
g('g_p2', padat=('c:p2end', 1500))
g('g_pe', padend=1500)
g('g_sbp2', otouch='sb', padat=('c:p2end', 1500))
print(' '.join(names))
```
